```python
import torch

def _softmax(x, axis=-1):
    return torch.softmax(x, dim=axis)

def _gelu(x):
    return torch.nn.functional.gelu(x, approximate='tanh')

def _silu(x):
    return torch.nn.functional.silu(x)

def _sigmoid(x):
    return torch.sigmoid(x)

def _layernorm(x, axis=-1, eps=1e-05):
    m = x.mean(dim=axis, keepdim=True)
    v = x.var(dim=axis, keepdim=True, unbiased=False)
    return (x - m) / torch.sqrt(v + eps)

def _scatter_add(tgt, idx, src, axis=0):
    return tgt.clone().index_add_(axis, idx, src)

def _segment_sum(src, seg, n):
    out = torch.zeros((n,) + src.shape[1:], dtype=src.dtype)
    return out.index_add_(0, seg, src)

def _pad(x, pw):
    flat = tuple((v for pair in reversed(pw) for v in pair))
    return torch.nn.functional.pad(x, flat)
kernel_name = 'standalone__tree_speculative_verify_tree_attention_over_candidate_token_tree__sampling'

def setup_inputs():

    _w = lambda a: (lambda t: t.to(torch.bfloat16) if t.is_floating_point() else t)(torch.as_tensor(a))
    B, Hq, Hkv, T, C, D = (16, 16, 8, 16, 4096, 256)
    tree_mask = torch.zeros((B, T, T), dtype=float)
    for b in range(B):
        parent = torch.zeros(T, dtype=torch.int64)
        for i in range(1, T):
            parent[i] = int(torch.randint(0, i, (1,)).item())
        for i in range(T):
            j = i
            tree_mask[b, i, j] = 1.0
            while j > 0:
                j = parent[j]
                tree_mask[b, i, j] = 1.0
    return {'q': _w((lambda *s: torch.randn(*s, dtype=torch.bfloat16) * 0.8)(B, Hq, T, D)), 'k_cache': _w((lambda *s: torch.randn(*s, dtype=torch.bfloat16) * 0.8)(B, Hkv, C, D)), 'v_cache': _w((lambda *s: torch.randn(*s, dtype=torch.bfloat16) * 0.05)(B, Hkv, C, D)), 'k_tree': _w((lambda *s: torch.randn(*s, dtype=torch.bfloat16) * 0.8)(B, Hkv, T, D)), 'v_tree': _w((lambda *s: torch.randn(*s, dtype=torch.bfloat16) * 0.05)(B, Hkv, T, D)), 'tree_mask': _w(tree_mask)}

def reference(q, k_cache, v_cache, k_tree, v_tree, tree_mask):
    B, Hq, T, D = q.shape
    Hkv, C = (k_cache.shape[1], k_cache.shape[2])
    rep = Hq // Hkv
    kc = (lambda x, n, axis: torch.repeat_interleave(x, n, dim=axis))(k_cache, rep, axis=1)
    vc = (lambda x, n, axis: torch.repeat_interleave(x, n, dim=axis))(v_cache, rep, axis=1)
    kt = (lambda x, n, axis: torch.repeat_interleave(x, n, dim=axis))(k_tree, rep, axis=1)
    vt = (lambda x, n, axis: torch.repeat_interleave(x, n, dim=axis))(v_tree, rep, axis=1)
    k = torch.concatenate([kc, kt], axis=2)
    v = torch.concatenate([vc, vt], axis=2)
    scale = D ** (-0.5)
    scores = torch.einsum('bhqd,bhkd->bhqk', q, k) * scale
    ctx_mask = torch.ones((B, 1, T, C), dtype=scores.dtype)
    tm = tree_mask[:, None, :, :].clone()
    full_mask = torch.concatenate([ctx_mask, tm], axis=-1)
    scores = scores + (1.0 - full_mask) * -1000000000.0
    p = _softmax(scores, axis=-1)
    return torch.einsum('bhqk,bhkd->bhqd', p, v)
```

```python
import sys, struct, math

NAME = "standalone__tree_speculative_verify_tree_attention_over_candidate_token_tree__sampling"

HEADER = """; Kernarg layout for this problem (72 bytes, ptrs only, base s[0:1]):
"""

def f32(x):
    return "0x%08x" % struct.unpack("<I", struct.pack("<f", x))[0]

KBLK = 1040
KBUF = 16*KBLK
EREG = 4*KBUF
TREEK = EREG + KBUF
MLREG = EREG + 32768
TICK = MLREG + 2048
LDS_BYTES = 102400

V_LANE, V_LIN, V_VOFF, V_KRD, V_M, V_L, V_ALPHA, V_MNEW = 1, 2, 3, 4, 5, 6, 7, 8
V_T0 = 9
V_P, V_S, V_VP, V_VR, V_O = 24, 32, 48, 64, 128
A_Q, A_K = 0, 64
S_W, S_TMP = 22, 23
SRD_K, SRD_V, SRD_Q, SRD_KT, SRD_VT, SRD_M, SRD_O, SRD_WS = 24, 28, 32, 36, 40, 44, 48, 52
S_T = 56
S_KBUF, S_CNT, S_C, S_PLO, S_PHI, S_OWN, S_PART = 60, 61, 62, 63, 64, 65, 66
S_X = 68
WS_SLOT = 65536
WS_ML = 32768
WS_FLAG = 36864
STAMP_BASE = 0x2000000

def vr(b, n=1):
    return f"v{b}" if n == 1 else f"v[{b}:{b+n-1}]"
def ar(b, n=1):
    return f"a{b}" if n == 1 else f"a[{b}:{b+n-1}]"
def sr(b, n=1):
    return f"s{b}" if n == 1 else f"s[{b}:{b+n-1}]"

class Gen:
    def __init__(self, D=5, nt="nt", stamps=False, spin_limit=1 << 22, nocompute=False, norescale=False, pace_pat=None):
        self.D, self.nt, self.stamps, self.spin_limit = D, nt, stamps, spin_limit
        self.nocompute, self.norescale = nocompute, norescale
        self.pace_pat = pace_pat or [D]
        self.npace = 0
        self.L = []
        self.nstamp = 0

    def a(self, s):
        for line in s.split("\n"):
            self.L.append("    " + line.strip())
    def lab(self, n):
        self.L.append(n + ":")
    def c(self, s):
        self.L.append("    ; " + s)

    def stamp(self, idx):
        if self.stamps:
            r = 84 + 2*idx
            self.a(f"s_memrealtime s[{r}:{r+1}]")

    def srd(self, q, lo, hi, add, size):
        if add is None:
            self.a(f"s_mov_b32 s{q}, s{lo}\ns_mov_b32 s{q+1}, s{hi}")
        else:
            self.a(f"s_add_u32 s{q}, s{lo}, {add}\ns_addc_u32 s{q+1}, s{hi}, 0")
        self.a(f"s_mov_b32 s{q+2}, {size}\ns_mov_b32 s{q+3}, 0x20000")

    def k_load(self, i):
        imm = (i & 3)*1024
        self.a(f"s_add_u32 m0, s{S_KBUF}, {i*KBLK - imm}")
        self.a("s_nop 0")
        self.a(f"buffer_load_dwordx4 v{V_LIN}, s[{SRD_K}:{SRD_K+3}], s{S_T + (i >> 2)} offen offset:{imm} {self.nt} lds")
    def v_load(self, b):
        imm = (b & 3)*1024
        so = S_T + (b >> 2)
        d = V_VR + 4*b
        self.a(f"buffer_load_dwordx4 {vr(d,4)}, v{V_LIN}, s[{SRD_V}:{SRD_V+3}], s{so} offen offset:{imm} {self.nt}")
    def pace(self):
        d = self.pace_pat[self.npace % len(self.pace_pat)]
        assert d <= self.D
        self.npace += 1
        self.a(f"s_waitcnt vmcnt({d-1})")

    def kfrag_reads(self, lo, hi, vaddr=V_KRD, abase=A_K):
        return [f"ds_read_b128 {ar(abase+4*s,4)}, v{vaddr} offset:{32*s}" for s in range(lo, hi)]
    def qk_mfma(self, lo, hi):
        out = []
        for s in range(lo, hi):
            cin = "0" if s == 0 else vr(V_S, 16)
            out.append(f"v_mfma_f32_32x32x16_bf16 {vr(V_S,16)}, {ar(A_K+4*s,4)}, {ar(A_Q+4*s,4)}, {cin}")
        return out

    def softmax_slices(self, tag):
        S = V_S; t0, t1 = V_T0, V_T0+1
        sl = []
        sl.append(self.kfrag_reads(0, 8))
        sl.append(["s_waitcnt lgkmcnt(0)"] + self.kfrag_reads(8, 16) + self.qk_mfma(0, 4))
        sl.append(self.qk_mfma(4, 8))
        sl.append(["s_waitcnt lgkmcnt(0)"] + self.qk_mfma(8, 12))
        sl.append(self.qk_mfma(12, 16))
        mx = ["s_nop 11",
              f"v_max3_f32 v{t0}, v{S}, v{S+1}, v{S+2}",
              f"v_max3_f32 v{t1}, v{S+3}, v{S+4}, v{S+5}",
              f"v_max3_f32 v{t0}, v{t0}, v{S+6}, v{S+7}",
              f"v_max3_f32 v{t1}, v{t1}, v{S+8}, v{S+9}",
              f"v_max3_f32 v{t0}, v{t0}, v{S+10}, v{S+11}",
              f"v_max3_f32 v{t1}, v{t1}, v{S+12}, v{S+13}",
              f"v_max3_f32 v{t0}, v{t0}, v{S+14}, v{S+15}",
              f"v_max_f32 v{t0}, v{t0}, v{t1}",
              f"v_mov_b32 v{t1}, v{t0}",
              "s_nop 1",
              f"v_permlane32_swap_b32 v{t0}, v{t1}",
              "s_nop 1",
              f"v_max_f32 v{t0}, v{t0}, v{t1}",
              f"v_mul_f32 v{t0}, s{S_C}, v{t0}",
              f"v_max_f32 v{V_MNEW}, v{V_M}, v{t0}",
              f"v_sub_f32 v{t1}, v{V_M}, v{V_MNEW}",
              f"v_exp_f32 v{V_ALPHA}, v{t1}",
              f"v_cmp_gt_f32 vcc, v{V_MNEW}, v{V_M}",
              f"v_mov_b32 v{V_M}, v{V_MNEW}",
              f"v_mul_f32 v{V_L}, v{V_L}, v{V_ALPHA}",
              "s_nop 1"]
        sl.append(mx)
        for part in range(0 if self.norescale else 2):
            lab = f"L_skip_{tag}_{part}"
            blk = [f"s_cbranch_vccz {lab}"]
            blk += [f"v_mul_f32 v{V_O+r}, v{V_ALPHA}, v{V_O+r}" for r in range(64*part, 64*part+64)]
            blk += [lab + ":"]
            sl.append(blk)
        for part in range(2):
            rs = range(8*part, 8*part+8)
            blk = [f"v_fma_f32 v{S+r}, v{S+r}, s{S_C}, -v{V_M}" for r in rs]
            blk += [f"v_exp_f32 v{S+r}, v{S+r}" for r in rs]
            blk += ["s_nop 0"]
            blk += [f"v_cvt_pk_bf16_f32 v{V_P+(r>>1)}, v{S+r}, v{S+r+1}" for r in rs if r % 2 == 0]
            b = 8*part
            blk += [f"v_add_f32 v{t0}, v{S+b}, v{S+b+1}",
                    f"v_add_f32 v{t1}, v{S+b+2}, v{S+b+3}",
                    f"v_add_f32 v{t0}, v{t0}, v{S+b+4}",
                    f"v_add_f32 v{t1}, v{t1}, v{S+b+5}",
                    f"v_add_f32 v{t0}, v{t0}, v{S+b+6}",
                    f"v_add_f32 v{t1}, v{t1}, v{S+b+7}",
                    f"v_add_f32 v{t0}, v{t0}, v{t1}",
                    f"v_add_f32 v{V_L}, v{V_L}, v{t0}"]
            sl.append(blk)
        return sl

    def pv_slices(self):
        out = []
        for s in range(2):
            for c in range(4):
                blo = V_VP + 8*(c & 1)
                bhi = blo + 4
                blk = []
                for t in range(4):
                    r0 = V_VR + 4*(8*s + 2*t) + c
                    r1 = r0 + 4
                    blk.append(f"v_perm_b32 v{blo+t}, v{r1}, v{r0}, s{S_PLO}")
                for t in range(4):
                    r0 = V_VR + 4*(8*s + 2*t) + c
                    r1 = r0 + 4
                    blk.append(f"v_perm_b32 v{bhi+t}, v{r1}, v{r0}, s{S_PHI}")
                blk.append("s_nop 1")
                o0, o1 = V_O + 16*(2*c), V_O + 16*(2*c+1)
                blk.append(f"v_mfma_f32_32x32x16_bf16 {vr(o0,16)}, {vr(blo,4)}, {vr(V_P+4*s,4)}, {vr(o0,16)}")
                blk.append(f"v_mfma_f32_32x32x16_bf16 {vr(o1,16)}, {vr(bhi,4)}, {vr(V_P+4*s,4)}, {vr(o1,16)}")
                out.append((s, blk))
        return out

    def emit(self, blk):
        for ln in blk:
            if ln.endswith(":"):
                self.lab(ln[:-1])
            else:
                self.a(ln)

    def schedule(self, tag):
        D = self.D
        B = [[] for _ in range(16)]
        A = [[] for _ in range(16)]
        pos = D - 1
        def put(p, blk):
            (B[p] if p < 16 else A[p-16]).append(blk)
        for blk in self.softmax_slices(tag):
            put(pos, blk); pos += 1
        pos = max(pos, 16)
        for s, blk in self.pv_slices():
            if s == 1:
                pos = max(pos, 16 + D - 1)
            assert pos < 32
            put(pos, blk); pos += 1
        return B, A

    def build(self):
        a, c, D = self.a, self.c, self.D
        K = NAME + "_kernel"
        self.L.append(f".amdgcn_target \"amdgcn-amd-amdhsa--gfx950\"\n.text\n.globl {K}\n.p2align 8\n.type {K},@function\n{K}:")
        a("s_cmp_ge_u32 s2, 256")
        a("s_cbranch_scc1 L_end")
        a("s_load_dwordx16 s[4:19], s[0:1], 0")
        a("s_load_dwordx2 s[20:21], s[0:1], 64")
        self.stamp(0)
        c("lane / wave decomposition")
        a(f"v_lshrrev_b32 v9, 6, v0")
        a(f"v_and_b32 v{V_LANE}, 63, v0")
        a(f"v_readfirstlane_b32 s{S_W}, v9")
        a(f"v_lshlrev_b32 v{V_LIN}, 4, v{V_LANE}")
        a(f"v_and_b32 v10, 31, v{V_LANE}")
        a(f"v_lshrrev_b32 v11, 5, v{V_LANE}")
        c("row rho of a tile is key 2*blk + e, blk = (rho&3) + 4*(rho>>3), e = (rho>>2)&1")
        a(f"v_and_b32 v12, 3, v10")
        a(f"v_lshrrev_b32 v13, 3, v10")
        a(f"v_lshl_add_u32 v12, v13, 2, v12")
        a(f"v_bfe_u32 v13, v10, 2, 1")
        c("q row held by this lane's column")
        a(f"v_lshl_add_u32 v16, v12, 1, v13")
        a(f"v_mul_u32_u24 v12, {KBLK}, v12")
        a(f"v_lshl_add_u32 v12, v13, 9, v12")
        a(f"v_lshl_add_u32 v12, v11, 4, v12")
        a(f"s_mul_i32 s{S_KBUF}, s{S_W}, {KBUF}")
        a(f"v_add_u32 v{V_KRD}, s{S_KBUF}, v12")
        a(f"v_add_u32 v14, {EREG}, v12")
        c("tree-K fragment address: rows with bit 2 set read the second key")
        a(f"v_bfe_u32 v15, v10, 2, 1")
        a(f"v_lshlrev_b32 v15, 9, v15")
        a(f"v_lshl_add_u32 v15, v11, 4, v15")
        a(f"s_lshl_b32 s{S_X}, s{S_W}, 10")
        a(f"s_add_u32 s{S_X+1}, s{S_X}, {TREEK}")
        a(f"v_add_u32 v15, s{S_X+1}, v15")
        c("mask offset: (q&15)*32 + h*2")
        a(f"v_and_b32 v17, 15, v16")
        a(f"v_lshlrev_b32 v17, 5, v17")
        a(f"v_lshl_add_u32 v17, v11, 1, v17")
        c("output offset: q*512 + h*64")
        a(f"v_lshlrev_b32 v18, 9, v16")
        a(f"v_lshl_add_u32 v18, v11, 6, v18")
        c("scalar ids: pair p = wg>>1, half = wg&1, w8 = half*4 + wave")
        a(f"s_lshr_b32 s{S_X+2}, s2, 1")
        a(f"s_and_b32 s{S_X+3}, s2, 1")
        a(f"s_lshl_b32 s{S_X+4}, s{S_X+3}, 2")
        a(f"s_add_u32 s{S_X+4}, s{S_X+4}, s{S_W}")
        a(f"s_lshl_b32 s{S_OWN}, s{S_X+3}, 16")
        a(f"s_xor_b32 s{S_PART}, s{S_OWN}, 0x10000")
        a(f"s_lshl_b32 s{S_X+5}, s{S_X+2}, 14")
        a(f"s_lshl_b32 s{S_X+6}, s{S_X+2}, 13")
        a(f"s_lshr_b32 s{S_X+7}, s{S_X+2}, 3")
        a(f"s_lshl_b32 s{S_X+7}, s{S_X+7}, 9")
        a(f"s_lshl_b32 s{S_X+8}, s{S_X+2}, 17")
        a(f"s_lshl_b32 s{S_X+9}, s2, 20")
        a(f"s_lshl_b32 s{S_T}, s{S_W}, 14")
        a(f"s_add_u32 s{S_T+1}, s{S_T}, 4096")
        a(f"s_add_u32 s{S_T+2}, s{S_T}, 8192")
        a(f"s_add_u32 s{S_T+3}, s{S_T}, 12288")
        a(f"s_mov_b32 s{S_C}, {f32(math.log2(math.e)/16.0)}")
        a(f"s_mov_b32 s{S_PLO}, 0x05040100")
        a(f"s_mov_b32 s{S_PHI}, 0x07060302")
        a(f"s_mov_b32 s{S_CNT}, 0")
        a("s_waitcnt lgkmcnt(0)")
        self.srd(SRD_Q, 4, 5, f"s{S_X+5}", 16384)
        self.srd(SRD_WS, 20, 21, f"s{S_X+8}", 2*WS_SLOT)
        c("wave 0 clears this workgroup's hand-off flag")
        a(f"s_cmp_lg_u32 s{S_W}, 0")
        a("s_cbranch_scc1 L_noclear")
        a(f"v_mov_b32 v12, 0")
        a(f"v_mov_b32 v13, {WS_FLAG}")
        a("s_mov_b64 exec, 1")
        a(f"buffer_store_dword v12, v13, s[{SRD_WS}:{SRD_WS+3}], s{S_OWN} offen sc1")
        a("s_mov_b64 exec, -1")
        self.lab("L_noclear")
        c("Q: four 1 KiB blocks per wave into the shared staging area")
        a(f"s_lshl_b32 s{S_X+10}, s{S_W}, 12")
        a(f"s_mul_i32 s{S_X+11}, s{S_W}, {4*KBLK}")
        a(f"s_add_u32 s{S_X+11}, s{S_X+11}, {EREG}")
        for jj in range(4):
            a(f"s_add_u32 m0, s{S_X+11}, {jj*KBLK - jj*1024}")
            a("s_nop 0")
            a(f"buffer_load_dwordx4 v{V_LIN}, s[{SRD_Q}:{SRD_Q+3}], s{S_X+10} offen offset:{jj*1024} lds")
        c("tree K (two keys) into LDS, tree V into registers, mask element")
        self.srd(SRD_KT, 10, 11, f"s{S_X+6}", 8192)
        self.srd(SRD_VT, 12, 13, f"s{S_X+6}", 8192)
        self.srd(SRD_M, 14, 15, f"s{S_X+7}", 512)
        a(f"s_lshl_b32 s{S_X+12}, s{S_X+4}, 10")
        a(f"s_lshl_b32 s{S_X+13}, s{S_X+4}, 2")
        a(f"s_mov_b32 m0, s{S_X+1}")
        a("s_nop 0")
        a(f"buffer_load_dwordx4 v{V_LIN}, s[{SRD_KT}:{SRD_KT+3}], s{S_X+12} offen lds")
        a(f"buffer_load_dwordx4 v[20:23], v{V_LIN}, s[{SRD_VT}:{SRD_VT+3}], s{S_X+12} offen")
        a(f"buffer_load_ushort v19, v17, s[{SRD_M}:{SRD_M+3}], s{S_X+13} offen")
        self.srd(SRD_K, 6, 7, f"s{S_X+9}", 1 << 20)
        self.srd(SRD_V, 8, 9, f"s{S_X+9}", 1 << 20)
        self.srd(SRD_O, 16, 17, f"s{S_X+5}", 16384)

        c("---- phase A(0): K tile 0, tree tile computed between the loads")
        S = V_S; t0, t1 = V_T0, V_T0+1
        pro = []
        pro.append(["s_barrier"] + self.kfrag_reads(0, 8, 14, A_Q))
        pro.append(["s_waitcnt lgkmcnt(0)"] + self.kfrag_reads(8, 16, 14, A_Q))
        pro.append(["s_waitcnt lgkmcnt(0)"] + self.kfrag_reads(0, 8, 15, A_K) +
                   ["v_lshlrev_b32 v19, 16, v19",
                    "v_sub_f32 v19, 1.0, v19",
                    f"v_mul_f32 v19, {f32(-1e9*math.log2(math.e))}, v19"])
        pro.append(["s_waitcnt lgkmcnt(0)"] + self.kfrag_reads(8, 16, 15, A_K) + self.qk_mfma(0, 8))
        pro.append(["s_waitcnt lgkmcnt(0)"] + self.qk_mfma(8, 16))
        sm = [f"v_mov_b32 v{V_VP+k}, 0" for k in range(16)]
        sm += [f"v_mov_b32 v{V_P+k}, 0" for k in range(1, 4)]
        sm += ["s_nop 4",
               f"v_fma_f32 v{t0}, v{S}, s{S_C}, v19",
               f"v_mov_b32 v{t1}, v{t0}",
               f"v_mov_b32 v12, v{t0}",
               "s_nop 1",
               f"v_permlane32_swap_b32 v{t0}, v{t1}",
               "s_nop 1",
               f"v_max_f32 v{V_M}, v{t0}, v{t1}",
               f"v_sub_f32 v12, v12, v{V_M}",
               f"v_exp_f32 v{V_L}, v12",
               "s_nop 0",
               f"v_cvt_pk_bf16_f32 v{V_P}, v{V_L}, 0"]
        pro.append(sm)
        for half in range(2):
            blk = []
            for ii in range(4):
                i = 4*half + ii
                buf = V_VP + 4*ii
                src = 20 + (i >> 1)
                if i & 1:
                    blk.append(f"v_lshrrev_b32 v{buf}, 16, v{src}")
                else:
                    blk.append(f"v_and_b32 v{buf}, 0xffff, v{src}")
            blk.append("s_nop 1")
            for ii in range(4):
                i = 4*half + ii
                buf = V_VP + 4*ii
                blk.append(f"v_mfma_f32_32x32x16_bf16 {vr(V_O+16*i,16)}, {vr(buf,4)}, {vr(V_P,4)}, 0")
            pro.append(blk)
        assert D + len(pro) <= 16
        for i in range(16):
            if i >= D:
                self.pace()
            self.k_load(i)
            if i == D:
                self.stamp(1)
            if D <= i < D + len(pro):
                self.emit(pro[i-D])

        B, A = self.schedule("loop")
        c("---- main loop: phase B(t) = V loads + QK/softmax, phase A(t+1) = K loads + PV")
        self.L.append(".p2align 6")
        self.lab("L_loop")
        for b in range(16):
            self.pace()
            self.v_load(b)
            for blk in B[b]:
                if not self.nocompute:
                    self.emit(blk)
        a(f"s_cmp_eq_u32 s{S_CNT}, 15")
        a("s_cbranch_scc1 L_tail")
        for k in range(4):
            a(f"s_add_u32 s{S_T+k}, s{S_T+k}, 65536")
        a(f"s_add_u32 s{S_CNT}, s{S_CNT}, 1")
        for i in range(16):
            self.pace()
            self.k_load(i)
            for blk in A[i]:
                if not self.nocompute:
                    self.emit(blk)
        a("s_branch L_loop")

        c("---- tail: ticket, last PV")
        self.lab("L_tail")
        self.stamp(2)
        a(f"s_cmp_lg_u32 s{S_W}, 0")
        a("s_cbranch_scc1 L_noticket")
        c("pair field: 16 bits of d_debug; dword = p>>1, shift = (p&1)*16")
        a(f"s_lshr_b32 s{S_X+10}, s{S_X+2}, 1")
        a(f"s_lshl_b32 s{S_X+10}, s{S_X+10}, 2")
        a(f"s_and_b32 s{S_X+11}, s{S_X+2}, 1")
        a(f"s_lshl_b32 s{S_X+11}, s{S_X+11}, 4")
        a(f"s_lshl_b32 s{S_X+12}, 1, s{S_X+11}")
        a(f"v_mov_b32 v12, s{S_X+10}")
        a(f"v_mov_b32 v13, s{S_X+12}")
        a("s_mov_b64 exec, 1")
        a("global_atomic_add v13, v12, v13, s[18:19] sc0 sc1")
        a("s_mov_b64 exec, -1")
        self.lab("L_noticket")
        B2, A2 = self.schedule("tail")
        nsm = len(self.softmax_slices("x"))
        flat = [blk for slot in A2 for blk in slot]
        npv = 8
        rest = flat[:len(flat)-npv]
        pvs = flat[len(flat)-npv:]
        for blk in rest:
            self.emit(blk)
        for k, blk in enumerate(pvs):
            if k == 0:
                a("s_waitcnt vmcnt(9)")
                c("waves other than 0 have no ticket in flight")
                a(f"s_cmp_eq_u32 s{S_W}, 0")
                a("s_cbranch_scc1 L_w0a")
                a("s_waitcnt vmcnt(8)")
                self.lab("L_w0a")
            if k == 4:
                a("s_waitcnt vmcnt(1)")
                a(f"s_cmp_eq_u32 s{S_W}, 0")
                a("s_cbranch_scc1 L_w0b")
                a("s_waitcnt vmcnt(0)")
                self.lab("L_w0b")
            self.emit(blk)
        self.stamp(3)

        c("---- workgroup combine through LDS")
        a(f"v_mov_b32 v10, v{V_M}")
        a(f"v_mov_b32 v12, v{V_L}")
        a(f"v_mov_b32 v11, v{V_L}")
        a("s_nop 1")
        a("v_permlane32_swap_b32 v11, v12")
        a("s_nop 1")
        a("v_add_f32 v11, v11, v12")
        a(f"v_lshlrev_b32 v14, 3, v{V_LANE}")
        a(f"s_lshl_b32 s{S_X+10}, s{S_W}, 9")
        a(f"s_add_u32 s{S_X+10}, s{S_X+10}, {MLREG}")
        a(f"v_add_u32 v15, s{S_X+10}, v14")
        a("ds_write_b64 v15, v[10:11]")
        a("s_nop 7")
        for k in range(4):
            c(f"part {k}: registers 4k..4k+3 of every accumulator tile go to wave {k}")
            a(f"s_cmp_eq_u32 s{S_W}, {k}")
            a(f"s_cbranch_scc1 L_nopart{k}")
            a(f"s_sub_u32 s{S_X+10}, {k+3}, s{S_W}")
            a(f"s_and_b32 s{S_X+10}, s{S_X+10}, 3")
            a(f"s_lshl_b32 s{S_X+11}, s{S_X+10}, 13")
            a(f"s_add_u32 s{S_X+11}, s{S_X+11}, s{S_KBUF}")
            a(f"s_lshl_b32 s{S_X+12}, s{S_W}, 13")
            a(f"s_add_u32 s{S_X+12}, s{S_X+12}, {EREG}")
            a(f"s_cmp_eq_u32 s{S_X+10}, 2")
            a(f"s_cselect_b32 s{S_X+11}, s{S_X+12}, s{S_X+11}")
            a(f"v_add_u32 v15, s{S_X+11}, v{V_LIN}")
            for i in range(8):
                r = V_O + 16*i + 4*k
                a(f"ds_write_b128 v15, {vr(r,4)} offset:{i*1024}")
            self.lab(f"L_nopart{k}")
        c("wave 0 publishes the ticket")
        a(f"s_cmp_lg_u32 s{S_W}, 0")
        a("s_cbranch_scc1 L_notickw")
        a("s_waitcnt vmcnt(0)")
        a(f"s_and_b32 s{S_X+11}, s{S_X+2}, 1")
        a(f"s_lshl_b32 s{S_X+11}, s{S_X+11}, 4")
        a(f"v_lshrrev_b32 v13, s{S_X+11}, v13")
        a(f"v_and_b32 v13, 0xffff, v13")
        a(f"v_mov_b32 v12, {TICK}")
        a("s_mov_b64 exec, 1")
        a("ds_write_b32 v12, v13")
        a("s_mov_b64 exec, -1")
        self.lab("L_notickw")
        a("s_waitcnt lgkmcnt(0)")
        a("s_barrier")
        self.stamp(4)
        c("(m, l) of the four waves in rotated order: k -> wave (w - k) & 3")
        for k in range(4):
            a(f"s_sub_u32 s{S_X+10}, s{S_W}, {k}")
            a(f"s_and_b32 s{S_X+10}, s{S_X+10}, 3")
            a(f"s_lshl_b32 s{S_X+10}, s{S_X+10}, 9")
            a(f"s_add_u32 s{S_X+10}, s{S_X+10}, {MLREG}")
            a(f"v_add_u32 v15, s{S_X+10}, v14")
            a(f"ds_read_b64 v[{24+2*k}:{25+2*k}], v15")
        a(f"v_mov_b32 v12, {TICK}")
        a("ds_read_b32 v13, v12")
        def part_addr(k):
            a(f"s_sub_u32 s{S_X+10}, s{S_W}, {k}")
            a(f"s_and_b32 s{S_X+10}, s{S_X+10}, 3")
            if k < 3:
                a(f"s_mul_i32 s{S_X+11}, s{S_X+10}, {KBUF}")
                a(f"s_add_u32 s{S_X+11}, s{S_X+11}, {(k-1)*8192}")
            else:
                a(f"s_lshl_b32 s{S_X+11}, s{S_X+10}, 13")
                a(f"s_add_u32 s{S_X+11}, s{S_X+11}, {EREG}")
            a(f"v_add_u32 v15, s{S_X+11}, v{V_LIN}")
        part_addr(1)
        for i in range(8):
            a(f"ds_read_b128 {vr(V_VR+4*i,4)}, v15 offset:{i*1024}")
        a("s_waitcnt lgkmcnt(8)")
        a("v_max3_f32 v10, v24, v26, v28")
        a("v_max_f32 v10, v10, v30")
        for k in range(4):
            a(f"v_sub_f32 v{24+2*k}, v{24+2*k}, v10")
        for k in range(4):
            a(f"v_exp_f32 v{24+2*k}, v{24+2*k}")
        a(f"v_readfirstlane_b32 s{S_X+14}, v13")
        a("v_mul_f32 v11, v24, v25")
        for k in range(1, 4):
            a(f"v_fmac_f32 v11, v{24+2*k}, v{25+2*k}")
        ACC = V_S
        c("own part, selected by wave id")
        for k in range(4):
            if k < 3:
                a(f"s_cmp_lg_u32 s{S_W}, {k}")
                a(f"s_cbranch_scc1 L_own{k+1}")
            for i in range(8):
                for cc in range(4):
                    a(f"v_mul_f32 v{ACC+4*i+cc}, v24, v{V_O+16*i+4*k+cc}")
            if k < 3:
                a("s_branch L_owndone")
                self.lab(f"L_own{k+1}")
        self.lab("L_owndone")
        part_addr(2)
        for i in range(8):
            a(f"ds_read_b128 {vr(V_VR+32+4*i,4)}, v15 offset:{i*1024}")
        a("s_waitcnt lgkmcnt(8)")
        for r in range(32):
            a(f"v_fmac_f32 v{ACC+r}, v26, v{V_VR+r}")
        part_addr(3)
        for i in range(8):
            a(f"ds_read_b128 {vr(V_O+4*i,4)}, v15 offset:{i*1024}")
        a("s_waitcnt lgkmcnt(8)")
        for r in range(32):
            a(f"v_fmac_f32 v{ACC+r}, v28, v{V_VR+32+r}")
        a("s_waitcnt lgkmcnt(0)")
        for r in range(32):
            a(f"v_fmac_f32 v{ACC+r}, v30, v{V_O+r}")
        self.stamp(5)
        c("v10 = M, v11 = L, acc = v32..v63; wave offsets inside a slot")
        a(f"s_lshl_b32 s{S_X+10}, s{S_W}, 13")
        a(f"s_lshl_b32 s{S_X+11}, s{S_W}, 9")
        a(f"s_add_u32 s{S_X+11}, s{S_X+11}, {WS_ML}")
        a(f"s_cmp_lg_u32 s{S_X+14}, 0")
        a("s_cbranch_scc1 L_second")

        c("---- first arriver: publish the partial result")
        a(f"s_add_u32 s{S_X+10}, s{S_X+10}, s{S_OWN}")
        a(f"s_add_u32 s{S_X+11}, s{S_X+11}, s{S_OWN}")
        a(f"v_add_u32 v15, 4096, v{V_LIN}")
        for i in range(8):
            vo = V_LIN if i < 4 else 15
            a(f"buffer_store_dwordx4 {vr(ACC+4*i,4)}, v{vo}, s[{SRD_WS}:{SRD_WS+3}], s{S_X+10} offen offset:{(i&3)*1024} sc1")
        a(f"buffer_store_dwordx2 v[10:11], v14, s[{SRD_WS}:{SRD_WS+3}], s{S_X+11} offen sc1")
        a("s_waitcnt vmcnt(0)")
        a("s_barrier")
        a(f"s_cmp_lg_u32 s{S_W}, 0")
        a("s_cbranch_scc1 L_fin")
        a("v_mov_b32 v19, 1")
        a(f"v_mov_b32 v20, {WS_FLAG}")
        a("s_mov_b64 exec, 1")
        a(f"buffer_store_dword v19, v20, s[{SRD_WS}:{SRD_WS+3}], s{S_OWN} offen sc1")
        a("s_mov_b64 exec, -1")
        a("s_branch L_fin")

        c("---- second arriver: wait for the partner, merge, write the output")
        self.lab("L_second")
        a(f"s_add_u32 s{S_X+10}, s{S_X+10}, s{S_PART}")
        a(f"s_add_u32 s{S_X+11}, s{S_X+11}, s{S_PART}")
        a(f"v_mov_b32 v20, {WS_FLAG}")
        a(f"s_mov_b32 s{S_X+12}, {self.spin_limit}")
        self.lab("L_poll")
        a(f"buffer_load_dword v19, v20, s[{SRD_WS}:{SRD_WS+3}], s{S_PART} offen sc1")
        a("s_waitcnt vmcnt(0)")
        a(f"v_readfirstlane_b32 s{S_X+13}, v19")
        a(f"s_sub_u32 s{S_X+12}, s{S_X+12}, 1")
        a(f"s_cmp_eq_u32 s{S_X+12}, 0")
        a("s_cbranch_scc1 L_got")
        a(f"s_cmp_eq_u32 s{S_X+13}, 1")
        a("s_cbranch_scc1 L_got")
        a("s_sleep 1")
        a("s_branch L_poll")
        self.lab("L_got")
        a(f"v_add_u32 v15, 4096, v{V_LIN}")
        a(f"buffer_load_dwordx2 v[12:13], v14, s[{SRD_WS}:{SRD_WS+3}], s{S_X+11} offen sc1")
        for i in range(8):
            vo = V_LIN if i < 4 else 15
            a(f"buffer_load_dwordx4 {vr(V_VR+4*i,4)}, v{vo}, s[{SRD_WS}:{SRD_WS+3}], s{S_X+10} offen offset:{(i&3)*1024} sc1")
        a("s_waitcnt vmcnt(8)")
        a("v_max_f32 v16, v10, v12")
        a("v_sub_f32 v10, v10, v16")
        a("v_sub_f32 v12, v12, v16")
        a("v_exp_f32 v10, v10")
        a("v_exp_f32 v12, v12")
        a("s_nop 0")
        a("v_mul_f32 v11, v11, v10")
        a("v_fmac_f32 v11, v13, v12")
        a("v_rcp_f32 v11, v11")
        a("s_nop 0")
        a("v_mul_f32 v10, v10, v11")
        a("v_mul_f32 v12, v12, v11")
        for r in range(32):
            a(f"v_mul_f32 v{ACC+r}, v10, v{ACC+r}")
        a("s_waitcnt vmcnt(0)")
        for r in range(32):
            a(f"v_fmac_f32 v{ACC+r}, v12, v{V_VR+r}")
        a(f"s_lshl_b32 s{S_X+10}, s{S_W}, 7")
        for cc in range(4):
            for t in range(4):
                a(f"v_cvt_pk_bf16_f32 v{V_VR+32+4*cc+t}, v{ACC+4*(2*t)+cc}, v{ACC+4*(2*t+1)+cc}")
        for cc in range(4):
            a(f"buffer_store_dwordx4 {vr(V_VR+32+4*cc,4)}, v18, s[{SRD_O}:{SRD_O+3}], s{S_X+10} offen offset:{16*cc}")
        self.lab("L_fin")
        if self.stamps:
            self.stamp(6)
            a("s_waitcnt vmcnt(0) lgkmcnt(0)")
            self.stamp(7)
            a("s_waitcnt lgkmcnt(0)")
            a(f"s_lshl_b32 s{S_X+10}, s2, 2")
            a(f"s_add_u32 s{S_X+10}, s{S_X+10}, s{S_W}")
            a(f"s_lshl_b32 s{S_X+10}, s{S_X+10}, 7")
            a(f"s_add_u32 s{SRD_WS}, s20, {STAMP_BASE}")
            a(f"s_addc_u32 s{SRD_WS+1}, s21, 0")
            a(f"s_mov_b32 s{SRD_WS+2}, 0x100000")
            a(f"s_mov_b32 s{SRD_WS+3}, 0x20000")
            for k in range(16):
                a(f"v_mov_b32 v{32+k}, s{84+k}")
            a(f"s_getreg_b32 s{S_X+11}, hwreg(HW_REG_XCC_ID)")
            a(f"v_mov_b32 v48, s{S_X+11}")
            a(f"v_mov_b32 v49, s{S_X+14}")
            a("v_mov_b32 v20, 0")
            a("s_mov_b64 exec, 1")
            for k in range(4):
                a(f"buffer_store_dwordx4 {vr(32+4*k,4)}, v20, s[{SRD_WS}:{SRD_WS+3}], s{S_X+10} offen offset:{16*k}")
            a(f"buffer_store_dwordx2 v[48:49], v20, s[{SRD_WS}:{SRD_WS+3}], s{S_X+10} offen offset:64")
            a("s_mov_b64 exec, -1")
        self.lab("L_end")
        a("s_endpgm")
        self.L.append(f""".section .rodata,"a"
.p2align 6
.amdhsa_kernel {K}
  .amdhsa_next_free_vgpr 384
  .amdhsa_next_free_sgpr 102
  .amdhsa_accum_offset 256
  .amdhsa_group_segment_fixed_size 0
  .amdhsa_kernarg_size 72
  .amdhsa_user_sgpr_count 2
  .amdhsa_user_sgpr_kernarg_segment_ptr 1
  .amdhsa_system_sgpr_workgroup_id_x 1
  .amdhsa_float_denorm_mode_32 3
.end_amdhsa_kernel""")
        return HEADER + f"; @launch grid=(256,1,1) block=(256,1,1) lds={LDS_BYTES}\n" + "\n".join(self.L) + "\n"

if __name__ == "__main__":
    import argparse
    ap = argparse.ArgumentParser()
    ap.add_argument("-o", default="cdna_kernels/" + NAME + ".s")
    ap.add_argument("-D", type=int, default=5)
    ap.add_argument("--nt", default="nt")
    ap.add_argument("--stamps", action="store_true")
    ap.add_argument("--nocompute", action="store_true")
    ap.add_argument("--norescale", action="store_true")
    ap.add_argument("--pat", default=None)
    args = ap.parse_args()
    g = Gen(D=args.D, nt=args.nt, stamps=args.stamps, nocompute=args.nocompute, norescale=args.norescale,
            pace_pat=[int(x) for x in args.pat.split(',')] if args.pat else None)
    open(args.o, "w").write(g.build())
```

```python
import sys, struct, math

NAME = "standalone__tree_speculative_verify_tree_attention_over_candidate_token_tree__sampling"

HEADER = """; Kernarg layout for this problem (72 bytes, ptrs only, base s[0:1]):
"""

def f32(x):
    return "0x%08x" % struct.unpack("<I", struct.pack("<f", x))[0]

KBLK = 1040
KBUF = 16*KBLK
EREG = 4*KBUF
TREEK = EREG + KBUF
MLREG = EREG + 32768
TICK = MLREG + 2048
LDS_BYTES = 102400

V_LANE, V_LIN, V_VOFF, V_KRD, V_M, V_L, V_ALPHA, V_MNEW = 1, 2, 3, 4, 5, 6, 7, 8
V_T0 = 9
V_P, V_S, V_VP, V_VR, V_O = 24, 32, 48, 64, 128
A_Q, A_K = 0, 64
S_W, S_TMP = 22, 23
SRD_K, SRD_V, SRD_Q, SRD_KT, SRD_VT, SRD_M, SRD_O, SRD_WS = 24, 28, 32, 36, 40, 44, 48, 52
S_T = 56
S_KBUF, S_CNT, S_C, S_PLO, S_PHI, S_OWN, S_PART = 60, 61, 62, 63, 64, 65, 66
S_X = 68
WS_SLOT = 65536
WS_ML = 32768
WS_FLAG = 36864
STAMP_BASE = 0x2000000

def vr(b, n=1):
    return f"v{b}" if n == 1 else f"v[{b}:{b+n-1}]"
def ar(b, n=1):
    return f"a{b}" if n == 1 else f"a[{b}:{b+n-1}]"
def sr(b, n=1):
    return f"s{b}" if n == 1 else f"s[{b}:{b+n-1}]"

class Gen:
    def __init__(self, D=5, nt="nt", stamps=False, spin_limit=1 << 22, nocompute=False, norescale=False, pace_pat=None, pattern='H2', dlate=None, tlate=13, warm=False, early=True, tk=14, diag=None, xlate=False):
        self.D, self.nt, self.stamps, self.spin_limit = D, nt, stamps, spin_limit
        self.nocompute, self.norescale = nocompute, norescale
        self.pace_pat = pace_pat or [D]
        self.D0 = D
        self.npace = 0
        self.dlate, self.tlate = dlate, tlate
        self.warm, self.early, self.tk = warm, early, tk
        self.diag, self.xlate = diag, xlate
        self.Dpace = D
        if dlate is not None:
            self.D = max(D, dlate)
        self.pattern = {'P0': (14, [0, 4096, 8192, 12288], None), 'P1': (13, [0, 4096, 32768, 36864], None), 'P2': (12, [0, 16384, 32768, 49152], None),
                        'H2': (13, [0, 32768, 65536, 98304], 12), 'H4': (12, [0, 32768, 65536, 98304], 14), 'H6': (13, [0, 4096, 32768, 36864], 16)}[pattern]
        self.shared = self.pattern[2] is not None
        self.L = []
        self.nstamp = 0

    def a(self, s):
        for line in s.split("\n"):
            self.L.append("    " + line.strip())
    def lab(self, n):
        self.L.append(n + ":")
    def c(self, s):
        self.L.append("    ; " + s)

    def stamp(self, idx):
        if self.stamps:
            r = 84 + 2*idx
            self.a(f"s_memrealtime s[{r}:{r+1}]")

    def srd(self, q, lo, hi, add, size):
        if add is None:
            self.a(f"s_mov_b32 s{q}, s{lo}\ns_mov_b32 s{q+1}, s{hi}")
        else:
            self.a(f"s_add_u32 s{q}, s{lo}, {add}\ns_addc_u32 s{q+1}, s{hi}, 0")
        self.a(f"s_mov_b32 s{q+2}, {size}\ns_mov_b32 s{q+3}, 0x20000")

    def k_load(self, i):
        imm = (i & 3)*1024
        self.a(f"s_add_u32 m0, s{S_KBUF}, {i*KBLK - imm}")
        self.a("s_nop 0")
        self.a(f"buffer_load_dwordx4 v{V_LIN}, s[{SRD_K}:{SRD_K+3}], s{S_T + (i >> 2)} offen offset:{imm} {self.nt} lds")
    def v_load(self, b):
        imm = (b & 3)*1024
        so = S_T + (b >> 2)
        d = V_VR + 4*b
        self.a(f"buffer_load_dwordx4 {vr(d,4)}, v{V_LIN}, s[{SRD_V}:{SRD_V+3}], s{so} offen offset:{imm} {self.nt}")
    def pace(self):
        d = self.pace_pat[self.npace % len(self.pace_pat)]
        assert d <= self.D
        self.npace += 1
        self.a(f"s_waitcnt vmcnt({d-1})")

    def kfrag_reads(self, lo, hi, vaddr=V_KRD, abase=A_K):
        return [f"ds_read_b128 {ar(abase+4*s,4)}, v{vaddr} offset:{32*s}" for s in range(lo, hi)]
    def qk_mfma(self, lo, hi):
        out = []
        for s in range(lo, hi):
            cin = "0" if s == 0 else vr(V_S, 16)
            out.append(f"v_mfma_f32_32x32x16_bf16 {vr(V_S,16)}, {ar(A_K+4*s,4)}, {ar(A_Q+4*s,4)}, {cin}")
        return out

    def softmax_slices(self, tag):
        S = V_S; t0, t1 = V_T0, V_T0+1
        sl = []
        sl.append(self.kfrag_reads(0, 8))
        sl.append(["s_waitcnt lgkmcnt(0)"] + self.kfrag_reads(8, 16) + self.qk_mfma(0, 4))
        sl.append(self.qk_mfma(4, 8))
        sl.append(["s_waitcnt lgkmcnt(0)"] + self.qk_mfma(8, 12))
        sl.append(self.qk_mfma(12, 16))
        mx = ["s_nop 11",
              f"v_max3_f32 v{t0}, v{S}, v{S+1}, v{S+2}",
              f"v_max3_f32 v{t1}, v{S+3}, v{S+4}, v{S+5}",
              f"v_max3_f32 v{t0}, v{t0}, v{S+6}, v{S+7}",
              f"v_max3_f32 v{t1}, v{t1}, v{S+8}, v{S+9}",
              f"v_max3_f32 v{t0}, v{t0}, v{S+10}, v{S+11}",
              f"v_max3_f32 v{t1}, v{t1}, v{S+12}, v{S+13}",
              f"v_max3_f32 v{t0}, v{t0}, v{S+14}, v{S+15}",
              f"v_max_f32 v{t0}, v{t0}, v{t1}",
              f"v_mov_b32 v{t1}, v{t0}",
              "s_nop 1",
              f"v_permlane32_swap_b32 v{t0}, v{t1}",
              "s_nop 1",
              f"v_max_f32 v{t0}, v{t0}, v{t1}",
              f"v_mul_f32 v{t0}, s{S_C}, v{t0}",
              f"v_max_f32 v{V_MNEW}, v{V_M}, v{t0}",
              f"v_sub_f32 v{t1}, v{V_M}, v{V_MNEW}",
              f"v_exp_f32 v{V_ALPHA}, v{t1}",
              f"v_cmp_gt_f32 vcc, v{V_MNEW}, v{V_M}",
              f"v_mov_b32 v{V_M}, v{V_MNEW}",
              f"v_mul_f32 v{V_L}, v{V_L}, v{V_ALPHA}",
              "s_nop 1"]
        sl.append(mx)
        for part in range(0 if self.norescale else 2):
            lab = f"L_skip_{tag}_{part}"
            blk = [f"s_cbranch_vccz {lab}"]
            blk += [f"v_mul_f32 v{V_O+r}, v{V_ALPHA}, v{V_O+r}" for r in range(64*part, 64*part+64)]
            blk += [lab + ":"]
            sl.append(blk)
        for part in range(2):
            rs = range(8*part, 8*part+8)
            blk = [f"v_fma_f32 v{S+r}, v{S+r}, s{S_C}, -v{V_M}" for r in rs]
            blk += [f"v_exp_f32 v{S+r}, v{S+r}" for r in rs]
            blk += ["s_nop 0"]
            blk += [f"v_cvt_pk_bf16_f32 v{V_P+(r>>1)}, v{S+r}, v{S+r+1}" for r in rs if r % 2 == 0]
            b = 8*part
            blk += [f"v_add_f32 v{t0}, v{S+b}, v{S+b+1}",
                    f"v_add_f32 v{t1}, v{S+b+2}, v{S+b+3}",
                    f"v_add_f32 v{t0}, v{t0}, v{S+b+4}",
                    f"v_add_f32 v{t1}, v{t1}, v{S+b+5}",
                    f"v_add_f32 v{t0}, v{t0}, v{S+b+6}",
                    f"v_add_f32 v{t1}, v{t1}, v{S+b+7}",
                    f"v_add_f32 v{t0}, v{t0}, v{t1}",
                    f"v_add_f32 v{V_L}, v{V_L}, v{t0}"]
            sl.append(blk)
        return sl

    def pv_slices(self):
        out = []
        for s in range(2):
            for c in range(4):
                blo = V_VP + 8*(c & 1)
                bhi = blo + 4
                blk = []
                for t in range(4):
                    r0 = V_VR + 4*(8*s + 2*t) + c
                    r1 = r0 + 4
                    blk.append(f"v_perm_b32 v{blo+t}, v{r1}, v{r0}, s{S_PLO}")
                for t in range(4):
                    r0 = V_VR + 4*(8*s + 2*t) + c
                    r1 = r0 + 4
                    blk.append(f"v_perm_b32 v{bhi+t}, v{r1}, v{r0}, s{S_PHI}")
                blk.append("s_nop 1")
                o0, o1 = V_O + 16*(2*c), V_O + 16*(2*c+1)
                blk.append(f"v_mfma_f32_32x32x16_bf16 {vr(o0,16)}, {vr(blo,4)}, {vr(V_P+4*s,4)}, {vr(o0,16)}")
                blk.append(f"v_mfma_f32_32x32x16_bf16 {vr(o1,16)}, {vr(bhi,4)}, {vr(V_P+4*s,4)}, {vr(o1,16)}")
                out.append((s, blk))
        return out

    def ticket_issue(self, lab):
        a = self.a
        a(f"s_cmp_lg_u32 s{S_CNT}, {self.tk}")
        a(f"s_cbranch_scc1 {lab}")
        a(f"s_cmp_lg_u32 s{S_W}, 0")
        a(f"s_cbranch_scc1 {lab}")
        a(f"s_lshr_b32 s{S_X+10}, s{S_X+2}, 1")
        a(f"s_lshl_b32 s{S_X+10}, s{S_X+10}, 2")
        a(f"s_and_b32 s{S_X+11}, s{S_X+2}, 1")
        a(f"s_lshl_b32 s{S_X+11}, s{S_X+11}, 4")
        a(f"s_lshl_b32 s{S_X+12}, 1, s{S_X+11}")
        a(f"v_mov_b32 v12, s{S_X+10}")
        a(f"v_mov_b32 v13, s{S_X+12}")
        a("s_mov_b64 exec, 1")
        a("global_atomic_add v13, v12, v13, s[18:19] sc0 sc1")
        a("s_mov_b64 exec, -1")
        self.lab(lab)

    def ticket_publish(self, lab):
        a = self.a
        a(f"s_cmp_lg_u32 s{S_CNT}, {self.tk}")
        a(f"s_cbranch_scc1 {lab}")
        a(f"s_cmp_lg_u32 s{S_W}, 0")
        a(f"s_cbranch_scc1 {lab}")
        a(f"s_waitcnt vmcnt({self.D-1})")
        a(f"v_lshrrev_b32 v13, s{S_X+11}, v13")
        a(f"v_and_b32 v13, 0xffff, v13")
        a(f"v_add_u32 v13, 1, v13")
        a(f"v_mov_b32 v12, {TICK}")
        a("s_mov_b64 exec, 1")
        a("ds_write_b32 v12, v13")
        a("s_mov_b64 exec, -1")
        self.lab(lab)

    def emit(self, blk):
        for ln in blk:
            if ln.endswith(":"):
                self.lab(ln[:-1])
            else:
                self.a(ln)

    def schedule(self, tag):
        D = self.D
        B = [[] for _ in range(16)]
        A = [[] for _ in range(16)]
        pos = D - 1
        def put(p, blk):
            (B[p] if p < 16 else A[p-16]).append(blk)
        for blk in self.softmax_slices(tag):
            put(pos, blk); pos += 1
        pos = max(pos, 16)
        for s, blk in self.pv_slices():
            if s == 1:
                pos = max(pos, 16 + D - 1)
            assert pos < 32
            put(pos, blk); pos += 1
        return B, A

    def build(self):
        a, c, D = self.a, self.c, self.D
        K = NAME + "_kernel"
        self.L.append(f".amdgcn_target \"amdgcn-amd-amdhsa--gfx950\"\n.text\n.globl {K}\n.p2align 8\n.type {K},@function\n{K}:")
        a("s_cmp_ge_u32 s2, 256")
        a("s_cbranch_scc1 L_end")
        a("s_load_dwordx16 s[4:19], s[0:1], 0")
        a("s_load_dwordx2 s[20:21], s[0:1], 64")
        self.stamp(0)
        c("lane / wave decomposition")
        a(f"v_lshrrev_b32 v9, 6, v0")
        a(f"v_and_b32 v{V_LANE}, 63, v0")
        a(f"v_readfirstlane_b32 s{S_W}, v9")
        a(f"v_lshlrev_b32 v{V_LIN}, 4, v{V_LANE}")
        a(f"v_and_b32 v10, 31, v{V_LANE}")
        a(f"v_lshrrev_b32 v11, 5, v{V_LANE}")
        c("row rho of a tile is key 2*blk + e, blk = (rho&3) + 4*(rho>>3), e = (rho>>2)&1")
        a(f"v_and_b32 v12, 3, v10")
        a(f"v_lshrrev_b32 v13, 3, v10")
        a(f"v_lshl_add_u32 v12, v13, 2, v12")
        a(f"v_bfe_u32 v13, v10, 2, 1")
        c("q row held by this lane's column")
        a(f"v_lshl_add_u32 v16, v12, 1, v13")
        a(f"v_mul_u32_u24 v12, {KBLK}, v12")
        a(f"v_lshl_add_u32 v12, v13, 9, v12")
        a(f"v_lshl_add_u32 v12, v11, 4, v12")
        a(f"s_mul_i32 s{S_KBUF}, s{S_W}, {KBUF}")
        a(f"v_add_u32 v{V_KRD}, s{S_KBUF}, v12")
        a(f"v_add_u32 v14, {EREG}, v12")
        c("tree-K fragment address: rows with bit 2 set read the second key")
        a(f"v_bfe_u32 v15, v10, 2, 1")
        a(f"v_lshlrev_b32 v15, 9, v15")
        a(f"v_lshl_add_u32 v15, v11, 4, v15")
        a(f"s_lshl_b32 s{S_X}, s{S_W}, 10")
        a(f"s_add_u32 s{S_X+1}, s{S_X}, {TREEK}")
        a(f"v_add_u32 v15, s{S_X+1}, v15")
        c("mask offset: (q&15)*32 + h*2")
        a(f"v_and_b32 v17, 15, v16")
        a(f"v_lshlrev_b32 v17, 5, v17")
        a(f"v_lshl_add_u32 v17, v11, 1, v17")
        c("output offset: q*512 + h*64")
        a(f"v_lshlrev_b32 v18, 9, v16")
        a(f"v_lshl_add_u32 v18, v11, 6, v18")
        c("scalar ids: pair p = wg>>1, half = wg&1, w8 = half*4 + wave")
        a(f"s_lshr_b32 s{S_X+2}, s2, 1")
        a(f"s_and_b32 s{S_X+3}, s2, 1")
        a(f"s_lshl_b32 s{S_X+4}, s{S_X+3}, 2")
        a(f"s_add_u32 s{S_X+4}, s{S_X+4}, s{S_W}")
        a(f"s_lshl_b32 s{S_OWN}, s{S_X+3}, 16")
        a(f"s_xor_b32 s{S_PART}, s{S_OWN}, 0x10000")
        a(f"s_lshl_b32 s{S_X+5}, s{S_X+2}, 14")
        a(f"s_lshl_b32 s{S_X+6}, s{S_X+2}, 13")
        a(f"s_lshr_b32 s{S_X+7}, s{S_X+2}, 3")
        a(f"s_lshl_b32 s{S_X+7}, s{S_X+7}, 9")
        a(f"s_lshl_b32 s{S_X+8}, s{S_X+2}, 17")
        if self.shared:
            a(f"s_lshl_b32 s{S_X+9}, s{S_X+2}, 21")
        else:
            a(f"s_lshl_b32 s{S_X+9}, s2, 20")
        c("offsets of the four 4 KiB runs that make up this wave's tile")
        wsh, offs, hsh = self.pattern
        a(f"s_lshl_b32 s{S_T}, s{S_W}, {wsh}")
        if hsh is not None:
            a(f"s_lshl_b32 s{S_X+10}, s{S_X+3}, {hsh}")
            a(f"s_add_u32 s{S_T}, s{S_T}, s{S_X+10}")
        for k in range(3, 0, -1):
            a(f"s_add_u32 s{S_T+k}, s{S_T}, {offs[k]}")
        a(f"s_mov_b32 s{S_C}, {f32(math.log2(math.e)/16.0)}")
        a(f"s_mov_b32 s{S_PLO}, 0x05040100")
        a(f"s_mov_b32 s{S_PHI}, 0x07060302")
        a(f"s_mov_b32 s{S_CNT}, 0")
        a("s_waitcnt lgkmcnt(0)")
        if self.diag is None:
            self.stamp(6)
        ksz = (2 if self.shared else 1) << 20
        self.srd(SRD_K, 6, 7, f"s{S_X+9}", ksz)
        D0 = max(self.pace_pat)
        nfirst = D0 if self.xlate else 1
        for i in range(nfirst):
            self.k_load(i)
        self.srd(SRD_V, 8, 9, f"s{S_X+9}", ksz)
        if self.warm:
            c("first touch of the V page, so that its translation is ready for phase B(0)")
            a(f"buffer_load_dword v{V_ALPHA}, v{V_LIN}, s[{SRD_V}:{SRD_V+3}], s{S_T} offen {self.nt}")
        self.srd(SRD_Q, 4, 5, f"s{S_X+5}", 16384)
        c("Q: four 1 KiB blocks per wave into the shared staging area")
        a(f"s_lshl_b32 s{S_X+10}, s{S_W}, 12")
        a(f"s_mul_i32 s{S_X+11}, s{S_W}, {4*KBLK}")
        a(f"s_add_u32 s{S_X+11}, s{S_X+11}, {EREG}")
        for jj in range(4):
            a(f"s_add_u32 m0, s{S_X+11}, {jj*KBLK - jj*1024}")
            a("s_nop 0")
            a(f"buffer_load_dwordx4 v{V_LIN}, s[{SRD_Q}:{SRD_Q+3}], s{S_X+10} offen offset:{jj*1024} lds")
        self.srd(SRD_WS, 20, 21, f"s{S_X+8}", 2*WS_SLOT)
        self.srd(SRD_O, 16, 17, f"s{S_X+5}", 16384)
        c("wave 0 clears this workgroup's hand-off flag and the role word")
        a(f"s_cmp_lg_u32 s{S_W}, 0")
        a("s_cbranch_scc1 L_noclear")
        a(f"v_mov_b32 v12, 0")
        a(f"v_mov_b32 v13, {WS_FLAG}")
        a(f"v_mov_b32 v9, {TICK}")
        a("s_mov_b64 exec, 1")
        a(f"buffer_store_dword v12, v13, s[{SRD_WS}:{SRD_WS+3}], s{S_OWN} offen sc1")
        a("ds_write_b32 v9, v12")
        if self.warm:
            a(f"buffer_load_dword v{V_MNEW}, v12, s[{SRD_O}:{SRD_O+3}], 0 offen")
        a("s_mov_b64 exec, -1")
        self.lab("L_noclear")
        c("tree K (two keys) into LDS, tree V into registers, mask element")
        self.srd(SRD_KT, 10, 11, f"s{S_X+6}", 8192)
        self.srd(SRD_VT, 12, 13, f"s{S_X+6}", 8192)
        self.srd(SRD_M, 14, 15, f"s{S_X+7}", 512)
        a(f"s_lshl_b32 s{S_X+12}, s{S_X+4}, 10")
        a(f"s_lshl_b32 s{S_X+13}, s{S_X+4}, 2")
        a(f"s_mov_b32 m0, s{S_X+1}")
        a("s_nop 0")
        a(f"buffer_load_dwordx4 v{V_LIN}, s[{SRD_KT}:{SRD_KT+3}], s{S_X+12} offen lds")
        a(f"buffer_load_dwordx4 v[20:23], v{V_LIN}, s[{SRD_VT}:{SRD_VT+3}], s{S_X+12} offen")
        a(f"buffer_load_ushort v19, v17, s[{SRD_M}:{SRD_M+3}], s{S_X+13} offen")

        c("---- phase A(0): K tile 0, tree tile computed between the loads")
        S = V_S; t0, t1 = V_T0, V_T0+1
        pro = []
        pro.append(["s_waitcnt lgkmcnt(0)", "s_barrier"] + self.kfrag_reads(0, 8, 14, A_Q))
        pro.append(["s_waitcnt lgkmcnt(0)"] + self.kfrag_reads(8, 16, 14, A_Q))
        pro.append(["s_waitcnt lgkmcnt(0)"] + self.kfrag_reads(0, 8, 15, A_K) +
                   ["v_lshlrev_b32 v19, 16, v19",
                    "v_sub_f32 v19, 1.0, v19",
                    f"v_mul_f32 v19, {f32(-1e9*math.log2(math.e))}, v19"])
        pro.append(["s_waitcnt lgkmcnt(0)"] + self.kfrag_reads(8, 16, 15, A_K) + self.qk_mfma(0, 8))
        pro.append(["s_waitcnt lgkmcnt(0)"] + self.qk_mfma(8, 16))
        sm = [f"v_mov_b32 v{V_VP+k}, 0" for k in range(16)]
        sm += [f"v_mov_b32 v{V_P+k}, 0" for k in range(1, 4)]
        sm += ["s_nop 4",
               f"v_fma_f32 v{t0}, v{S}, s{S_C}, v19",
               f"v_mov_b32 v{t1}, v{t0}",
               f"v_mov_b32 v12, v{t0}",
               "s_nop 1",
               f"v_permlane32_swap_b32 v{t0}, v{t1}",
               "s_nop 1",
               f"v_max_f32 v{V_M}, v{t0}, v{t1}",
               f"v_sub_f32 v12, v12, v{V_M}",
               f"v_exp_f32 v{V_L}, v12",
               "s_nop 0",
               f"v_cvt_pk_bf16_f32 v{V_P}, v{V_L}, 0"]
        pro.append(sm)
        for half in range(2):
            blk = []
            for ii in range(4):
                i = 4*half + ii
                buf = V_VP + 4*ii
                src = 20 + (i >> 1)
                if i & 1:
                    blk.append(f"v_lshrrev_b32 v{buf}, 16, v{src}")
                else:
                    blk.append(f"v_and_b32 v{buf}, 0xffff, v{src}")
            blk.append("s_nop 1")
            for ii in range(4):
                i = 4*half + ii
                buf = V_VP + 4*ii
                blk.append(f"v_mfma_f32_32x32x16_bf16 {vr(V_O+16*i,16)}, {vr(buf,4)}, {vr(V_P,4)}, 0")
            pro.append(blk)
        nx = 7 + (1 if self.warm else 0)
        first_slice = 2*D0 if self.xlate else D0
        slots = {}
        pos = first_slice
        for blk in pro:
            slots.setdefault(min(pos, 15), []).append(blk)
            pos += 1
        for i in range(nfirst, 16):
            if i >= D0:
                if self.xlate and i < 2*D0:
                    a(f"s_waitcnt vmcnt({D0 - 1 + nx})")
                else:
                    self.pace()
            elif self.diag == 'k0' and i == D0 - 1:
                pass
            self.k_load(i)
            if self.diag == 'k0' and i == D0 - 1:
                a(f"s_waitcnt vmcnt({D0 - 1 + nx})")
                self.stamp(6)
            for blk in slots.get(i, []):
                self.emit(blk)

        self.stamp(1)
        c("---- main loop: phase B(t) = V loads + QK/softmax, phase A(t+1) = K loads + PV")
        step = 131072 if self.shared else 65536
        def loop(tag, pat, exit_cnt, exit_lab):
            B, A = self.schedule(tag)
            self.pace_pat = pat
            self.npace = 0
            self.L.append(".p2align 6")
            self.lab(f"L_{tag}")
            if self.early:
                self.ticket_issue(f"L_tk_{tag}")
            for b in range(16):
                self.pace()
                self.v_load(b)
                for blk in B[b]:
                    if not self.nocompute:
                        self.emit(blk)
            if self.early:
                self.ticket_publish(f"L_tp_{tag}")
            a(f"s_cmp_eq_u32 s{S_CNT}, 15")
            a("s_cbranch_scc1 L_tail")
            for k in range(4):
                a(f"s_add_u32 s{S_T+k}, s{S_T+k}, {step}")
            a(f"s_add_u32 s{S_CNT}, s{S_CNT}, 1")
            for i in range(16):
                self.pace()
                self.k_load(i)
                for blk in A[i]:
                    if not self.nocompute:
                        self.emit(blk)
            if exit_cnt is not None:
                a(f"s_cmp_eq_u32 s{S_CNT}, {exit_cnt}")
                a(f"s_cbranch_scc1 {exit_lab}")
            a(f"s_branch L_{tag}")
        base_pat = list(self.pace_pat)
        if self.dlate is None:
            loop("loop", base_pat, None, None)
        else:
            loop("loop", base_pat, self.tlate, "L_late")
            loop("late", [self.dlate], None, None)

        c("---- tail: role, partner flag, last PV")
        S_PREF, S_ROLE0, S_ROLE = S_TMP, 67, S_X+14
        WS = f"s[{SRD_WS}:{SRD_WS+3}]"
        self.lab("L_tail")
        self.stamp(2)
        a(f"v_mov_b32 v12, {TICK}")
        a("ds_read_b32 v11, v12")
        a(f"v_lshlrev_b32 v14, 3, v{V_LANE}")
        a(f"v_add_u32 v21, 4096, v{V_LIN}")
        a(f"v_mov_b32 v20, {WS_FLAG}")
        a("s_waitcnt lgkmcnt(0)")
        a(f"v_readfirstlane_b32 s{S_ROLE0}, v11")
        a(f"buffer_load_dword v19, v20, {WS}, s{S_PART} offen sc1")
        B2, A2 = self.schedule("tail")
        flat = [blk for slot in A2 for blk in slot]
        npv = 8
        rest = flat[:len(flat)-npv]
        pvs = flat[len(flat)-npv:]
        for blk in rest:
            self.emit(blk)
        for k, blk in enumerate(pvs):
            if k == 0:
                a("s_waitcnt vmcnt(9)")
            if k == 4:
                a("s_waitcnt vmcnt(1)")
            self.emit(blk)
        self.stamp(3)
        def partner_loads():
            a(f"s_lshl_b32 s{S_X+12}, s{S_W}, 13")
            a(f"s_add_u32 s{S_X+12}, s{S_X+12}, s{S_PART}")
            a(f"s_lshl_b32 s{S_X+13}, s{S_W}, 9")
            a(f"s_add_u32 s{S_X+13}, s{S_X+13}, s{S_PART}")
            a(f"s_add_u32 s{S_X+13}, s{S_X+13}, {WS_ML}")
            a(f"buffer_load_dwordx2 v[16:17], v14, {WS}, s{S_X+13} offen sc1")
            for i in range(8):
                vo = V_LIN if i < 4 else 21
                a(f"buffer_load_dwordx4 {vr(V_VR+4*i,4)}, v{vo}, {WS}, s{S_X+12} offen offset:{(i&3)*1024} sc1")
        c("second arriver whose partner has already published: fetch its partial now")
        a("s_waitcnt vmcnt(0)")
        a(f"v_readfirstlane_b32 s{S_X+12}, v19")
        a(f"s_mov_b32 s{S_PREF}, 0")
        a(f"s_cmp_lg_u32 s{S_ROLE0}, 2")
        a("s_cbranch_scc1 L_nopref")
        a(f"s_cmp_lg_u32 s{S_X+12}, 1")
        a("s_cbranch_scc1 L_nopref")
        a(f"s_mov_b32 s{S_PREF}, 1")
        partner_loads()
        self.lab("L_nopref")

        c("---- workgroup combine through LDS")
        t0, t1 = V_T0, V_T0+1
        a(f"v_mov_b32 v10, v{V_M}")
        a(f"v_mov_b32 v12, v{V_L}")
        a(f"v_mov_b32 v11, v{V_L}")
        a("s_nop 1")
        a("v_permlane32_swap_b32 v11, v12")
        a("s_nop 1")
        a("v_add_f32 v11, v11, v12")
        a(f"s_lshl_b32 s{S_X+10}, s{S_W}, 9")
        a(f"s_add_u32 s{S_X+10}, s{S_X+10}, {MLREG}")
        a(f"v_add_u32 v15, s{S_X+10}, v14")
        a("ds_write_b64 v15, v[10:11]")
        a("s_nop 7")
        for k in range(4):
            c(f"part {k}: registers 4k..4k+3 of every accumulator tile go to wave {k}")
            a(f"s_cmp_eq_u32 s{S_W}, {k}")
            a(f"s_cbranch_scc1 L_nopart{k}")
            a(f"s_sub_u32 s{S_X+10}, {k+3}, s{S_W}")
            a(f"s_and_b32 s{S_X+10}, s{S_X+10}, 3")
            a(f"s_lshl_b32 s{S_X+11}, s{S_X+10}, 13")
            a(f"s_add_u32 s{S_X+11}, s{S_X+11}, s{S_KBUF}")
            a(f"s_lshl_b32 s{S_X+12}, s{S_W}, 13")
            a(f"s_add_u32 s{S_X+12}, s{S_X+12}, {EREG}")
            a(f"s_cmp_eq_u32 s{S_X+10}, 2")
            a(f"s_cselect_b32 s{S_X+11}, s{S_X+12}, s{S_X+11}")
            a(f"v_add_u32 v15, s{S_X+11}, v{V_LIN}")
            for i in range(8):
                r = V_O + 16*i + 4*k
                a(f"ds_write_b128 v15, {vr(r,4)} offset:{i*1024}")
            self.lab(f"L_nopart{k}")
        a("s_waitcnt lgkmcnt(0)")
        a("s_barrier")
        self.stamp(4)
        c("(m, l) of the four waves in rotated order: k -> wave (w - k) & 3")
        for k in range(4):
            a(f"s_sub_u32 s{S_X+10}, s{S_W}, {k}")
            a(f"s_and_b32 s{S_X+10}, s{S_X+10}, 3")
            a(f"s_lshl_b32 s{S_X+10}, s{S_X+10}, 9")
            a(f"s_add_u32 s{S_X+10}, s{S_X+10}, {MLREG}")
            a(f"v_add_u32 v15, s{S_X+10}, v14")
            a(f"ds_read_b64 v[{24+2*k}:{25+2*k}], v15")
        a(f"v_mov_b32 v12, {TICK}")
        a("ds_read_b32 v13, v12")
        def part_addr(k):
            a(f"s_sub_u32 s{S_X+10}, s{S_W}, {k}")
            a(f"s_and_b32 s{S_X+10}, s{S_X+10}, 3")
            if k < 3:
                a(f"s_mul_i32 s{S_X+11}, s{S_X+10}, {KBUF}")
                a(f"s_add_u32 s{S_X+11}, s{S_X+11}, {(k-1)*8192}")
            else:
                a(f"s_lshl_b32 s{S_X+11}, s{S_X+10}, 13")
                a(f"s_add_u32 s{S_X+11}, s{S_X+11}, {EREG}")
            a(f"v_add_u32 v15, s{S_X+11}, v{V_LIN}")
        R1, R2, R3 = V_VR+32, V_O, V_O+32
        part_addr(1)
        for i in range(8):
            a(f"ds_read_b128 {vr(R1+4*i,4)}, v15 offset:{i*1024}")
        a("s_waitcnt lgkmcnt(8)")
        a("v_max3_f32 v10, v24, v26, v28")
        a("v_max_f32 v10, v10, v30")
        for k in range(4):
            a(f"v_sub_f32 v{24+2*k}, v{24+2*k}, v10")
        for k in range(4):
            a(f"v_exp_f32 v{24+2*k}, v{24+2*k}")
        a(f"v_readfirstlane_b32 s{S_ROLE}, v13")
        a("v_mul_f32 v11, v24, v25")
        for k in range(1, 4):
            a(f"v_fmac_f32 v11, v{24+2*k}, v{25+2*k}")
        ACC = V_S
        c("own part, selected by wave id")
        for k in range(4):
            if k < 3:
                a(f"s_cmp_lg_u32 s{S_W}, {k}")
                a(f"s_cbranch_scc1 L_own{k+1}")
            for i in range(8):
                for cc in range(4):
                    a(f"v_mul_f32 v{ACC+4*i+cc}, v24, v{V_O+16*i+4*k+cc}")
            if k < 3:
                a("s_branch L_owndone")
                self.lab(f"L_own{k+1}")
        self.lab("L_owndone")
        part_addr(2)
        for i in range(8):
            a(f"ds_read_b128 {vr(R2+4*i,4)}, v15 offset:{i*1024}")
        a("s_waitcnt lgkmcnt(8)")
        for r in range(32):
            a(f"v_fmac_f32 v{ACC+r}, v26, v{R1+r}")
        part_addr(3)
        for i in range(8):
            a(f"ds_read_b128 {vr(R3+4*i,4)}, v15 offset:{i*1024}")
        a("s_waitcnt lgkmcnt(8)")
        for r in range(32):
            a(f"v_fmac_f32 v{ACC+r}, v28, v{R2+r}")
        a("s_waitcnt lgkmcnt(0)")
        for r in range(32):
            a(f"v_fmac_f32 v{ACC+r}, v30, v{R3+r}")
        self.stamp(5)
        c("v10 = M, v11 = L, acc = v32..v63")
        a(f"s_cmp_lg_u32 s{S_ROLE}, 1")
        a("s_cbranch_scc1 L_second")

        c("---- first arriver: publish the partial result")
        a(f"s_lshl_b32 s{S_X+10}, s{S_W}, 13")
        a(f"s_add_u32 s{S_X+10}, s{S_X+10}, s{S_OWN}")
        a(f"s_lshl_b32 s{S_X+11}, s{S_W}, 9")
        a(f"s_add_u32 s{S_X+11}, s{S_X+11}, s{S_OWN}")
        a(f"s_add_u32 s{S_X+11}, s{S_X+11}, {WS_ML}")
        for i in range(8):
            vo = V_LIN if i < 4 else 21
            a(f"buffer_store_dwordx4 {vr(ACC+4*i,4)}, v{vo}, {WS}, s{S_X+10} offen offset:{(i&3)*1024} sc1")
        a(f"buffer_store_dwordx2 v[10:11], v14, {WS}, s{S_X+11} offen sc1")
        a("s_waitcnt vmcnt(0)")
        a("s_barrier")
        a(f"s_cmp_lg_u32 s{S_W}, 0")
        a("s_cbranch_scc1 L_fin")
        a("v_mov_b32 v19, 1")
        a("s_mov_b64 exec, 1")
        a(f"buffer_store_dword v19, v20, {WS}, s{S_OWN} offen sc1")
        a("s_mov_b64 exec, -1")
        a("s_branch L_fin")

        c("---- second arriver: wait for the partner, merge, write the output")
        self.lab("L_second")
        a(f"s_cmp_eq_u32 s{S_PREF}, 1")
        a("s_cbranch_scc1 L_have")
        a(f"s_mov_b32 s{S_X+12}, {self.spin_limit}")
        self.lab("L_poll")
        a(f"buffer_load_dword v19, v20, {WS}, s{S_PART} offen sc1")
        a("s_waitcnt vmcnt(0)")
        a(f"v_readfirstlane_b32 s{S_X+13}, v19")
        a(f"s_sub_u32 s{S_X+12}, s{S_X+12}, 1")
        a(f"s_cmp_eq_u32 s{S_X+12}, 0")
        a("s_cbranch_scc1 L_got")
        a(f"s_cmp_eq_u32 s{S_X+13}, 1")
        a("s_cbranch_scc1 L_got")
        a("s_sleep 1")
        a("s_branch L_poll")
        self.lab("L_got")
        partner_loads()
        self.lab("L_have")
        a("s_waitcnt vmcnt(0)")
        a("v_max_f32 v12, v10, v16")
        a("v_sub_f32 v10, v10, v12")
        a("v_sub_f32 v16, v16, v12")
        a("v_exp_f32 v10, v10")
        a("v_exp_f32 v16, v16")
        a("s_nop 0")
        a("v_mul_f32 v11, v11, v10")
        a("v_fmac_f32 v11, v17, v16")
        a("v_rcp_f32 v11, v11")
        a("s_nop 0")
        a("v_mul_f32 v10, v10, v11")
        a("v_mul_f32 v16, v16, v11")
        a(f"s_lshl_b32 s{S_X+10}, s{S_W}, 7")
        for cc in range(4):
            for i in range(8):
                r = 4*i + cc
                a(f"v_mul_f32 v{ACC+r}, v10, v{ACC+r}")
            for i in range(8):
                r = 4*i + cc
                a(f"v_fmac_f32 v{ACC+r}, v16, v{V_VR+r}")
            for t in range(4):
                a(f"v_cvt_pk_bf16_f32 v{V_VR+32+4*cc+t}, v{ACC+4*(2*t)+cc}, v{ACC+4*(2*t+1)+cc}")
            a(f"buffer_store_dwordx4 {vr(V_VR+32+4*cc,4)}, v18, s[{SRD_O}:{SRD_O+3}], s{S_X+10} offen offset:{16*cc}")
        self.lab("L_fin")
        if self.stamps:
            a("s_waitcnt vmcnt(0) lgkmcnt(0)")
            self.stamp(7)
            a("s_waitcnt lgkmcnt(0)")
            a(f"s_lshl_b32 s{S_X+10}, s2, 2")
            a(f"s_add_u32 s{S_X+10}, s{S_X+10}, s{S_W}")
            a(f"s_lshl_b32 s{S_X+10}, s{S_X+10}, 7")
            a(f"s_add_u32 s{SRD_WS}, s20, {STAMP_BASE}")
            a(f"s_addc_u32 s{SRD_WS+1}, s21, 0")
            a(f"s_mov_b32 s{SRD_WS+2}, 0x100000")
            a(f"s_mov_b32 s{SRD_WS+3}, 0x20000")
            for k in range(16):
                a(f"v_mov_b32 v{32+k}, s{84+k}")
            a(f"s_getreg_b32 s{S_X+11}, hwreg(HW_REG_XCC_ID)")
            a(f"v_mov_b32 v48, s{S_X+11}")
            a(f"s_sub_u32 s{S_X+14}, s{S_X+14}, 1")
            a(f"s_lshl_b32 s{S_X+12}, s{S_TMP}, 1")
            a(f"s_add_u32 s{S_X+14}, s{S_X+14}, s{S_X+12}")
            a(f"v_mov_b32 v49, s{S_X+14}")
            a(f"s_getreg_b32 s{S_X+11}, hwreg(HW_REG_HW_ID)")
            a(f"v_mov_b32 v50, s{S_X+11}")
            a(f"v_mov_b32 v51, 0")
            a("v_mov_b32 v20, 0")
            a("s_mov_b64 exec, 1")
            for k in range(4):
                a(f"buffer_store_dwordx4 {vr(32+4*k,4)}, v20, s[{SRD_WS}:{SRD_WS+3}], s{S_X+10} offen offset:{16*k}")
            a(f"buffer_store_dwordx4 v[48:51], v20, s[{SRD_WS}:{SRD_WS+3}], s{S_X+10} offen offset:64")
            a("s_mov_b64 exec, -1")
        self.lab("L_end")
        a("s_endpgm")
        self.L.append(f""".section .rodata,"a"
.p2align 6
.amdhsa_kernel {K}
  .amdhsa_next_free_vgpr 384
  .amdhsa_next_free_sgpr 102
  .amdhsa_accum_offset 256
  .amdhsa_group_segment_fixed_size 0
  .amdhsa_kernarg_size 72
  .amdhsa_user_sgpr_count 2
  .amdhsa_user_sgpr_kernarg_segment_ptr 1
  .amdhsa_system_sgpr_workgroup_id_x 1
  .amdhsa_float_denorm_mode_32 3
.end_amdhsa_kernel""")
        return HEADER + f"; @launch grid=(256,1,1) block=(256,1,1) lds={LDS_BYTES}\n" + "\n".join(self.L) + "\n"

if __name__ == "__main__":
    import argparse
    ap = argparse.ArgumentParser()
    ap.add_argument("-o", default="cdna_kernels/" + NAME + ".s")
    ap.add_argument("-D", type=int, default=5)
    ap.add_argument("--nt", default="nt")
    ap.add_argument("--stamps", action="store_true")
    ap.add_argument("--nocompute", action="store_true")
    ap.add_argument("--norescale", action="store_true")
    ap.add_argument("--pat", default=None)
    ap.add_argument("--pattern", default="H2")
    ap.add_argument("--dlate", type=int, default=None)
    ap.add_argument("--tlate", type=int, default=13)
    ap.add_argument("--warm", action="store_true")
    ap.add_argument("--diag", default=None)
    ap.add_argument("--xlate", action="store_true")
    ap.add_argument("--noearly", action="store_true")
    ap.add_argument("--tk", type=int, default=14)
    args = ap.parse_args()
    g = Gen(D=args.D, nt=args.nt, stamps=args.stamps, nocompute=args.nocompute, norescale=args.norescale,
            pace_pat=[int(x) for x in args.pat.split(',')] if args.pat else None, pattern=args.pattern, dlate=args.dlate, tlate=args.tlate,
            warm=args.warm, early=not args.noearly, tk=args.tk, diag=args.diag, xlate=args.xlate)
    open(args.o, "w").write(g.build())
```

```python
import sys, struct, math

NAME = "standalone__tree_speculative_verify_tree_attention_over_candidate_token_tree__sampling"

HEADER = """; Kernarg layout for this problem (72 bytes, ptrs only, base s[0:1]):
"""

def f32(x):
    return "0x%08x" % struct.unpack("<I", struct.pack("<f", x))[0]

KBLK = 1040
KBUF = 16*KBLK
EREG = 4*KBUF
TREEK = EREG + KBUF
MLREG = EREG + 32768
TICK = MLREG + 2048
LDS_BYTES = 102400

V_LANE, V_LIN, V_VOFF, V_KRD, V_M, V_L, V_ALPHA, V_MNEW = 1, 2, 3, 4, 5, 6, 7, 8
V_T0 = 9
V_P, V_S, V_VP, V_VR, V_O = 24, 32, 48, 64, 128
A_Q, A_K = 0, 64
S_W, S_TMP = 22, 23
SRD_K, SRD_V, SRD_Q, SRD_KT, SRD_VT, SRD_M, SRD_O, SRD_WS = 24, 28, 32, 36, 40, 44, 48, 52
S_T = 56
S_KBUF, S_CNT, S_C, S_PLO, S_PHI, S_OWN, S_PART = 60, 61, 62, 63, 64, 65, 66
S_X = 68
S_HW = 83
S_XS = 3
WS_SLOT = 65536
WS_ML = 32768
WS_FLAG = 36864
STAMP_BASE = 0x2000000

def vr(b, n=1):
    return f"v{b}" if n == 1 else f"v[{b}:{b+n-1}]"
def ar(b, n=1):
    return f"a{b}" if n == 1 else f"a[{b}:{b+n-1}]"
def sr(b, n=1):
    return f"s{b}" if n == 1 else f"s[{b}:{b+n-1}]"

class Gen:
    def __init__(self, D=5, nt="nt", stamps=False, spin_limit=1 << 22, nocompute=False, norescale=False, pace_pat=None, pattern='H2', dlate=None, tlate=13, warm=False, early=True, tk=14, diag=None, xlate=False, trot=0, trotx=0, xorp=0, bits=None, same=False, xs=0, dA=None, dB=None, tsw=9, oflag='', dodd=None):
        self.D, self.nt, self.stamps, self.spin_limit = D, nt, stamps, spin_limit
        self.nocompute, self.norescale = nocompute, norescale
        self.pace_pat = pace_pat or [D]
        self.D0 = D
        self.npace = 0
        self.dlate, self.tlate = dlate, tlate
        self.warm, self.early, self.tk = warm, early, tk
        self.diag, self.xlate = diag, xlate
        self.trot, self.trotx, self.xorp = trot, trotx, xorp
        self.bits = {o: 12 + i for i, o in enumerate(bits.split())} if bits else None
        self.same, self.xs = same, xs
        self.dA, self.dB, self.tsw = dA, dB, tsw
        self.oflag = oflag
        self.dodd = dodd
        if dodd is not None:
            self.D = max(self.D, dodd)
        if dA is not None:
            self.D = max(self.D, dA, dB)
        if bits:
            assert sorted(self.bits) == sorted('h w0 w1 j2 j3 t0 t1 t2 t3'.split())
        self.Dpace = D
        if dlate is not None:
            self.D = max(D, dlate)
        self.pattern = {'P0': (14, [0, 4096, 8192, 12288], None), 'P1': (13, [0, 4096, 32768, 36864], None), 'P2': (12, [0, 16384, 32768, 49152], None),
                        'H2': (13, [0, 32768, 65536, 98304], 12), 'H4': (12, [0, 32768, 65536, 98304], 14), 'H6': (13, [0, 4096, 32768, 36864], 16)}[pattern]
        self.shared = self.pattern[2] is not None or self.bits is not None
        self.L = []
        self.nstamp = 0

    def a(self, s):
        for line in s.split("\n"):
            self.L.append("    " + line.strip())
    def lab(self, n):
        self.L.append(n + ":")
    def c(self, s):
        self.L.append("    ; " + s)

    def stamp(self, idx):
        if self.stamps:
            r = 84 + 2*idx
            self.a(f"s_memrealtime s[{r}:{r+1}]")

    def srd(self, q, lo, hi, add, size):
        if add is None:
            self.a(f"s_mov_b32 s{q}, s{lo}\ns_mov_b32 s{q+1}, s{hi}")
        else:
            self.a(f"s_add_u32 s{q}, s{lo}, {add}\ns_addc_u32 s{q+1}, s{hi}, 0")
        self.a(f"s_mov_b32 s{q+2}, {size}\ns_mov_b32 s{q+3}, 0x20000")

    def k_load(self, i):
        imm = (i & 3)*1024
        self.a(f"s_add_u32 m0, s{S_KBUF}, {i*KBLK - imm}")
        self.a("s_nop 0")
        self.a(f"buffer_load_dwordx4 v{V_LIN}, s[{SRD_K}:{SRD_K+3}], s{S_T + (i >> 2)} offen offset:{imm} {self.nt} lds")
    def v_load(self, b):
        imm = (b & 3)*1024
        so = S_T + (b >> 2)
        d = V_VR + 4*b
        self.a(f"buffer_load_dwordx4 {vr(d,4)}, v{V_LIN}, s[{SRD_V}:{SRD_V+3}], s{so} offen offset:{imm} {self.nt}")
    def pace(self):
        d = self.pace_pat[self.npace % len(self.pace_pat)]
        assert d <= self.D
        self.npace += 1
        self.a(f"s_waitcnt vmcnt({d-1})")

    def kfrag_reads(self, lo, hi, vaddr=V_KRD, abase=A_K):
        return [f"ds_read_b128 {ar(abase+4*s,4)}, v{vaddr} offset:{32*s}" for s in range(lo, hi)]
    def qk_mfma(self, lo, hi):
        out = []
        for s in range(lo, hi):
            cin = "0" if s == 0 else vr(V_S, 16)
            out.append(f"v_mfma_f32_32x32x16_bf16 {vr(V_S,16)}, {ar(A_K+4*s,4)}, {ar(A_Q+4*s,4)}, {cin}")
        return out

    def softmax_slices(self, tag):
        S = V_S; t0, t1 = V_T0, V_T0+1
        sl = []
        sl.append(self.kfrag_reads(0, 8))
        sl.append(["s_waitcnt lgkmcnt(0)"] + self.kfrag_reads(8, 16) + self.qk_mfma(0, 4))
        sl.append(self.qk_mfma(4, 8))
        sl.append(["s_waitcnt lgkmcnt(0)"] + self.qk_mfma(8, 12))
        sl.append(self.qk_mfma(12, 16))
        mx = ["s_nop 11",
              f"v_max3_f32 v{t0}, v{S}, v{S+1}, v{S+2}",
              f"v_max3_f32 v{t1}, v{S+3}, v{S+4}, v{S+5}",
              f"v_max3_f32 v{t0}, v{t0}, v{S+6}, v{S+7}",
              f"v_max3_f32 v{t1}, v{t1}, v{S+8}, v{S+9}",
              f"v_max3_f32 v{t0}, v{t0}, v{S+10}, v{S+11}",
              f"v_max3_f32 v{t1}, v{t1}, v{S+12}, v{S+13}",
              f"v_max3_f32 v{t0}, v{t0}, v{S+14}, v{S+15}",
              f"v_max_f32 v{t0}, v{t0}, v{t1}",
              f"v_mov_b32 v{t1}, v{t0}",
              "s_nop 1",
              f"v_permlane32_swap_b32 v{t0}, v{t1}",
              "s_nop 1",
              f"v_max_f32 v{t0}, v{t0}, v{t1}",
              f"v_mul_f32 v{t0}, s{S_C}, v{t0}",
              f"v_max_f32 v{V_MNEW}, v{V_M}, v{t0}",
              f"v_sub_f32 v{t1}, v{V_M}, v{V_MNEW}",
              f"v_exp_f32 v{V_ALPHA}, v{t1}",
              f"v_cmp_gt_f32 vcc, v{V_MNEW}, v{V_M}",
              f"v_mov_b32 v{V_M}, v{V_MNEW}",
              f"v_mul_f32 v{V_L}, v{V_L}, v{V_ALPHA}",
              "s_nop 1"]
        sl.append(mx)
        for part in range(0 if self.norescale else 2):
            lab = f"L_skip_{tag}_{part}"
            blk = [f"s_cbranch_vccz {lab}"]
            blk += [f"v_mul_f32 v{V_O+r}, v{V_ALPHA}, v{V_O+r}" for r in range(64*part, 64*part+64)]
            blk += [lab + ":"]
            sl.append(blk)
        for part in range(2):
            rs = range(8*part, 8*part+8)
            blk = [f"v_fma_f32 v{S+r}, v{S+r}, s{S_C}, -v{V_M}" for r in rs]
            blk += [f"v_exp_f32 v{S+r}, v{S+r}" for r in rs]
            blk += ["s_nop 0"]
            blk += [f"v_cvt_pk_bf16_f32 v{V_P+(r>>1)}, v{S+r}, v{S+r+1}" for r in rs if r % 2 == 0]
            b = 8*part
            blk += [f"v_add_f32 v{t0}, v{S+b}, v{S+b+1}",
                    f"v_add_f32 v{t1}, v{S+b+2}, v{S+b+3}",
                    f"v_add_f32 v{t0}, v{t0}, v{S+b+4}",
                    f"v_add_f32 v{t1}, v{t1}, v{S+b+5}",
                    f"v_add_f32 v{t0}, v{t0}, v{S+b+6}",
                    f"v_add_f32 v{t1}, v{t1}, v{S+b+7}",
                    f"v_add_f32 v{t0}, v{t0}, v{t1}",
                    f"v_add_f32 v{V_L}, v{V_L}, v{t0}"]
            sl.append(blk)
        return sl

    def pv_slices(self):
        out = []
        for s in range(2):
            for c in range(4):
                blo = V_VP + 8*(c & 1)
                bhi = blo + 4
                blk = []
                for t in range(4):
                    r0 = V_VR + 4*(8*s + 2*t) + c
                    r1 = r0 + 4
                    blk.append(f"v_perm_b32 v{blo+t}, v{r1}, v{r0}, s{S_PLO}")
                for t in range(4):
                    r0 = V_VR + 4*(8*s + 2*t) + c
                    r1 = r0 + 4
                    blk.append(f"v_perm_b32 v{bhi+t}, v{r1}, v{r0}, s{S_PHI}")
                blk.append("s_nop 1")
                o0, o1 = V_O + 16*(2*c), V_O + 16*(2*c+1)
                blk.append(f"v_mfma_f32_32x32x16_bf16 {vr(o0,16)}, {vr(blo,4)}, {vr(V_P+4*s,4)}, {vr(o0,16)}")
                blk.append(f"v_mfma_f32_32x32x16_bf16 {vr(o1,16)}, {vr(bhi,4)}, {vr(V_P+4*s,4)}, {vr(o1,16)}")
                out.append((s, blk))
        return out

    def ticket_issue(self, lab):
        a = self.a
        a(f"s_cmp_lg_u32 s{S_CNT}, {self.tk}")
        a(f"s_cbranch_scc1 {lab}")
        a(f"s_cmp_lg_u32 s{S_W}, 0")
        a(f"s_cbranch_scc1 {lab}")
        a(f"s_lshr_b32 s{S_X+10}, s{S_X+2}, 1")
        a(f"s_lshl_b32 s{S_X+10}, s{S_X+10}, 2")
        a(f"s_and_b32 s{S_X+11}, s{S_X+2}, 1")
        a(f"s_lshl_b32 s{S_X+11}, s{S_X+11}, 4")
        a(f"s_lshl_b32 s{S_X+12}, 1, s{S_X+11}")
        a(f"v_mov_b32 v12, s{S_X+10}")
        a(f"v_mov_b32 v13, s{S_X+12}")
        a("s_mov_b64 exec, 1")
        a("global_atomic_add v13, v12, v13, s[18:19] sc0 sc1")
        a("s_mov_b64 exec, -1")
        self.lab(lab)

    def ticket_publish(self, lab):
        a = self.a
        a(f"s_cmp_lg_u32 s{S_CNT}, {self.tk}")
        a(f"s_cbranch_scc1 {lab}")
        a(f"s_cmp_lg_u32 s{S_W}, 0")
        a(f"s_cbranch_scc1 {lab}")
        a(f"s_waitcnt vmcnt({self.D-1})")
        a(f"v_lshrrev_b32 v13, s{S_X+11}, v13")
        a(f"v_and_b32 v13, 0xffff, v13")
        a(f"v_add_u32 v13, 1, v13")
        a(f"v_mov_b32 v12, {TICK}")
        a("s_mov_b64 exec, 1")
        a("ds_write_b32 v12, v13")
        a("s_mov_b64 exec, -1")
        self.lab(lab)

    def koff(self, k):
        return ((k & 1) << self.bits['j2']) + ((k >> 1) << self.bits['j3'])

    def tile_offsets(self):
        a, P = self.a, self.bits
        groups = []
        k = 0
        while k < 4:
            n = 1
            while k + n < 4 and P[f"t{k+n}"] == P[f"t{k}"] + n:
                n += 1
            groups.append((k, n, P[f"t{k}"]))
            k += n
        a(f"s_mov_b32 s{S_T}, s{S_HW}")
        for k, n, pos in groups:
            a(f"s_bfe_u32 s{S_X+10}, s{S_CNT}, {hex((n << 16) | k)}")
            a(f"s_lshl_b32 s{S_X+10}, s{S_X+10}, {pos}")
            a(f"s_add_u32 s{S_T}, s{S_T}, s{S_X+10}")
        for k in range(1, 4):
            a(f"s_add_u32 s{S_T+k}, s{S_T}, {self.koff(k)}")
        if self.xs:
            for k in range(4):
                a(f"s_xor_b32 s{S_T+k}, s{S_T+k}, s{S_XS}")

    def emit(self, blk):
        for ln in blk:
            if ln.endswith(":"):
                self.lab(ln[:-1])
            else:
                self.a(ln)

    def schedule(self, tag):
        D = self.D
        B = [[] for _ in range(16)]
        A = [[] for _ in range(16)]
        pos = D - 1
        def put(p, blk):
            (B[p] if p < 16 else A[p-16]).append(blk)
        for blk in self.softmax_slices(tag):
            put(pos, blk); pos += 1
        pos = max(pos, 16)
        for s, blk in self.pv_slices():
            if s == 1:
                pos = max(pos, 16 + D - 1)
            assert pos < 32
            put(pos, blk); pos += 1
        return B, A

    def build(self):
        a, c, D = self.a, self.c, self.D
        K = NAME + "_kernel"
        self.L.append(f".amdgcn_target \"amdgcn-amd-amdhsa--gfx950\"\n.text\n.globl {K}\n.p2align 8\n.type {K},@function\n{K}:")
        a("s_cmp_ge_u32 s2, 256")
        a("s_cbranch_scc1 L_end")
        a("s_load_dwordx16 s[4:19], s[0:1], 0")
        a("s_load_dwordx2 s[20:21], s[0:1], 64")
        self.stamp(0)
        c("lane / wave decomposition")
        a(f"v_lshrrev_b32 v9, 6, v0")
        a(f"v_and_b32 v{V_LANE}, 63, v0")
        a(f"v_readfirstlane_b32 s{S_W}, v9")
        a(f"v_lshlrev_b32 v{V_LIN}, 4, v{V_LANE}")
        a(f"v_and_b32 v10, 31, v{V_LANE}")
        a(f"v_lshrrev_b32 v11, 5, v{V_LANE}")
        c("row rho of a tile is key 2*blk + e, blk = (rho&3) + 4*(rho>>3), e = (rho>>2)&1")
        a(f"v_and_b32 v12, 3, v10")
        a(f"v_lshrrev_b32 v13, 3, v10")
        a(f"v_lshl_add_u32 v12, v13, 2, v12")
        a(f"v_bfe_u32 v13, v10, 2, 1")
        c("q row held by this lane's column")
        a(f"v_lshl_add_u32 v16, v12, 1, v13")
        a(f"v_mul_u32_u24 v12, {KBLK}, v12")
        a(f"v_lshl_add_u32 v12, v13, 9, v12")
        a(f"v_lshl_add_u32 v12, v11, 4, v12")
        a(f"s_mul_i32 s{S_KBUF}, s{S_W}, {KBUF}")
        a(f"v_add_u32 v{V_KRD}, s{S_KBUF}, v12")
        a(f"v_add_u32 v14, {EREG}, v12")
        c("tree-K fragment address: rows with bit 2 set read the second key")
        a(f"v_bfe_u32 v15, v10, 2, 1")
        a(f"v_lshlrev_b32 v15, 9, v15")
        a(f"v_lshl_add_u32 v15, v11, 4, v15")
        a(f"s_lshl_b32 s{S_X}, s{S_W}, 10")
        a(f"s_add_u32 s{S_X+1}, s{S_X}, {TREEK}")
        a(f"v_add_u32 v15, s{S_X+1}, v15")
        c("mask offset: (q&15)*32 + h*2")
        a(f"v_and_b32 v17, 15, v16")
        a(f"v_lshlrev_b32 v17, 5, v17")
        a(f"v_lshl_add_u32 v17, v11, 1, v17")
        c("output offset: q*512 + h*64")
        a(f"v_lshlrev_b32 v18, 9, v16")
        a(f"v_lshl_add_u32 v18, v11, 6, v18")
        c("scalar ids: pair p = wg>>1, half = wg&1, w8 = half*4 + wave")
        if self.same:
            a(f"s_lshr_b32 s{S_X+2}, s2, 4")
            a(f"s_lshl_b32 s{S_X+2}, s{S_X+2}, 3")
            a(f"s_and_b32 s{S_X+3}, s2, 7")
            a(f"s_add_u32 s{S_X+2}, s{S_X+2}, s{S_X+3}")
            a(f"s_bfe_u32 s{S_X+3}, s2, 0x10003")
        else:
            a(f"s_lshr_b32 s{S_X+2}, s2, 1")
            a(f"s_and_b32 s{S_X+3}, s2, 1")
        a(f"s_lshl_b32 s{S_X+4}, s{S_X+3}, 2")
        a(f"s_add_u32 s{S_X+4}, s{S_X+4}, s{S_W}")
        a(f"s_lshl_b32 s{S_OWN}, s{S_X+3}, 16")
        a(f"s_xor_b32 s{S_PART}, s{S_OWN}, 0x10000")
        a(f"s_lshl_b32 s{S_X+5}, s{S_X+2}, 14")
        a(f"s_lshl_b32 s{S_X+6}, s{S_X+2}, 13")
        a(f"s_lshr_b32 s{S_X+7}, s{S_X+2}, 3")
        a(f"s_lshl_b32 s{S_X+7}, s{S_X+7}, 9")
        a(f"s_lshl_b32 s{S_X+8}, s{S_X+2}, 17")
        if self.shared:
            a(f"s_lshl_b32 s{S_X+9}, s{S_X+2}, 21")
        else:
            a(f"s_lshl_b32 s{S_X+9}, s2, 20")
        a(f"s_mov_b32 s{S_CNT}, 0")
        c("offsets of the four 4 KiB runs that make up this wave's tile")
        if self.bits:
            P = self.bits
            a(f"s_lshl_b32 s{S_HW}, s{S_X+3}, {P['h']}")
            a(f"s_and_b32 s{S_X+10}, s{S_W}, 1")
            a(f"s_lshl_b32 s{S_X+10}, s{S_X+10}, {P['w0']}")
            a(f"s_add_u32 s{S_HW}, s{S_HW}, s{S_X+10}")
            a(f"s_lshr_b32 s{S_X+10}, s{S_W}, 1")
            a(f"s_lshl_b32 s{S_X+10}, s{S_X+10}, {P['w1']}")
            a(f"s_add_u32 s{S_HW}, s{S_HW}, s{S_X+10}")
            if self.xs:
                c("pair-dependent permutation of address bits 12..14")
                a(f"s_lshr_b32 s{S_XS}, s{S_X+2}, 3")
                a(f"s_add_u32 s{S_XS}, s{S_XS}, s{S_X+2}")
                a(f"s_mul_i32 s{S_XS}, s{S_XS}, {self.xs}")
                a(f"s_and_b32 s{S_XS}, s{S_XS}, 7")
                a(f"s_lshl_b32 s{S_XS}, s{S_XS}, 12")
            self.tile_offsets()
        else:
            wsh, offs, hsh = self.pattern
            a(f"s_lshl_b32 s{S_T}, s{S_W}, {wsh}")
            if hsh is not None:
                a(f"s_lshl_b32 s{S_X+10}, s{S_X+3}, {hsh}")
                a(f"s_add_u32 s{S_T}, s{S_T}, s{S_X+10}")
            for k in range(3, 0, -1):
                a(f"s_add_u32 s{S_T+k}, s{S_T}, {offs[k]}")
        if self.xorp:
            c("pair-dependent permutation of the 4 KiB runs inside a block")
            a(f"s_mul_i32 s{S_X+10}, s{S_X+2}, {self.xorp}")
            a(f"s_and_b32 s{S_X+10}, s{S_X+10}, 31")
            a(f"s_lshl_b32 s{S_X+10}, s{S_X+10}, 12")
            for k in range(4):
                a(f"s_xor_b32 s{S_T+k}, s{S_T+k}, s{S_X+10}")
        if self.trot or self.trotx:
            c("pair-dependent starting block")
            a(f"s_mul_i32 s{S_X+10}, s{S_X+2}, {self.trot}")
            if self.trotx:
                a(f"s_lshr_b32 s{S_X+11}, s{S_X+2}, {self.trotx}")
                a(f"s_add_u32 s{S_X+10}, s{S_X+10}, s{S_X+11}")
            a(f"s_and_b32 s{S_X+10}, s{S_X+10}, 15")
            a(f"s_lshl_b32 s{S_X+10}, s{S_X+10}, 17")
            for k in range(4):
                a(f"s_add_u32 s{S_T+k}, s{S_T+k}, s{S_X+10}")
        a(f"s_mov_b32 s{S_C}, {f32(math.log2(math.e)/16.0)}")
        a(f"s_mov_b32 s{S_PLO}, 0x05040100")
        a(f"s_mov_b32 s{S_PHI}, 0x07060302")
        a("s_waitcnt lgkmcnt(0)")
        if self.diag is None:
            self.stamp(6)
        ksz = (2 if self.shared else 1) << 20
        self.srd(SRD_K, 6, 7, f"s{S_X+9}", ksz)
        D0 = max(self.pace_pat)
        nfirst = D0 if self.xlate else 1
        for i in range(nfirst):
            self.k_load(i)
        self.srd(SRD_V, 8, 9, f"s{S_X+9}", ksz)
        if self.warm:
            c("first touch of the V page, so that its translation is ready for phase B(0)")
            a(f"buffer_load_dword v{V_ALPHA}, v{V_LIN}, s[{SRD_V}:{SRD_V+3}], s{S_T} offen {self.nt}")
        self.srd(SRD_Q, 4, 5, f"s{S_X+5}", 16384)
        c("Q: four 1 KiB blocks per wave into the shared staging area")
        a(f"s_lshl_b32 s{S_X+10}, s{S_W}, 12")
        a(f"s_mul_i32 s{S_X+11}, s{S_W}, {4*KBLK}")
        a(f"s_add_u32 s{S_X+11}, s{S_X+11}, {EREG}")
        for jj in range(4):
            a(f"s_add_u32 m0, s{S_X+11}, {jj*KBLK - jj*1024}")
            a("s_nop 0")
            a(f"buffer_load_dwordx4 v{V_LIN}, s[{SRD_Q}:{SRD_Q+3}], s{S_X+10} offen offset:{jj*1024} lds")
        self.srd(SRD_WS, 20, 21, f"s{S_X+8}", 2*WS_SLOT)
        self.srd(SRD_O, 16, 17, f"s{S_X+5}", 16384)
        c("wave 0 clears this workgroup's hand-off flag and the role word")
        a(f"s_cmp_lg_u32 s{S_W}, 0")
        a("s_cbranch_scc1 L_noclear")
        for k in range(4):
            a(f"v_mov_b32 v{V_P+k}, 0")
        a(f"v_mov_b32 v12, 0")
        a(f"v_mov_b32 v13, {WS_FLAG}")
        a(f"v_mov_b32 v9, {TICK}")
        a("s_mov_b64 exec, 1")
        a(f"buffer_store_dwordx4 {vr(V_P,4)}, v13, s[{SRD_WS}:{SRD_WS+3}], s{S_OWN} offen sc1")
        a("ds_write_b32 v9, v12")
        if self.warm:
            a(f"buffer_load_dword v{V_MNEW}, v12, s[{SRD_O}:{SRD_O+3}], 0 offen")
        a("s_mov_b64 exec, -1")
        self.lab("L_noclear")
        c("tree K (two keys) into LDS, tree V into registers, mask element")
        self.srd(SRD_KT, 10, 11, f"s{S_X+6}", 8192)
        self.srd(SRD_VT, 12, 13, f"s{S_X+6}", 8192)
        self.srd(SRD_M, 14, 15, f"s{S_X+7}", 512)
        a(f"s_lshl_b32 s{S_X+12}, s{S_X+4}, 10")
        a(f"s_lshl_b32 s{S_X+13}, s{S_X+4}, 2")
        a(f"s_mov_b32 m0, s{S_X+1}")
        a("s_nop 0")
        a(f"buffer_load_dwordx4 v{V_LIN}, s[{SRD_KT}:{SRD_KT+3}], s{S_X+12} offen lds")
        a(f"buffer_load_dwordx4 v[20:23], v{V_LIN}, s[{SRD_VT}:{SRD_VT+3}], s{S_X+12} offen")
        a(f"buffer_load_ushort v19, v17, s[{SRD_M}:{SRD_M+3}], s{S_X+13} offen")

        c("---- phase A(0): K tile 0, tree tile computed between the loads")
        S = V_S; t0, t1 = V_T0, V_T0+1
        pro = []
        pro.append(["s_waitcnt lgkmcnt(0)", "s_barrier"] + self.kfrag_reads(0, 8, 14, A_Q))
        pro.append(["s_waitcnt lgkmcnt(0)"] + self.kfrag_reads(8, 16, 14, A_Q))
        pro.append(["s_waitcnt lgkmcnt(0)"] + self.kfrag_reads(0, 8, 15, A_K) +
                   ["v_lshlrev_b32 v19, 16, v19",
                    "v_sub_f32 v19, 1.0, v19",
                    f"v_mul_f32 v19, {f32(-1e9*math.log2(math.e))}, v19"])
        pro.append(["s_waitcnt lgkmcnt(0)"] + self.kfrag_reads(8, 16, 15, A_K) + self.qk_mfma(0, 8))
        pro.append(["s_waitcnt lgkmcnt(0)"] + self.qk_mfma(8, 16))
        sm = [f"v_mov_b32 v{V_VP+k}, 0" for k in range(16)]
        sm += [f"v_mov_b32 v{V_P+k}, 0" for k in range(1, 4)]
        sm += ["s_nop 4",
               f"v_fma_f32 v{t0}, v{S}, s{S_C}, v19",
               f"v_mov_b32 v{t1}, v{t0}",
               f"v_mov_b32 v12, v{t0}",
               "s_nop 1",
               f"v_permlane32_swap_b32 v{t0}, v{t1}",
               "s_nop 1",
               f"v_max_f32 v{V_M}, v{t0}, v{t1}",
               f"v_sub_f32 v12, v12, v{V_M}",
               f"v_exp_f32 v{V_L}, v12",
               "s_nop 0",
               f"v_cvt_pk_bf16_f32 v{V_P}, v{V_L}, 0"]
        pro.append(sm)
        for half in range(2):
            blk = []
            for ii in range(4):
                i = 4*half + ii
                buf = V_VP + 4*ii
                src = 20 + (i >> 1)
                if i & 1:
                    blk.append(f"v_lshrrev_b32 v{buf}, 16, v{src}")
                else:
                    blk.append(f"v_and_b32 v{buf}, 0xffff, v{src}")
            blk.append("s_nop 1")
            for ii in range(4):
                i = 4*half + ii
                buf = V_VP + 4*ii
                blk.append(f"v_mfma_f32_32x32x16_bf16 {vr(V_O+16*i,16)}, {vr(buf,4)}, {vr(V_P,4)}, 0")
            pro.append(blk)
        nx = 7 + (1 if self.warm else 0)
        first_slice = 2*D0 if self.xlate else D0
        slots = {}
        pos = first_slice
        for blk in pro:
            slots.setdefault(min(pos, 15), []).append(blk)
            pos += 1
        for i in range(nfirst, 16):
            if i >= D0:
                if self.xlate and i < 2*D0:
                    a(f"s_waitcnt vmcnt({D0 - 1 + nx})")
                else:
                    self.pace()
            elif self.diag == 'k0' and i == D0 - 1:
                pass
            self.k_load(i)
            if self.diag == 'k0' and i == D0 - 1:
                a(f"s_waitcnt vmcnt({D0 - 1 + nx})")
                self.stamp(6)
            for blk in slots.get(i, []):
                self.emit(blk)

        self.stamp(1)
        c("---- main loop: phase B(t) = V loads + QK/softmax, phase A(t+1) = K loads + PV")
        step = 131072 if self.shared else 65536
        def loop(tag, pat, exit_cnt, exit_lab):
            B, A = self.schedule(tag)
            self.pace_pat = pat
            self.npace = 0
            self.L.append(".p2align 6")
            self.lab(f"L_{tag}")
            if self.early:
                self.ticket_issue(f"L_tk_{tag}")
            for b in range(16):
                self.pace()
                self.v_load(b)
                for blk in B[b]:
                    if not self.nocompute:
                        self.emit(blk)
            if self.early:
                self.ticket_publish(f"L_tp_{tag}")
            a(f"s_cmp_eq_u32 s{S_CNT}, 15")
            a("s_cbranch_scc1 L_tail")
            a(f"s_add_u32 s{S_CNT}, s{S_CNT}, 1")
            if self.bits:
                self.tile_offsets()
            else:
                for k in range(4):
                    a(f"s_add_u32 s{S_T+k}, s{S_T+k}, {step}")
                    if self.trot or self.trotx:
                        a(f"s_and_b32 s{S_T+k}, s{S_T+k}, 0x1fffff")
            for i in range(16):
                self.pace()
                self.k_load(i)
                for blk in A[i]:
                    if not self.nocompute:
                        self.emit(blk)
            if exit_cnt == "role":
                c("once the ticket is known, continue with the depth of that role")
                a(f"s_cmp_lt_u32 s{S_CNT}, {self.tsw}")
                a(f"s_cbranch_scc1 L_{tag}")
                a(f"v_mov_b32 v12, {TICK}")
                a("ds_read_b32 v11, v12")
                a("s_waitcnt lgkmcnt(0)")
                a(f"v_readfirstlane_b32 s{S_X+13}, v11")
                a("s_nop 0")
                a(f"s_cmp_eq_u32 s{S_X+13}, 1")
                a("s_cbranch_scc1 L_lateA")
                a(f"s_cmp_eq_u32 s{S_X+13}, 2")
                a("s_cbranch_scc1 L_lateB")
            elif exit_cnt is not None:
                a(f"s_cmp_eq_u32 s{S_CNT}, {exit_cnt}")
                a(f"s_cbranch_scc1 {exit_lab}")
            a(f"s_branch L_{tag}")
        base_pat = list(self.pace_pat)
        if self.dodd is not None:
            c("prefetch depth by compute-die parity (speed only)")
            a(f"s_getreg_b32 s{S_X+10}, hwreg(HW_REG_XCC_ID)")
            a(f"s_bitcmp1_b32 s{S_X+10}, 0")
            a("s_cbranch_scc1 L_odd")
            loop("loop", base_pat, None, None)
            loop("odd", [self.dodd], None, None)
        elif self.dA is not None:
            loop("loop", base_pat, "role", None)
            loop("lateA", [self.dA], None, None)
            loop("lateB", [self.dB], None, None)
        elif self.dlate is None:
            loop("loop", base_pat, None, None)
        else:
            loop("loop", base_pat, self.tlate, "L_late")
            loop("late", [self.dlate], None, None)

        c("---- tail: role, partner flag, last PV")
        S_PREF, S_ROLE0, S_ROLE = S_TMP, 67, S_X+14
        WS = f"s[{SRD_WS}:{SRD_WS+3}]"
        self.lab("L_tail")
        self.stamp(2)
        a(f"v_mov_b32 v12, {TICK}")
        a("ds_read_b32 v11, v12")
        a(f"v_lshlrev_b32 v14, 3, v{V_LANE}")
        a(f"v_add_u32 v21, 4096, v{V_LIN}")
        a(f"s_lshl_b32 s{S_X+10}, s{S_W}, 2")
        a(f"s_add_u32 s{S_X+10}, s{S_X+10}, {WS_FLAG}")
        a(f"v_mov_b32 v20, s{S_X+10}")
        a("s_waitcnt lgkmcnt(0)")
        a(f"v_readfirstlane_b32 s{S_ROLE0}, v11")
        a(f"buffer_load_dword v19, v20, {WS}, s{S_PART} offen sc1")
        B2, A2 = self.schedule("tail")
        flat = [blk for slot in A2 for blk in slot]
        npv = 8
        rest = flat[:len(flat)-npv]
        pvs = flat[len(flat)-npv:]
        for blk in rest:
            self.emit(blk)
        for k, blk in enumerate(pvs):
            if k == 0:
                a("s_waitcnt vmcnt(9)")
            if k == 4:
                a("s_waitcnt vmcnt(1)")
            self.emit(blk)
        self.stamp(3)
        def partner_loads():
            a(f"s_lshl_b32 s{S_X+12}, s{S_W}, 13")
            a(f"s_add_u32 s{S_X+12}, s{S_X+12}, s{S_PART}")
            a(f"s_lshl_b32 s{S_X+13}, s{S_W}, 9")
            a(f"s_add_u32 s{S_X+13}, s{S_X+13}, s{S_PART}")
            a(f"s_add_u32 s{S_X+13}, s{S_X+13}, {WS_ML}")
            a(f"buffer_load_dwordx2 v[16:17], v14, {WS}, s{S_X+13} offen sc1")
            for i in range(8):
                vo = V_LIN if i < 4 else 21
                a(f"buffer_load_dwordx4 {vr(V_VR+4*i,4)}, v{vo}, {WS}, s{S_X+12} offen offset:{(i&3)*1024} sc1")
        c("second arriver whose partner has already published: fetch its partial now")
        a("s_waitcnt vmcnt(0)")
        a(f"v_readfirstlane_b32 s{S_X+12}, v19")
        a(f"s_mov_b32 s{S_PREF}, 0")
        a(f"s_cmp_lg_u32 s{S_ROLE0}, 2")
        a("s_cbranch_scc1 L_nopref")
        a(f"s_cmp_lg_u32 s{S_X+12}, 1")
        a("s_cbranch_scc1 L_again")
        a(f"s_mov_b32 s{S_PREF}, 1")
        partner_loads()
        a("s_branch L_nopref")
        self.lab("L_again")
        c("not yet: look again after the barrier")
        a(f"s_mov_b32 s{S_PREF}, 2")
        a(f"buffer_load_dword v19, v20, {WS}, s{S_PART} offen sc1")
        self.lab("L_nopref")

        c("---- workgroup combine through LDS")
        t0, t1 = V_T0, V_T0+1
        a(f"v_mov_b32 v10, v{V_M}")
        a(f"v_mov_b32 v12, v{V_L}")
        a(f"v_mov_b32 v11, v{V_L}")
        a("s_nop 1")
        a("v_permlane32_swap_b32 v11, v12")
        a("s_nop 1")
        a("v_add_f32 v11, v11, v12")
        a(f"s_lshl_b32 s{S_X+10}, s{S_W}, 9")
        a(f"s_add_u32 s{S_X+10}, s{S_X+10}, {MLREG}")
        a(f"v_add_u32 v15, s{S_X+10}, v14")
        a("ds_write_b64 v15, v[10:11]")
        a("s_nop 7")
        for k in range(4):
            c(f"part {k}: registers 4k..4k+3 of every accumulator tile go to wave {k}")
            a(f"s_cmp_eq_u32 s{S_W}, {k}")
            a(f"s_cbranch_scc1 L_nopart{k}")
            a(f"s_sub_u32 s{S_X+10}, {k+3}, s{S_W}")
            a(f"s_and_b32 s{S_X+10}, s{S_X+10}, 3")
            a(f"s_lshl_b32 s{S_X+11}, s{S_X+10}, 13")
            a(f"s_add_u32 s{S_X+11}, s{S_X+11}, s{S_KBUF}")
            a(f"s_lshl_b32 s{S_X+12}, s{S_W}, 13")
            a(f"s_add_u32 s{S_X+12}, s{S_X+12}, {EREG}")
            a(f"s_cmp_eq_u32 s{S_X+10}, 2")
            a(f"s_cselect_b32 s{S_X+11}, s{S_X+12}, s{S_X+11}")
            a(f"v_add_u32 v15, s{S_X+11}, v{V_LIN}")
            for i in range(8):
                r = V_O + 16*i + 4*k
                a(f"ds_write_b128 v15, {vr(r,4)} offset:{i*1024}")
            self.lab(f"L_nopart{k}")
        a("s_waitcnt lgkmcnt(0)")
        a("s_barrier")
        self.stamp(4)
        a(f"s_cmp_lg_u32 s{S_PREF}, 2")
        a("s_cbranch_scc1 L_nosecond")
        a("s_waitcnt vmcnt(0)")
        a(f"v_readfirstlane_b32 s{S_X+12}, v19")
        a(f"s_mov_b32 s{S_PREF}, 0")
        a(f"s_cmp_lg_u32 s{S_X+12}, 1")
        a("s_cbranch_scc1 L_nosecond")
        a(f"s_mov_b32 s{S_PREF}, 1")
        partner_loads()
        self.lab("L_nosecond")
        c("(m, l) of the four waves in rotated order: k -> wave (w - k) & 3")
        for k in range(4):
            a(f"s_sub_u32 s{S_X+10}, s{S_W}, {k}")
            a(f"s_and_b32 s{S_X+10}, s{S_X+10}, 3")
            a(f"s_lshl_b32 s{S_X+10}, s{S_X+10}, 9")
            a(f"s_add_u32 s{S_X+10}, s{S_X+10}, {MLREG}")
            a(f"v_add_u32 v15, s{S_X+10}, v14")
            a(f"ds_read_b64 v[{24+2*k}:{25+2*k}], v15")
        a(f"v_mov_b32 v12, {TICK}")
        a("ds_read_b32 v13, v12")
        def part_addr(k):
            a(f"s_sub_u32 s{S_X+10}, s{S_W}, {k}")
            a(f"s_and_b32 s{S_X+10}, s{S_X+10}, 3")
            if k < 3:
                a(f"s_mul_i32 s{S_X+11}, s{S_X+10}, {KBUF}")
                a(f"s_add_u32 s{S_X+11}, s{S_X+11}, {(k-1)*8192}")
            else:
                a(f"s_lshl_b32 s{S_X+11}, s{S_X+10}, 13")
                a(f"s_add_u32 s{S_X+11}, s{S_X+11}, {EREG}")
            a(f"v_add_u32 v15, s{S_X+11}, v{V_LIN}")
        R1, R2, R3 = V_VR+32, V_O, V_O+32
        part_addr(1)
        for i in range(8):
            a(f"ds_read_b128 {vr(R1+4*i,4)}, v15 offset:{i*1024}")
        a("s_waitcnt lgkmcnt(8)")
        a("v_max3_f32 v10, v24, v26, v28")
        a("v_max_f32 v10, v10, v30")
        for k in range(4):
            a(f"v_sub_f32 v{24+2*k}, v{24+2*k}, v10")
        for k in range(4):
            a(f"v_exp_f32 v{24+2*k}, v{24+2*k}")
        a(f"v_readfirstlane_b32 s{S_ROLE}, v13")
        a("v_mul_f32 v11, v24, v25")
        for k in range(1, 4):
            a(f"v_fmac_f32 v11, v{24+2*k}, v{25+2*k}")
        ACC = V_S
        c("own part, selected by wave id")
        for k in range(4):
            if k < 3:
                a(f"s_cmp_lg_u32 s{S_W}, {k}")
                a(f"s_cbranch_scc1 L_own{k+1}")
            for i in range(8):
                for cc in (0, 2):
                    a(f"v_pk_mul_f32 {vr(ACC+4*i+cc,2)}, v[24:25], {vr(V_O+16*i+4*k+cc,2)} op_sel_hi:[0,1]")
            if k < 3:
                a("s_branch L_owndone")
                self.lab(f"L_own{k+1}")
        self.lab("L_owndone")
        part_addr(2)
        for i in range(8):
            a(f"ds_read_b128 {vr(R2+4*i,4)}, v15 offset:{i*1024}")
        a("s_waitcnt lgkmcnt(8)")
        for r in range(0, 32, 2):
            a(f"v_pk_fma_f32 {vr(ACC+r,2)}, v[26:27], {vr(R1+r,2)}, {vr(ACC+r,2)} op_sel_hi:[0,1,1]")
        part_addr(3)
        for i in range(8):
            a(f"ds_read_b128 {vr(R3+4*i,4)}, v15 offset:{i*1024}")
        a("s_waitcnt lgkmcnt(8)")
        for r in range(0, 32, 2):
            a(f"v_pk_fma_f32 {vr(ACC+r,2)}, v[28:29], {vr(R2+r,2)}, {vr(ACC+r,2)} op_sel_hi:[0,1,1]")
        a("s_waitcnt lgkmcnt(0)")
        for r in range(0, 32, 2):
            a(f"v_pk_fma_f32 {vr(ACC+r,2)}, v[30:31], {vr(R3+r,2)}, {vr(ACC+r,2)} op_sel_hi:[0,1,1]")
        self.stamp(5)
        c("v10 = M, v11 = L, acc = v32..v63")
        a(f"s_cmp_lg_u32 s{S_ROLE}, 1")
        a("s_cbranch_scc1 L_second")

        c("---- first arriver: publish the partial result")
        a(f"s_lshl_b32 s{S_X+10}, s{S_W}, 13")
        a(f"s_add_u32 s{S_X+10}, s{S_X+10}, s{S_OWN}")
        a(f"s_lshl_b32 s{S_X+11}, s{S_W}, 9")
        a(f"s_add_u32 s{S_X+11}, s{S_X+11}, s{S_OWN}")
        a(f"s_add_u32 s{S_X+11}, s{S_X+11}, {WS_ML}")
        for i in range(8):
            vo = V_LIN if i < 4 else 21
            a(f"buffer_store_dwordx4 {vr(ACC+4*i,4)}, v{vo}, {WS}, s{S_X+10} offen offset:{(i&3)*1024} sc1")
        a(f"buffer_store_dwordx2 v[10:11], v14, {WS}, s{S_X+11} offen sc1")
        a("v_mov_b32 v19, 1")
        a("s_waitcnt vmcnt(0)")
        a("s_mov_b64 exec, 1")
        a(f"buffer_store_dword v19, v20, {WS}, s{S_OWN} offen sc1")
        a("s_mov_b64 exec, -1")
        a("s_branch L_fin")

        c("---- second arriver: wait for the partner, merge, write the output")
        self.lab("L_second")
        a(f"s_cmp_eq_u32 s{S_PREF}, 1")
        a("s_cbranch_scc1 L_have")
        a(f"s_mov_b32 s{S_X+12}, {self.spin_limit}")
        self.lab("L_poll")
        a(f"buffer_load_dword v19, v20, {WS}, s{S_PART} offen sc1")
        a("s_waitcnt vmcnt(0)")
        a(f"v_readfirstlane_b32 s{S_X+13}, v19")
        a(f"s_sub_u32 s{S_X+12}, s{S_X+12}, 1")
        a(f"s_cmp_eq_u32 s{S_X+12}, 0")
        a("s_cbranch_scc1 L_got")
        a(f"s_cmp_eq_u32 s{S_X+13}, 1")
        a("s_cbranch_scc1 L_got")
        a("s_sleep 1")
        a("s_branch L_poll")
        self.lab("L_got")
        partner_loads()
        self.lab("L_have")
        a("s_waitcnt vmcnt(0)")
        a("v_max_f32 v12, v10, v16")
        a("v_sub_f32 v10, v10, v12")
        a("v_sub_f32 v16, v16, v12")
        a("v_exp_f32 v10, v10")
        a("v_exp_f32 v16, v16")
        a("s_nop 0")
        a("v_mul_f32 v11, v11, v10")
        a("v_fmac_f32 v11, v17, v16")
        a("v_rcp_f32 v11, v11")
        a("s_nop 0")
        a("v_mul_f32 v10, v10, v11")
        a("v_mul_f32 v16, v16, v11")
        a(f"s_lshl_b32 s{S_X+10}, s{S_W}, 7")
        for c2 in (0, 2):
            for i in range(8):
                r = 4*i + c2
                a(f"v_pk_mul_f32 {vr(ACC+r,2)}, v[10:11], {vr(ACC+r,2)} op_sel_hi:[0,1]")
            for i in range(8):
                r = 4*i + c2
                a(f"v_pk_fma_f32 {vr(ACC+r,2)}, v[16:17], {vr(V_VR+r,2)}, {vr(ACC+r,2)} op_sel_hi:[0,1,1]")
            for cc in (c2, c2+1):
                for t in range(4):
                    a(f"v_cvt_pk_bf16_f32 v{V_VR+32+4*cc+t}, v{ACC+4*(2*t)+cc}, v{ACC+4*(2*t+1)+cc}")
                a(f"buffer_store_dwordx4 {vr(V_VR+32+4*cc,4)}, v18, s[{SRD_O}:{SRD_O+3}], s{S_X+10} offen offset:{16*cc} {self.oflag}")
        self.lab("L_fin")
        if self.stamps:
            a("s_waitcnt vmcnt(0) lgkmcnt(0)")
            self.stamp(7)
            a("s_waitcnt lgkmcnt(0)")
            a(f"s_lshl_b32 s{S_X+10}, s2, 2")
            a(f"s_add_u32 s{S_X+10}, s{S_X+10}, s{S_W}")
            a(f"s_lshl_b32 s{S_X+10}, s{S_X+10}, 7")
            a(f"s_add_u32 s{SRD_WS}, s20, {STAMP_BASE}")
            a(f"s_addc_u32 s{SRD_WS+1}, s21, 0")
            a(f"s_mov_b32 s{SRD_WS+2}, 0x100000")
            a(f"s_mov_b32 s{SRD_WS+3}, 0x20000")
            for k in range(16):
                a(f"v_mov_b32 v{32+k}, s{84+k}")
            a(f"s_getreg_b32 s{S_X+11}, hwreg(HW_REG_XCC_ID)")
            a(f"v_mov_b32 v48, s{S_X+11}")
            a(f"s_sub_u32 s{S_X+14}, s{S_X+14}, 1")
            a(f"s_lshl_b32 s{S_X+12}, s{S_TMP}, 1")
            a(f"s_add_u32 s{S_X+14}, s{S_X+14}, s{S_X+12}")
            a(f"v_mov_b32 v49, s{S_X+14}")
            a(f"s_getreg_b32 s{S_X+11}, hwreg(HW_REG_HW_ID)")
            a(f"v_mov_b32 v50, s{S_X+11}")
            a(f"v_mov_b32 v51, 0")
            a("v_mov_b32 v20, 0")
            a("s_mov_b64 exec, 1")
            for k in range(4):
                a(f"buffer_store_dwordx4 {vr(32+4*k,4)}, v20, s[{SRD_WS}:{SRD_WS+3}], s{S_X+10} offen offset:{16*k}")
            a(f"buffer_store_dwordx4 v[48:51], v20, s[{SRD_WS}:{SRD_WS+3}], s{S_X+10} offen offset:64")
            a("s_mov_b64 exec, -1")
        self.lab("L_end")
        a("s_endpgm")
        self.L.append(f""".section .rodata,"a"
.p2align 6
.amdhsa_kernel {K}
  .amdhsa_next_free_vgpr 384
  .amdhsa_next_free_sgpr 102
  .amdhsa_accum_offset 256
  .amdhsa_group_segment_fixed_size 0
  .amdhsa_kernarg_size 72
  .amdhsa_user_sgpr_count 2
  .amdhsa_user_sgpr_kernarg_segment_ptr 1
  .amdhsa_system_sgpr_workgroup_id_x 1
  .amdhsa_float_denorm_mode_32 3
.end_amdhsa_kernel""")
        return HEADER + f"; @launch grid=(256,1,1) block=(256,1,1) lds={LDS_BYTES}\n" + "\n".join(self.L) + "\n"

if __name__ == "__main__":
    import argparse
    ap = argparse.ArgumentParser()
    ap.add_argument("-o", default="cdna_kernels/" + NAME + ".s")
    ap.add_argument("-D", type=int, default=5)
    ap.add_argument("--nt", default="nt")
    ap.add_argument("--stamps", action="store_true")
    ap.add_argument("--nocompute", action="store_true")
    ap.add_argument("--norescale", action="store_true")
    ap.add_argument("--pat", default=None)
    ap.add_argument("--pattern", default="H2")
    ap.add_argument("--dlate", type=int, default=None)
    ap.add_argument("--tlate", type=int, default=13)
    ap.add_argument("--warm", action="store_true")
    ap.add_argument("--diag", default=None)
    ap.add_argument("--xlate", action="store_true")
    ap.add_argument("--trot", type=int, default=0)
    ap.add_argument("--trotx", type=int, default=0)
    ap.add_argument("--xorp", type=int, default=0)
    ap.add_argument("--bits", default=None)
    ap.add_argument("--same", action="store_true")
    ap.add_argument("--xs", type=int, default=0)
    ap.add_argument("--dA", type=int, default=None)
    ap.add_argument("--dB", type=int, default=None)
    ap.add_argument("--tsw", type=int, default=9)
    ap.add_argument("--oflag", default="")
    ap.add_argument("--dodd", type=int, default=None)
    ap.add_argument("--noearly", action="store_true")
    ap.add_argument("--tk", type=int, default=14)
    args = ap.parse_args()
    g = Gen(D=args.D, nt=args.nt, stamps=args.stamps, nocompute=args.nocompute, norescale=args.norescale,
            pace_pat=[int(x) for x in args.pat.split(',')] if args.pat else None, pattern=args.pattern, dlate=args.dlate, tlate=args.tlate,
            warm=args.warm, early=not args.noearly, tk=args.tk, diag=args.diag, xlate=args.xlate, trot=args.trot, trotx=args.trotx, xorp=args.xorp, bits=args.bits, same=args.same, xs=args.xs, dA=args.dA, dB=args.dB, tsw=args.tsw, oflag=args.oflag, dodd=args.dodd)
    open(args.o, "w").write(g.build())
```

```python
import sys, struct, math

NAME = "standalone__tree_speculative_verify_tree_attention_over_candidate_token_tree__sampling"

HEADER = """; Kernarg layout for this problem (72 bytes, ptrs only, base s[0:1]):
;   offset  24: d_in[3] k_tree  shape=(16, 8, 16, 256) dtype=bfloat16 strides=(65536, 8192, 512, 2) contiguous=True
;   offset  32: d_in[4] v_tree  shape=(16, 8, 16, 256) dtype=bfloat16 strides=(65536, 8192, 512, 2) contiguous=True
;   offset  40: d_in[5] tree_mask  shape=(16, 16, 16) dtype=bfloat16 strides=(512, 32, 2) contiguous=True
"""

def f32(x):
    return "0x%08x" % struct.unpack("<I", struct.pack("<f", x))[0]

KBLK = 1040
KBUF = 16*KBLK
EREG = 4*KBUF
TREEK = EREG + KBUF
MLREG = EREG + 32768
TICK = MLREG + 2048
LDS_BYTES = 102400

V_LANE, V_LIN, V_VOFF, V_KRD, V_M, V_L, V_ALPHA, V_MNEW = 1, 2, 3, 4, 5, 6, 7, 8
V_T0 = 9
V_P, V_S, V_VP, V_VR, V_O = 24, 32, 48, 64, 128
A_Q, A_K = 0, 64
S_W, S_TMP = 22, 23
SRD_K, SRD_V, SRD_Q, SRD_KT, SRD_VT, SRD_M, SRD_O, SRD_WS = 24, 28, 32, 36, 40, 44, 48, 52
S_T = 56
S_KBUF, S_CNT, S_C, S_PLO, S_PHI, S_OWN, S_PART = 60, 61, 62, 63, 64, 65, 66
S_X = 68
S_HW = 83
S_TT = 67
V_ZERO = 10
S_XS = 3
WS_SLOT = 65536
WS_ML = 32768
WS_FLAG = 36864
STAMP_BASE = 0x2000000

def vr(b, n=1):
    return f"v{b}" if n == 1 else f"v[{b}:{b+n-1}]"
def ar(b, n=1):
    return f"a{b}" if n == 1 else f"a[{b}:{b+n-1}]"
def sr(b, n=1):
    return f"s{b}" if n == 1 else f"s[{b}:{b+n-1}]"

class Gen:
    def __init__(self, D=5, nt="nt", stamps=False, spin_limit=1 << 22, nocompute=False, norescale=False, pace_pat=None, pattern='H2', dlate=None, tlate=13, warm=False, early=True, tk=14, diag=None, xlate=False, trot=0, trotx=0, xorp=0, bits=None, same=False, xs=0, dA=None, dB=None, tsw=9, oflag='', dodd=None, skip='', qflag='', qpos=None):
        self.D, self.nt, self.stamps, self.spin_limit = D, nt, stamps, spin_limit
        self.nocompute, self.norescale = nocompute, norescale
        self.pace_pat = pace_pat or [D]
        self.D0 = D
        self.npace = 0
        self.dlate, self.tlate = dlate, tlate
        self.warm, self.early, self.tk = warm, early, tk
        self.diag, self.xlate = diag, xlate
        self.trot, self.trotx, self.xorp = trot, trotx, xorp
        self.bits = {o: 12 + i for i, o in enumerate(bits.split())} if bits else None
        self.same, self.xs = same, xs
        self.dA, self.dB, self.tsw = dA, dB, tsw
        self.oflag = oflag
        self.dodd = dodd
        self.skip = skip.split(',')
        self.qflag, self.qpos = qflag, qpos
        if dodd is not None:
            self.D = max(self.D, dodd)
        if dA is not None:
            self.D = max(self.D, dA, dB)
        if bits:
            assert sorted(self.bits) == sorted('h w0 w1 j2 j3 t0 t1 t2 t3'.split())
        self.Dpace = D
        if dlate is not None:
            self.D = max(D, dlate)
        self.pattern = {'P0': (14, [0, 4096, 8192, 12288], None), 'P1': (13, [0, 4096, 32768, 36864], None), 'P2': (12, [0, 16384, 32768, 49152], None),
                        'H2': (13, [0, 32768, 65536, 98304], 12), 'H4': (12, [0, 32768, 65536, 98304], 14), 'H6': (13, [0, 4096, 32768, 36864], 16)}[pattern]
        self.shared = self.pattern[2] is not None or self.bits is not None
        self.L = []
        self.nstamp = 0

    def a(self, s):
        for line in s.split("\n"):
            self.L.append("    " + line.strip())
    def lab(self, n):
        self.L.append(n + ":")
    def c(self, s):
        self.L.append("    ; " + s)

    def stamp(self, idx):
        if self.stamps:
            r = 84 + 2*idx
            self.a(f"s_memrealtime s[{r}:{r+1}]")

    def srd(self, q, lo, hi, add, size):
        if add is None:
            self.a(f"s_mov_b32 s{q}, s{lo}\ns_mov_b32 s{q+1}, s{hi}")
        else:
            self.a(f"s_add_u32 s{q}, s{lo}, {add}\ns_addc_u32 s{q+1}, s{hi}, 0")
        self.a(f"s_mov_b32 s{q+2}, {size}\ns_mov_b32 s{q+3}, 0x20000")

    def k_load(self, i):
        imm = (i & 3)*1024
        self.a(f"s_add_u32 m0, s{S_KBUF}, {i*KBLK - imm}")
        self.a("s_nop 0")
        self.a(f"buffer_load_dwordx4 v{V_LIN}, s[{SRD_K}:{SRD_K+3}], s{S_T + (i >> 2)} offen offset:{imm} {self.nt} lds")
    def v_load(self, b):
        imm = (b & 3)*1024
        so = S_T + (b >> 2)
        d = V_VR + 4*b
        self.a(f"buffer_load_dwordx4 {vr(d,4)}, v{V_LIN}, s[{SRD_V}:{SRD_V+3}], s{so} offen offset:{imm} {self.nt}")
    def pace(self):
        d = self.pace_pat[self.npace % len(self.pace_pat)]
        assert d <= self.D
        self.npace += 1
        self.a(f"s_waitcnt vmcnt({d-1})")

    def kfrag_reads(self, lo, hi, vaddr=V_KRD, abase=A_K):
        return [f"ds_read_b128 {ar(abase+4*s,4)}, v{vaddr} offset:{32*s}" for s in range(lo, hi)]
    def qk_mfma(self, lo, hi):
        out = []
        for s in range(lo, hi):
            cin = "0" if s == 0 else vr(V_S, 16)
            out.append(f"v_mfma_f32_32x32x16_bf16 {vr(V_S,16)}, {ar(A_K+4*s,4)}, {ar(A_Q+4*s,4)}, {cin}")
        return out

    def softmax_slices(self, tag):
        S = V_S; t0, t1 = V_T0, V_T0+1
        sl = []
        sl.append(self.kfrag_reads(0, 8))
        sl.append(["s_waitcnt lgkmcnt(0)"] + self.kfrag_reads(8, 16) + self.qk_mfma(0, 4))
        sl.append(self.qk_mfma(4, 8))
        sl.append(["s_waitcnt lgkmcnt(0)"] + self.qk_mfma(8, 12))
        sl.append(self.qk_mfma(12, 16))
        mx = ["s_nop 11",
              f"v_max3_f32 v{t0}, v{S}, v{S+1}, v{S+2}",
              f"v_max3_f32 v{t1}, v{S+3}, v{S+4}, v{S+5}",
              f"v_max3_f32 v{t0}, v{t0}, v{S+6}, v{S+7}",
              f"v_max3_f32 v{t1}, v{t1}, v{S+8}, v{S+9}",
              f"v_max3_f32 v{t0}, v{t0}, v{S+10}, v{S+11}",
              f"v_max3_f32 v{t1}, v{t1}, v{S+12}, v{S+13}",
              f"v_max3_f32 v{t0}, v{t0}, v{S+14}, v{S+15}",
              f"v_max_f32 v{t0}, v{t0}, v{t1}",
              f"v_mov_b32 v{t1}, v{t0}",
              "s_nop 1",
              f"v_permlane32_swap_b32 v{t0}, v{t1}",
              "s_nop 1",
              f"v_max_f32 v{t0}, v{t0}, v{t1}",
              f"v_mul_f32 v{t0}, s{S_C}, v{t0}",
              f"v_max_f32 v{V_MNEW}, v{V_M}, v{t0}",
              f"v_sub_f32 v{t1}, v{V_M}, v{V_MNEW}",
              f"v_exp_f32 v{V_ALPHA}, v{t1}",
              f"v_cmp_gt_f32 vcc, v{V_MNEW}, v{V_M}",
              f"v_mov_b32 v{V_M}, v{V_MNEW}",
              f"v_mul_f32 v{V_L}, v{V_L}, v{V_ALPHA}",
              "s_nop 1"]
        sl.append(mx)
        for part in range(0 if self.norescale else 2):
            lab = f"L_skip_{tag}_{part}"
            blk = [f"s_cbranch_vccz {lab}"]
            blk += [f"v_mul_f32 v{V_O+r}, v{V_ALPHA}, v{V_O+r}" for r in range(64*part, 64*part+64)]
            blk += [lab + ":"]
            sl.append(blk)
        for part in range(2):
            rs = range(8*part, 8*part+8)
            blk = [f"v_fma_f32 v{S+r}, v{S+r}, s{S_C}, -v{V_M}" for r in rs]
            blk += [f"v_exp_f32 v{S+r}, v{S+r}" for r in rs]
            blk += ["s_nop 0"]
            blk += [f"v_cvt_pk_bf16_f32 v{V_P+(r>>1)}, v{S+r}, v{S+r+1}" for r in rs if r % 2 == 0]
            b = 8*part
            blk += [f"v_add_f32 v{t0}, v{S+b}, v{S+b+1}",
                    f"v_add_f32 v{t1}, v{S+b+2}, v{S+b+3}",
                    f"v_add_f32 v{t0}, v{t0}, v{S+b+4}",
                    f"v_add_f32 v{t1}, v{t1}, v{S+b+5}",
                    f"v_add_f32 v{t0}, v{t0}, v{S+b+6}",
                    f"v_add_f32 v{t1}, v{t1}, v{S+b+7}",
                    f"v_add_f32 v{t0}, v{t0}, v{t1}",
                    f"v_add_f32 v{V_L}, v{V_L}, v{t0}"]
            sl.append(blk)
        return sl

    def pv_slices(self):
        out = []
        for s in range(2):
            for c in range(4):
                blo = V_VP + 8*(c & 1)
                bhi = blo + 4
                blk = []
                for t in range(4):
                    r0 = V_VR + 4*(8*s + 2*t) + c
                    r1 = r0 + 4
                    blk.append(f"v_perm_b32 v{blo+t}, v{r1}, v{r0}, s{S_PLO}")
                for t in range(4):
                    r0 = V_VR + 4*(8*s + 2*t) + c
                    r1 = r0 + 4
                    blk.append(f"v_perm_b32 v{bhi+t}, v{r1}, v{r0}, s{S_PHI}")
                blk.append("s_nop 1")
                o0, o1 = V_O + 16*(2*c), V_O + 16*(2*c+1)
                blk.append(f"v_mfma_f32_32x32x16_bf16 {vr(o0,16)}, {vr(blo,4)}, {vr(V_P+4*s,4)}, {vr(o0,16)}")
                blk.append(f"v_mfma_f32_32x32x16_bf16 {vr(o1,16)}, {vr(bhi,4)}, {vr(V_P+4*s,4)}, {vr(o1,16)}")
                out.append((s, blk))
        return out

    def ticket_issue(self, lab):
        a = self.a
        a(f"s_cmp_lg_u32 s{S_CNT}, {self.tk}")
        a(f"s_cbranch_scc1 {lab}")
        a(f"s_cmp_lg_u32 s{S_W}, 0")
        a(f"s_cbranch_scc1 {lab}")
        a(f"s_lshr_b32 s{S_X+10}, s{S_X+2}, 1")
        a(f"s_lshl_b32 s{S_X+10}, s{S_X+10}, 2")
        a(f"s_and_b32 s{S_X+11}, s{S_X+2}, 1")
        a(f"s_lshl_b32 s{S_X+11}, s{S_X+11}, 4")
        a(f"s_lshl_b32 s{S_X+12}, 1, s{S_X+11}")
        a(f"v_mov_b32 v12, s{S_X+10}")
        a(f"v_mov_b32 v13, s{S_X+12}")
        a("s_mov_b64 exec, 1")
        a("global_atomic_add v13, v12, v13, s[18:19] sc0 sc1")
        a("s_mov_b64 exec, -1")
        self.lab(lab)

    def ticket_publish(self, lab):
        a = self.a
        a(f"s_cmp_lg_u32 s{S_CNT}, {self.tk}")
        a(f"s_cbranch_scc1 {lab}")
        a(f"s_cmp_lg_u32 s{S_W}, 0")
        a(f"s_cbranch_scc1 {lab}")
        a(f"s_waitcnt vmcnt({self.D-1})")
        a(f"v_lshrrev_b32 v13, s{S_X+11}, v13")
        a(f"v_and_b32 v13, 0xffff, v13")
        a(f"v_add_u32 v13, 1, v13")
        a(f"v_mov_b32 v12, {TICK}")
        a("s_mov_b64 exec, 1")
        a("ds_write_b32 v12, v13")
        a("s_mov_b64 exec, -1")
        self.lab(lab)

    def koff(self, k):
        return ((k & 1) << self.bits['j2']) + ((k >> 1) << self.bits['j3'])

    def tile_offsets(self):
        a, P = self.a, self.bits
        groups = []
        k = 0
        while k < 4:
            n = 1
            while k + n < 4 and P[f"t{k+n}"] == P[f"t{k}"] + n:
                n += 1
            groups.append((k, n, P[f"t{k}"]))
            k += n
        a(f"s_mov_b32 s{S_T}, s{S_HW}")
        for k, n, pos in groups:
            a(f"s_bfe_u32 s{S_X+10}, s{S_CNT}, {hex((n << 16) | k)}")
            a(f"s_lshl_b32 s{S_X+10}, s{S_X+10}, {pos}")
            a(f"s_add_u32 s{S_T}, s{S_T}, s{S_X+10}")
        for k in range(1, 4):
            a(f"s_add_u32 s{S_T+k}, s{S_T}, {self.koff(k)}")
        if self.xs:
            for k in range(4):
                a(f"s_xor_b32 s{S_T+k}, s{S_T+k}, s{S_XS}")

    def tree_loads(self, tag):
        a = self.a
        lab = f"L_treeld_{tag}"
        a(f"s_cmp_lg_u32 s{S_CNT}, s{S_TT}")
        a(f"s_cbranch_scc1 {lab}")
        self.srd(SRD_KT, 10, 11, f"s{S_X+6}", 8192)
        self.srd(SRD_VT, 12, 13, f"s{S_X+6}", 8192)
        self.srd(SRD_M, 14, 15, f"s{S_X+7}", 512)
        a(f"s_lshl_b32 s{S_X+12}, s{S_X+4}, 10")
        a(f"s_lshl_b32 s{S_X+13}, s{S_X+4}, 2")
        a(f"s_mov_b32 m0, s{S_X+1}")
        a("s_nop 0")
        if 'tree' not in self.skip:
            a(f"buffer_load_dwordx4 v{V_LIN}, s[{SRD_KT}:{SRD_KT+3}], s{S_X+12} offen lds")
            a(f"buffer_load_dwordx4 v[20:23], v{V_LIN}, s[{SRD_VT}:{SRD_VT+3}], s{S_X+12} offen")
            a(f"buffer_load_ushort v19, v17, s[{SRD_M}:{SRD_M+3}], s{S_X+13} offen")
        self.c("wave 0 clears the four hand-off flags of this workgroup")
        a(f"s_cmp_lg_u32 s{S_W}, 0")
        a(f"s_cbranch_scc1 {lab}")
        self.srd(SRD_WS, 20, 21, f"s{S_X+8}", 2*WS_SLOT)
        for k in range(4):
            a(f"v_mov_b32 v{V_ZERO+k}, 0")
        a(f"v_mov_b32 v9, {WS_FLAG}")
        a("s_mov_b64 exec, 1")
        a(f"buffer_store_dwordx4 v[{V_ZERO}:{V_ZERO+3}], v9, s[{SRD_WS}:{SRD_WS+3}], s{S_OWN} offen sc1")
        a("s_mov_b64 exec, -1")
        self.lab(lab)

    def tree_slices(self, tag):
        S = V_S; t0, t1 = V_T0, V_T0+1
        sl = []
        sl.append(self.kfrag_reads(0, 8, 15, A_K) +
                  ["v_lshlrev_b32 v19, 16, v19",
                   "v_sub_f32 v19, 1.0, v19",
                   f"v_mul_f32 v19, {f32(-1e9*math.log2(math.e))}, v19"])
        sl.append(["s_waitcnt lgkmcnt(0)"] + self.kfrag_reads(8, 16, 15, A_K) + self.qk_mfma(0, 8))
        sl.append(["s_waitcnt lgkmcnt(0)"] + self.qk_mfma(8, 16))
        sm = [f"v_mov_b32 v{V_VP+k}, 0" for k in range(16)]
        sm += [f"v_mov_b32 v{V_P+k}, 0" for k in range(1, 4)]
        sm += ["s_nop 4",
               f"v_fma_f32 v{t0}, v{S}, s{S_C}, v19",
               f"v_mov_b32 v{t1}, v{t0}",
               f"v_mov_b32 v12, v{t0}",
               "s_nop 1",
               f"v_permlane32_swap_b32 v{t0}, v{t1}",
               "s_nop 1",
               f"v_max3_f32 v{V_MNEW}, v{V_M}, v{t0}, v{t1}",
               f"v_sub_f32 v{t1}, v{V_M}, v{V_MNEW}",
               f"v_sub_f32 v12, v12, v{V_MNEW}",
               f"v_exp_f32 v{V_ALPHA}, v{t1}",
               f"v_exp_f32 v12, v12",
               f"v_cmp_gt_f32 vcc, v{V_MNEW}, v{V_M}",
               f"v_mov_b32 v{V_M}, v{V_MNEW}",
               f"v_fma_f32 v{V_L}, v{V_L}, v{V_ALPHA}, v12",
               f"v_cvt_pk_bf16_f32 v{V_P}, v12, 0",
               "s_nop 1"]
        sl.append(sm)
        for part in range(2):
            lab = f"L_tskip_{tag}_{part}"
            blk = [f"s_cbranch_vccz {lab}"]
            blk += [f"v_mul_f32 v{V_O+r}, v{V_ALPHA}, v{V_O+r}" for r in range(64*part, 64*part+64)]
            blk += [lab + ":"]
            sl.append(blk)
        for half in range(2):
            blk = []
            for ii in range(4):
                i = 4*half + ii
                buf = V_VP + 4*ii
                src = 20 + (i >> 1)
                if i & 1:
                    blk.append(f"v_lshrrev_b32 v{buf}, 16, v{src}")
                else:
                    blk.append(f"v_and_b32 v{buf}, 0xffff, v{src}")
            blk.append("s_nop 1")
            for ii in range(4):
                i = 4*half + ii
                buf = V_VP + 4*ii
                blk.append(f"v_mfma_f32_32x32x16_bf16 {vr(V_O+16*i,16)}, {vr(buf,4)}, {vr(V_P,4)}, {vr(V_O+16*i,16)}")
            sl.append(blk)
        return sl

    def emit(self, blk):
        for ln in blk:
            if ln.endswith(":"):
                self.lab(ln[:-1])
            else:
                self.a(ln)

    def schedule(self, tag):
        D = self.D
        B = [[] for _ in range(16)]
        A = [[] for _ in range(16)]
        pos = D - 1
        def put(p, blk):
            (B[p] if p < 16 else A[p-16]).append(blk)
        for blk in self.softmax_slices(tag):
            put(pos, blk); pos += 1
        pos = max(pos, 16)
        for s, blk in self.pv_slices():
            if s == 1:
                pos = max(pos, 16 + D - 1)
            assert pos < 32
            put(pos, blk); pos += 1
        return B, A

    def build(self):
        a, c, D = self.a, self.c, self.D
        K = NAME + "_kernel"
        self.L.append(f".amdgcn_target \"amdgcn-amd-amdhsa--gfx950\"\n.text\n.globl {K}\n.p2align 8\n.type {K},@function\n{K}:")
        a("s_cmp_ge_u32 s2, 256")
        a("s_cbranch_scc1 L_end")
        a("s_load_dwordx16 s[4:19], s[0:1], 0")
        a("s_load_dwordx2 s[20:21], s[0:1], 64")
        self.stamp(0)
        c("lane / wave decomposition")
        a(f"v_lshrrev_b32 v9, 6, v0")
        a(f"v_and_b32 v{V_LANE}, 63, v0")
        a(f"v_readfirstlane_b32 s{S_W}, v9")
        a(f"v_lshlrev_b32 v{V_LIN}, 4, v{V_LANE}")
        a(f"v_and_b32 v10, 31, v{V_LANE}")
        a(f"v_lshrrev_b32 v11, 5, v{V_LANE}")
        c("row rho of a tile is key 2*blk + e, blk = (rho&3) + 4*(rho>>3), e = (rho>>2)&1")
        a(f"v_and_b32 v12, 3, v10")
        a(f"v_lshrrev_b32 v13, 3, v10")
        a(f"v_lshl_add_u32 v12, v13, 2, v12")
        a(f"v_bfe_u32 v13, v10, 2, 1")
        c("q row held by this lane's column")
        a(f"v_lshl_add_u32 v16, v12, 1, v13")
        a(f"v_mul_u32_u24 v12, {KBLK}, v12")
        a(f"v_lshl_add_u32 v12, v13, 9, v12")
        a(f"v_lshl_add_u32 v12, v11, 4, v12")
        a(f"s_mul_i32 s{S_KBUF}, s{S_W}, {KBUF}")
        a(f"v_add_u32 v{V_KRD}, s{S_KBUF}, v12")
        a(f"v_add_u32 v14, {EREG}, v12")
        c("tree-K fragment address: rows with bit 2 set read the second key")
        a(f"v_bfe_u32 v15, v10, 2, 1")
        a(f"v_lshlrev_b32 v15, 9, v15")
        a(f"v_lshl_add_u32 v15, v11, 4, v15")
        a(f"s_lshl_b32 s{S_X}, s{S_W}, 10")
        a(f"s_add_u32 s{S_X+1}, s{S_X}, {TREEK}")
        a(f"v_add_u32 v15, s{S_X+1}, v15")
        c("mask offset: (q&15)*32 + h*2")
        a(f"v_and_b32 v17, 15, v16")
        a(f"v_lshlrev_b32 v17, 5, v17")
        a(f"v_lshl_add_u32 v17, v11, 1, v17")
        c("output offset: q*512 + h*64")
        a(f"v_lshlrev_b32 v18, 9, v16")
        a(f"v_lshl_add_u32 v18, v11, 6, v18")
        c("scalar ids: pair p = wg>>1, half = wg&1, w8 = half*4 + wave")
        if self.same:
            a(f"s_lshr_b32 s{S_X+2}, s2, 4")
            a(f"s_lshl_b32 s{S_X+2}, s{S_X+2}, 3")
            a(f"s_and_b32 s{S_X+3}, s2, 7")
            a(f"s_add_u32 s{S_X+2}, s{S_X+2}, s{S_X+3}")
            a(f"s_bfe_u32 s{S_X+3}, s2, 0x10003")
        else:
            a(f"s_lshr_b32 s{S_X+2}, s2, 1")
            a(f"s_and_b32 s{S_X+3}, s2, 1")
        a(f"s_lshl_b32 s{S_X+4}, s{S_X+3}, 2")
        a(f"s_add_u32 s{S_X+4}, s{S_X+4}, s{S_W}")
        a(f"s_lshl_b32 s{S_OWN}, s{S_X+3}, 16")
        a(f"s_xor_b32 s{S_PART}, s{S_OWN}, 0x10000")
        a(f"s_lshl_b32 s{S_X+5}, s{S_X+2}, 14")
        a(f"s_lshl_b32 s{S_X+6}, s{S_X+2}, 13")
        a(f"s_lshr_b32 s{S_X+7}, s{S_X+2}, 3")
        a(f"s_lshl_b32 s{S_X+7}, s{S_X+7}, 9")
        a(f"s_lshl_b32 s{S_X+8}, s{S_X+2}, 17")
        if self.shared:
            a(f"s_lshl_b32 s{S_X+9}, s{S_X+2}, 21")
        else:
            a(f"s_lshl_b32 s{S_X+9}, s2, 20")
        a(f"s_mov_b32 s{S_CNT}, 0")
        c("offsets of the four 4 KiB runs that make up this wave's tile")
        if self.bits:
            P = self.bits
            a(f"s_lshl_b32 s{S_HW}, s{S_X+3}, {P['h']}")
            a(f"s_and_b32 s{S_X+10}, s{S_W}, 1")
            a(f"s_lshl_b32 s{S_X+10}, s{S_X+10}, {P['w0']}")
            a(f"s_add_u32 s{S_HW}, s{S_HW}, s{S_X+10}")
            a(f"s_lshr_b32 s{S_X+10}, s{S_W}, 1")
            a(f"s_lshl_b32 s{S_X+10}, s{S_X+10}, {P['w1']}")
            a(f"s_add_u32 s{S_HW}, s{S_HW}, s{S_X+10}")
            if self.xs:
                c("pair-dependent permutation of address bits 12..14")
                a(f"s_lshr_b32 s{S_XS}, s{S_X+2}, 3")
                a(f"s_add_u32 s{S_XS}, s{S_XS}, s{S_X+2}")
                a(f"s_mul_i32 s{S_XS}, s{S_XS}, {self.xs}")
                a(f"s_and_b32 s{S_XS}, s{S_XS}, 7")
                a(f"s_lshl_b32 s{S_XS}, s{S_XS}, 12")
            self.tile_offsets()
        else:
            wsh, offs, hsh = self.pattern
            a(f"s_lshl_b32 s{S_T}, s{S_W}, {wsh}")
            if hsh is not None:
                a(f"s_lshl_b32 s{S_X+10}, s{S_X+3}, {hsh}")
                a(f"s_add_u32 s{S_T}, s{S_T}, s{S_X+10}")
            for k in range(3, 0, -1):
                a(f"s_add_u32 s{S_T+k}, s{S_T}, {offs[k]}")
        if self.xorp:
            c("pair-dependent permutation of the 4 KiB runs inside a block")
            a(f"s_mul_i32 s{S_X+10}, s{S_X+2}, {self.xorp}")
            a(f"s_and_b32 s{S_X+10}, s{S_X+10}, 31")
            a(f"s_lshl_b32 s{S_X+10}, s{S_X+10}, 12")
            for k in range(4):
                a(f"s_xor_b32 s{S_T+k}, s{S_T+k}, s{S_X+10}")
        if self.trot or self.trotx:
            c("pair-dependent starting block")
            a(f"s_mul_i32 s{S_X+10}, s{S_X+2}, {self.trot}")
            if self.trotx:
                a(f"s_lshr_b32 s{S_X+11}, s{S_X+2}, {self.trotx}")
                a(f"s_add_u32 s{S_X+10}, s{S_X+10}, s{S_X+11}")
            a(f"s_and_b32 s{S_X+10}, s{S_X+10}, 15")
            a(f"s_lshl_b32 s{S_X+10}, s{S_X+10}, 17")
            for k in range(4):
                a(f"s_add_u32 s{S_T+k}, s{S_T+k}, s{S_X+10}")
        a(f"s_mov_b32 s{S_C}, {f32(math.log2(math.e)/16.0)}")
        a(f"s_mov_b32 s{S_PLO}, 0x05040100")
        a(f"s_mov_b32 s{S_PHI}, 0x07060302")
        a("s_waitcnt lgkmcnt(0)")
        if self.diag is None:
            self.stamp(6)
        ksz = (2 if self.shared else 1) << 20
        self.srd(SRD_K, 6, 7, f"s{S_X+9}", ksz)
        D0 = max(self.pace_pat)
        qpos = D0 if self.qpos is None else self.qpos
        def q_loads():
            self.srd(SRD_Q, 4, 5, f"s{S_X+5}", 16384)
            c("Q: four 1 KiB blocks per wave into the shared staging area")
            a(f"s_lshl_b32 s{S_X+10}, s{S_W}, 12")
            a(f"s_mul_i32 s{S_X+11}, s{S_W}, {4*KBLK}")
            a(f"s_add_u32 s{S_X+11}, s{S_X+11}, {EREG}")
            for jj in range(4):
                a(f"s_add_u32 m0, s{S_X+11}, {jj*KBLK - jj*1024}")
                a("s_nop 0")
                if 'q' not in self.skip:
                    a(f"buffer_load_dwordx4 v{V_LIN}, s[{SRD_Q}:{SRD_Q+3}], s{S_X+10} offen offset:{jj*1024} {self.qflag} lds")
        for i in range(D0):
            if i == qpos:
                q_loads()
            self.k_load(i)
        if qpos == D0:
            q_loads()
        self.srd(SRD_V, 8, 9, f"s{S_X+9}", ksz)
        c("role word starts as unknown; this wave's tree step is at iteration 1 + w8")
        a(f"s_add_u32 s{S_TT}, s{S_X+4}, 1")
        a(f"v_mov_b32 v12, 0")
        a(f"v_mov_b32 v9, {TICK}")
        a(f"s_cmp_lg_u32 s{S_W}, 0")
        a("s_cbranch_scc1 L_noclear")
        a("s_mov_b64 exec, 1")
        a("ds_write_b32 v9, v12")
        a("s_mov_b64 exec, -1")
        self.lab("L_noclear")

        c("---- phase A(0): K tile 0; accumulator setup and Q fragments between the loads")
        init = [f"v_mov_b32 v{V_O+r}, 0" for r in range(128)]
        init += [f"v_mov_b32 v{V_M}, 0xff800000", f"v_mov_b32 v{V_L}, 0"]
        nq = 4
        slots = {}
        ninit = D0 + 1
        per = -(-len(init)//ninit)
        for k in range(ninit):
            slots.setdefault(D0 + k, []).append(init[k*per:(k+1)*per])
        qs = max(qpos + D0, 2*D0 - 1) + 1
        qs = min(max(qs, 11), 13)
        assert qpos + D0 <= qs
        slots.setdefault(qs, []).append(["s_waitcnt lgkmcnt(0)", "s_barrier"] + self.kfrag_reads(0, 8, 14, A_Q))
        slots.setdefault(qs+1, []).append(["s_waitcnt lgkmcnt(0)"] + self.kfrag_reads(8, 16, 14, A_Q))
        slots.setdefault(qs+2, []).append(["s_waitcnt lgkmcnt(0)"])
        for i in range(D0, 16):
            if i == qpos and qpos > D0:
                q_loads()
            c_after = i - qpos
            if 0 <= c_after < D0:
                a(f"s_waitcnt vmcnt({D0 - 1 + nq})")
            else:
                self.pace()
            self.k_load(i)
            for blk in slots.get(i, []):
                self.emit(blk)

        self.stamp(1)
        c("---- main loop: phase B(t) = V loads + QK/softmax, phase A(t+1) = K loads + PV")
        step = 131072 if self.shared else 65536
        def loop(tag, pat, exit_cnt, exit_lab):
            B, A = self.schedule(tag)
            self.pace_pat = pat
            self.npace = 0
            self.L.append(".p2align 6")
            self.lab(f"L_{tag}")
            if self.early:
                self.ticket_issue(f"L_tk_{tag}")
            for b in range(16):
                self.pace()
                self.v_load(b)
                for blk in B[b]:
                    if not self.nocompute:
                        self.emit(blk)
            if self.early:
                self.ticket_publish(f"L_tp_{tag}")
            a(f"s_cmp_eq_u32 s{S_CNT}, 15")
            a("s_cbranch_scc1 L_tail")
            a(f"s_add_u32 s{S_CNT}, s{S_CNT}, 1")
            if self.bits:
                self.tile_offsets()
            else:
                for k in range(4):
                    a(f"s_add_u32 s{S_T+k}, s{S_T+k}, {step}")
                    if self.trot or self.trotx:
                        a(f"s_and_b32 s{S_T+k}, s{S_T+k}, 0x1fffff")
            tree = self.tree_slices(tag)
            first_free = max(i for i in range(16) if A[i]) + 1
            assert first_free + len(tree) <= 16 and first_free >= self.D + 1
            for i in range(16):
                self.pace()
                self.k_load(i)
                if i == 0:
                    self.tree_loads(tag)
                for blk in A[i]:
                    if not self.nocompute:
                        self.emit(blk)
                if first_free <= i < first_free + len(tree):
                    lab = f"L_tree_{tag}_{i}"
                    a(f"s_cmp_lg_u32 s{S_CNT}, s{S_TT}")
                    a(f"s_cbranch_scc1 {lab}")
                    self.emit(tree[i - first_free])
                    self.lab(lab)
            if exit_cnt == "role":
                c("once the ticket is known, continue with the depth of that role")
                a(f"s_cmp_lt_u32 s{S_CNT}, {self.tsw}")
                a(f"s_cbranch_scc1 L_{tag}")
                a(f"v_mov_b32 v12, {TICK}")
                a("ds_read_b32 v11, v12")
                a("s_waitcnt lgkmcnt(0)")
                a(f"v_readfirstlane_b32 s{S_X+13}, v11")
                a("s_nop 0")
                a(f"s_cmp_eq_u32 s{S_X+13}, 1")
                a("s_cbranch_scc1 L_lateA")
                a(f"s_cmp_eq_u32 s{S_X+13}, 2")
                a("s_cbranch_scc1 L_lateB")
            elif exit_cnt is not None:
                a(f"s_cmp_eq_u32 s{S_CNT}, {exit_cnt}")
                a(f"s_cbranch_scc1 {exit_lab}")
            a(f"s_branch L_{tag}")
        base_pat = list(self.pace_pat)
        if self.dodd is not None:
            c("prefetch depth by compute-die parity (speed only)")
            a(f"s_getreg_b32 s{S_X+10}, hwreg(HW_REG_XCC_ID)")
            a(f"s_bitcmp1_b32 s{S_X+10}, 0")
            a("s_cbranch_scc1 L_odd")
            loop("loop", base_pat, None, None)
            loop("odd", [self.dodd], None, None)
        elif self.dA is not None:
            loop("loop", base_pat, "role", None)
            loop("lateA", [self.dA], None, None)
            loop("lateB", [self.dB], None, None)
        elif self.dlate is None:
            loop("loop", base_pat, None, None)
        else:
            loop("loop", base_pat, self.tlate, "L_late")
            loop("late", [self.dlate], None, None)

        c("---- tail: role, partner flag, last PV")
        S_PREF, S_ROLE0, S_ROLE = S_TMP, 67, S_X+14
        WS = f"s[{SRD_WS}:{SRD_WS+3}]"
        self.lab("L_tail")
        self.stamp(2)
        self.srd(SRD_WS, 20, 21, f"s{S_X+8}", 2*WS_SLOT)
        self.srd(SRD_O, 16, 17, f"s{S_X+5}", 16384)
        a(f"v_mov_b32 v12, {TICK}")
        a("ds_read_b32 v11, v12")
        a(f"v_lshlrev_b32 v14, 3, v{V_LANE}")
        a(f"v_add_u32 v21, 4096, v{V_LIN}")
        a(f"s_lshl_b32 s{S_X+10}, s{S_W}, 2")
        a(f"s_add_u32 s{S_X+10}, s{S_X+10}, {WS_FLAG}")
        a(f"v_mov_b32 v20, s{S_X+10}")
        a("s_waitcnt lgkmcnt(0)")
        a(f"v_readfirstlane_b32 s{S_ROLE0}, v11")
        a(f"buffer_load_dword v19, v20, {WS}, s{S_PART} offen sc1")
        B2, A2 = self.schedule("tail")
        flat = [blk for slot in A2 for blk in slot]
        npv = 8
        rest = flat[:len(flat)-npv]
        pvs = flat[len(flat)-npv:]
        for blk in rest:
            self.emit(blk)
        for k, blk in enumerate(pvs):
            if k == 0:
                a("s_waitcnt vmcnt(9)")
            if k == 4:
                a("s_waitcnt vmcnt(1)")
            self.emit(blk)
        self.stamp(3)
        def partner_loads():
            a(f"s_lshl_b32 s{S_X+12}, s{S_W}, 13")
            a(f"s_add_u32 s{S_X+12}, s{S_X+12}, s{S_PART}")
            a(f"s_lshl_b32 s{S_X+13}, s{S_W}, 9")
            a(f"s_add_u32 s{S_X+13}, s{S_X+13}, s{S_PART}")
            a(f"s_add_u32 s{S_X+13}, s{S_X+13}, {WS_ML}")
            a(f"buffer_load_dwordx2 v[16:17], v14, {WS}, s{S_X+13} offen sc1")
            for i in range(8):
                vo = V_LIN if i < 4 else 21
                a(f"buffer_load_dwordx4 {vr(V_VR+4*i,4)}, v{vo}, {WS}, s{S_X+12} offen offset:{(i&3)*1024} sc1")
        c("second arriver whose partner has already published: fetch its partial now")
        a("s_waitcnt vmcnt(0)")
        a(f"v_readfirstlane_b32 s{S_X+12}, v19")
        a(f"s_mov_b32 s{S_PREF}, 0")
        a(f"s_cmp_lg_u32 s{S_ROLE0}, 2")
        a("s_cbranch_scc1 L_nopref")
        a(f"s_cmp_lg_u32 s{S_X+12}, 1")
        a("s_cbranch_scc1 L_again")
        a(f"s_mov_b32 s{S_PREF}, 1")
        partner_loads()
        a("s_branch L_nopref")
        self.lab("L_again")
        c("not yet: look again after the barrier")
        a(f"s_mov_b32 s{S_PREF}, 2")
        a(f"buffer_load_dword v19, v20, {WS}, s{S_PART} offen sc1")
        self.lab("L_nopref")

        c("---- workgroup combine through LDS")
        t0, t1 = V_T0, V_T0+1
        a(f"v_mov_b32 v10, v{V_M}")
        a(f"v_mov_b32 v12, v{V_L}")
        a(f"v_mov_b32 v11, v{V_L}")
        a("s_nop 1")
        a("v_permlane32_swap_b32 v11, v12")
        a("s_nop 1")
        a("v_add_f32 v11, v11, v12")
        a(f"s_lshl_b32 s{S_X+10}, s{S_W}, 9")
        a(f"s_add_u32 s{S_X+10}, s{S_X+10}, {MLREG}")
        a(f"v_add_u32 v15, s{S_X+10}, v14")
        a("ds_write_b64 v15, v[10:11]")
        a("s_nop 7")
        for k in range(4):
            c(f"part {k}: registers 4k..4k+3 of every accumulator tile go to wave {k}")
            a(f"s_cmp_eq_u32 s{S_W}, {k}")
            a(f"s_cbranch_scc1 L_nopart{k}")
            a(f"s_sub_u32 s{S_X+10}, {k+3}, s{S_W}")
            a(f"s_and_b32 s{S_X+10}, s{S_X+10}, 3")
            a(f"s_lshl_b32 s{S_X+11}, s{S_X+10}, 13")
            a(f"s_add_u32 s{S_X+11}, s{S_X+11}, s{S_KBUF}")
            a(f"s_lshl_b32 s{S_X+12}, s{S_W}, 13")
            a(f"s_add_u32 s{S_X+12}, s{S_X+12}, {EREG}")
            a(f"s_cmp_eq_u32 s{S_X+10}, 2")
            a(f"s_cselect_b32 s{S_X+11}, s{S_X+12}, s{S_X+11}")
            a(f"v_add_u32 v15, s{S_X+11}, v{V_LIN}")
            for i in range(8):
                r = V_O + 16*i + 4*k
                a(f"ds_write_b128 v15, {vr(r,4)} offset:{i*1024}")
            self.lab(f"L_nopart{k}")
        a("s_waitcnt lgkmcnt(0)")
        a("s_barrier")
        self.stamp(4)
        a(f"s_cmp_lg_u32 s{S_PREF}, 2")
        a("s_cbranch_scc1 L_nosecond")
        a("s_waitcnt vmcnt(0)")
        a(f"v_readfirstlane_b32 s{S_X+12}, v19")
        a(f"s_mov_b32 s{S_PREF}, 0")
        a(f"s_cmp_lg_u32 s{S_X+12}, 1")
        a("s_cbranch_scc1 L_nosecond")
        a(f"s_mov_b32 s{S_PREF}, 1")
        partner_loads()
        self.lab("L_nosecond")
        c("(m, l) of the four waves in rotated order: k -> wave (w - k) & 3")
        for k in range(4):
            a(f"s_sub_u32 s{S_X+10}, s{S_W}, {k}")
            a(f"s_and_b32 s{S_X+10}, s{S_X+10}, 3")
            a(f"s_lshl_b32 s{S_X+10}, s{S_X+10}, 9")
            a(f"s_add_u32 s{S_X+10}, s{S_X+10}, {MLREG}")
            a(f"v_add_u32 v15, s{S_X+10}, v14")
            a(f"ds_read_b64 v[{24+2*k}:{25+2*k}], v15")
        a(f"v_mov_b32 v12, {TICK}")
        a("ds_read_b32 v13, v12")
        def part_addr(k):
            a(f"s_sub_u32 s{S_X+10}, s{S_W}, {k}")
            a(f"s_and_b32 s{S_X+10}, s{S_X+10}, 3")
            if k < 3:
                a(f"s_mul_i32 s{S_X+11}, s{S_X+10}, {KBUF}")
                a(f"s_add_u32 s{S_X+11}, s{S_X+11}, {(k-1)*8192}")
            else:
                a(f"s_lshl_b32 s{S_X+11}, s{S_X+10}, 13")
                a(f"s_add_u32 s{S_X+11}, s{S_X+11}, {EREG}")
            a(f"v_add_u32 v15, s{S_X+11}, v{V_LIN}")
        R1, R2, R3 = V_VR+32, V_O, V_O+32
        part_addr(1)
        for i in range(8):
            a(f"ds_read_b128 {vr(R1+4*i,4)}, v15 offset:{i*1024}")
        a("s_waitcnt lgkmcnt(8)")
        a("v_max3_f32 v10, v24, v26, v28")
        a("v_max_f32 v10, v10, v30")
        for k in range(4):
            a(f"v_sub_f32 v{24+2*k}, v{24+2*k}, v10")
        for k in range(4):
            a(f"v_exp_f32 v{24+2*k}, v{24+2*k}")
        a(f"v_readfirstlane_b32 s{S_ROLE}, v13")
        a("v_mul_f32 v11, v24, v25")
        for k in range(1, 4):
            a(f"v_fmac_f32 v11, v{24+2*k}, v{25+2*k}")
        ACC = V_S
        c("own part, selected by wave id")
        for k in range(4):
            if k < 3:
                a(f"s_cmp_lg_u32 s{S_W}, {k}")
                a(f"s_cbranch_scc1 L_own{k+1}")
            for i in range(8):
                for cc in (0, 2):
                    a(f"v_pk_mul_f32 {vr(ACC+4*i+cc,2)}, v[24:25], {vr(V_O+16*i+4*k+cc,2)} op_sel_hi:[0,1]")
            if k < 3:
                a("s_branch L_owndone")
                self.lab(f"L_own{k+1}")
        self.lab("L_owndone")
        part_addr(2)
        for i in range(8):
            a(f"ds_read_b128 {vr(R2+4*i,4)}, v15 offset:{i*1024}")
        a("s_waitcnt lgkmcnt(8)")
        for r in range(0, 32, 2):
            a(f"v_pk_fma_f32 {vr(ACC+r,2)}, v[26:27], {vr(R1+r,2)}, {vr(ACC+r,2)} op_sel_hi:[0,1,1]")
        part_addr(3)
        for i in range(8):
            a(f"ds_read_b128 {vr(R3+4*i,4)}, v15 offset:{i*1024}")
        a("s_waitcnt lgkmcnt(8)")
        for r in range(0, 32, 2):
            a(f"v_pk_fma_f32 {vr(ACC+r,2)}, v[28:29], {vr(R2+r,2)}, {vr(ACC+r,2)} op_sel_hi:[0,1,1]")
        a("s_waitcnt lgkmcnt(0)")
        for r in range(0, 32, 2):
            a(f"v_pk_fma_f32 {vr(ACC+r,2)}, v[30:31], {vr(R3+r,2)}, {vr(ACC+r,2)} op_sel_hi:[0,1,1]")
        self.stamp(5)
        c("v10 = M, v11 = L, acc = v32..v63")
        a(f"s_cmp_lg_u32 s{S_ROLE}, 1")
        a("s_cbranch_scc1 L_second")

        c("---- first arriver: publish the partial result")
        a(f"s_lshl_b32 s{S_X+10}, s{S_W}, 13")
        a(f"s_add_u32 s{S_X+10}, s{S_X+10}, s{S_OWN}")
        a(f"s_lshl_b32 s{S_X+11}, s{S_W}, 9")
        a(f"s_add_u32 s{S_X+11}, s{S_X+11}, s{S_OWN}")
        a(f"s_add_u32 s{S_X+11}, s{S_X+11}, {WS_ML}")
        for i in range(8):
            vo = V_LIN if i < 4 else 21
            a(f"buffer_store_dwordx4 {vr(ACC+4*i,4)}, v{vo}, {WS}, s{S_X+10} offen offset:{(i&3)*1024} sc1")
        a(f"buffer_store_dwordx2 v[10:11], v14, {WS}, s{S_X+11} offen sc1")
        a("v_mov_b32 v19, 1")
        a("s_waitcnt vmcnt(0)")
        a("s_mov_b64 exec, 1")
        a(f"buffer_store_dword v19, v20, {WS}, s{S_OWN} offen sc1")
        a("s_mov_b64 exec, -1")
        a("s_branch L_fin")

        c("---- second arriver: wait for the partner, merge, write the output")
        self.lab("L_second")
        a(f"s_cmp_eq_u32 s{S_PREF}, 1")
        a("s_cbranch_scc1 L_have")
        a(f"s_mov_b32 s{S_X+12}, {self.spin_limit}")
        self.lab("L_poll")
        a(f"buffer_load_dword v19, v20, {WS}, s{S_PART} offen sc1")
        a("s_waitcnt vmcnt(0)")
        a(f"v_readfirstlane_b32 s{S_X+13}, v19")
        a(f"s_sub_u32 s{S_X+12}, s{S_X+12}, 1")
        a(f"s_cmp_eq_u32 s{S_X+12}, 0")
        a("s_cbranch_scc1 L_got")
        a(f"s_cmp_eq_u32 s{S_X+13}, 1")
        a("s_cbranch_scc1 L_got")
        a("s_sleep 1")
        a("s_branch L_poll")
        self.lab("L_got")
        partner_loads()
        self.lab("L_have")
        a("s_waitcnt vmcnt(0)")
        a("v_max_f32 v12, v10, v16")
        a("v_sub_f32 v10, v10, v12")
        a("v_sub_f32 v16, v16, v12")
        a("v_exp_f32 v10, v10")
        a("v_exp_f32 v16, v16")
        a("s_nop 0")
        a("v_mul_f32 v11, v11, v10")
        a("v_fmac_f32 v11, v17, v16")
        a("v_rcp_f32 v11, v11")
        a("s_nop 0")
        a("v_mul_f32 v10, v10, v11")
        a("v_mul_f32 v16, v16, v11")
        a(f"s_lshl_b32 s{S_X+10}, s{S_W}, 7")
        for c2 in (0, 2):
            for i in range(8):
                r = 4*i + c2
                a(f"v_pk_mul_f32 {vr(ACC+r,2)}, v[10:11], {vr(ACC+r,2)} op_sel_hi:[0,1]")
            for i in range(8):
                r = 4*i + c2
                a(f"v_pk_fma_f32 {vr(ACC+r,2)}, v[16:17], {vr(V_VR+r,2)}, {vr(ACC+r,2)} op_sel_hi:[0,1,1]")
            for cc in (c2, c2+1):
                for t in range(4):
                    a(f"v_cvt_pk_bf16_f32 v{V_VR+32+4*cc+t}, v{ACC+4*(2*t)+cc}, v{ACC+4*(2*t+1)+cc}")
                a(f"buffer_store_dwordx4 {vr(V_VR+32+4*cc,4)}, v18, s[{SRD_O}:{SRD_O+3}], s{S_X+10} offen offset:{16*cc} {self.oflag}")
        self.lab("L_fin")
        if self.stamps:
            a("s_waitcnt vmcnt(0) lgkmcnt(0)")
            self.stamp(7)
            a("s_waitcnt lgkmcnt(0)")
            a(f"s_lshl_b32 s{S_X+10}, s2, 2")
            a(f"s_add_u32 s{S_X+10}, s{S_X+10}, s{S_W}")
            a(f"s_lshl_b32 s{S_X+10}, s{S_X+10}, 7")
            a(f"s_add_u32 s{SRD_WS}, s20, {STAMP_BASE}")
            a(f"s_addc_u32 s{SRD_WS+1}, s21, 0")
            a(f"s_mov_b32 s{SRD_WS+2}, 0x100000")
            a(f"s_mov_b32 s{SRD_WS+3}, 0x20000")
            for k in range(16):
                a(f"v_mov_b32 v{32+k}, s{84+k}")
            a(f"s_getreg_b32 s{S_X+11}, hwreg(HW_REG_XCC_ID)")
            a(f"v_mov_b32 v48, s{S_X+11}")
            a(f"s_sub_u32 s{S_X+14}, s{S_X+14}, 1")
            a(f"s_lshl_b32 s{S_X+12}, s{S_TMP}, 1")
            a(f"s_add_u32 s{S_X+14}, s{S_X+14}, s{S_X+12}")
            a(f"v_mov_b32 v49, s{S_X+14}")
            a(f"s_getreg_b32 s{S_X+11}, hwreg(HW_REG_HW_ID)")
            a(f"v_mov_b32 v50, s{S_X+11}")
            a(f"v_mov_b32 v51, 0")
            a("v_mov_b32 v20, 0")
            a("s_mov_b64 exec, 1")
            for k in range(4):
                a(f"buffer_store_dwordx4 {vr(32+4*k,4)}, v20, s[{SRD_WS}:{SRD_WS+3}], s{S_X+10} offen offset:{16*k}")
            a(f"buffer_store_dwordx4 v[48:51], v20, s[{SRD_WS}:{SRD_WS+3}], s{S_X+10} offen offset:64")
            a("s_mov_b64 exec, -1")
        self.lab("L_end")
        a("s_endpgm")
        self.L.append(f""".section .rodata,"a"
.p2align 6
.amdhsa_kernel {K}
  .amdhsa_next_free_vgpr 384
  .amdhsa_next_free_sgpr 102
  .amdhsa_accum_offset 256
  .amdhsa_group_segment_fixed_size 0
  .amdhsa_kernarg_size 72
  .amdhsa_user_sgpr_count 2
  .amdhsa_user_sgpr_kernarg_segment_ptr 1
  .amdhsa_system_sgpr_workgroup_id_x 1
  .amdhsa_float_denorm_mode_32 3
.end_amdhsa_kernel""")
        return HEADER + f"; @launch grid=(256,1,1) block=(256,1,1) lds={LDS_BYTES}\n" + "\n".join(self.L) + "\n"

if __name__ == "__main__":
    import argparse
    ap = argparse.ArgumentParser()
    ap.add_argument("-o", default="cdna_kernels/" + NAME + ".s")
    ap.add_argument("-D", type=int, default=5)
    ap.add_argument("--nt", default="nt")
    ap.add_argument("--stamps", action="store_true")
    ap.add_argument("--nocompute", action="store_true")
    ap.add_argument("--norescale", action="store_true")
    ap.add_argument("--pat", default=None)
    ap.add_argument("--pattern", default="H2")
    ap.add_argument("--dlate", type=int, default=None)
    ap.add_argument("--tlate", type=int, default=13)
    ap.add_argument("--warm", action="store_true")
    ap.add_argument("--diag", default=None)
    ap.add_argument("--xlate", action="store_true")
    ap.add_argument("--trot", type=int, default=0)
    ap.add_argument("--trotx", type=int, default=0)
    ap.add_argument("--xorp", type=int, default=0)
    ap.add_argument("--bits", default=None)
    ap.add_argument("--same", action="store_true")
    ap.add_argument("--xs", type=int, default=0)
    ap.add_argument("--dA", type=int, default=None)
    ap.add_argument("--dB", type=int, default=None)
    ap.add_argument("--tsw", type=int, default=9)
    ap.add_argument("--oflag", default="")
    ap.add_argument("--dodd", type=int, default=None)
    ap.add_argument("--skip", default="")
    ap.add_argument("--qflag", default="")
    ap.add_argument("--qpos", type=int, default=None)
    ap.add_argument("--noearly", action="store_true")
    ap.add_argument("--tk", type=int, default=14)
    args = ap.parse_args()
    g = Gen(D=args.D, nt=args.nt, stamps=args.stamps, nocompute=args.nocompute, norescale=args.norescale,
            pace_pat=[int(x) for x in args.pat.split(',')] if args.pat else None, pattern=args.pattern, dlate=args.dlate, tlate=args.tlate,
            warm=args.warm, early=not args.noearly, tk=args.tk, diag=args.diag, xlate=args.xlate, trot=args.trot, trotx=args.trotx, xorp=args.xorp, bits=args.bits, same=args.same, xs=args.xs, dA=args.dA, dB=args.dB, tsw=args.tsw, oflag=args.oflag, dodd=args.dodd, skip=args.skip, qflag=args.qflag, qpos=args.qpos)
    open(args.o, "w").write(g.build())
```

```python
import sys, struct, math

NAME = "standalone__tree_speculative_verify_tree_attention_over_candidate_token_tree__sampling"

HEADER = """; Kernarg layout for this problem (72 bytes, ptrs only, base s[0:1]):
;   offset  24: d_in[3] k_tree  shape=(16, 8, 16, 256) dtype=bfloat16 strides=(65536, 8192, 512, 2) contiguous=True
;   offset  32: d_in[4] v_tree  shape=(16, 8, 16, 256) dtype=bfloat16 strides=(65536, 8192, 512, 2) contiguous=True
;   offset  40: d_in[5] tree_mask  shape=(16, 16, 16) dtype=bfloat16 strides=(512, 32, 2) contiguous=True
"""

def f32(x):
    return "0x%08x" % struct.unpack("<I", struct.pack("<f", x))[0]

KBLK = 1040
KBUF = 16*KBLK
EREG = 4*KBUF
TREEK = EREG + KBUF
MLREG = EREG + 32768
TICK = MLREG + 2048
LDS_BYTES = 102400

V_LANE, V_LIN, V_VOFF, V_KRD, V_M, V_L, V_ALPHA, V_MNEW = 1, 2, 3, 4, 5, 6, 7, 8
V_T0 = 9
V_P, V_S, V_VP, V_VR, V_O = 24, 32, 48, 64, 128
A_Q, A_K = 0, 64
S_W, S_TMP = 22, 23
SRD_K, SRD_V, SRD_Q, SRD_KT, SRD_VT, SRD_M, SRD_O, SRD_WS = 24, 28, 32, 36, 40, 44, 48, 52
S_T = 56
S_KBUF, S_CNT, S_C, S_PLO, S_PHI, S_OWN, S_PART = 60, 61, 62, 63, 64, 65, 66
S_X = 68
S_HW = 83
S_TT = 67
V_ZERO = 10
S_XS = 3
WS_SLOT = 65536
WS_ML = 32768
WS_FLAG = 36864
STAMP_BASE = 0x2000000

def vr(b, n=1):
    return f"v{b}" if n == 1 else f"v[{b}:{b+n-1}]"
def ar(b, n=1):
    return f"a{b}" if n == 1 else f"a[{b}:{b+n-1}]"
def sr(b, n=1):
    return f"s{b}" if n == 1 else f"s[{b}:{b+n-1}]"

class Gen:
    def __init__(self, D=5, nt="nt", stamps=False, spin_limit=1 << 22, nocompute=False, norescale=False, pace_pat=None, pattern='H2', dlate=None, tlate=13, warm=False, early=True, tk=14, diag=None, xlate=False, trot=0, trotx=0, xorp=0, bits=None, same=False, xs=0, dA=None, dB=None, tsw=9, oflag='', dodd=None, skip='', qflag='', qpos=None, tka=False, sync=None, syncB=None, syncA=None):
        self.D, self.nt, self.stamps, self.spin_limit = D, nt, stamps, spin_limit
        self.nocompute, self.norescale = nocompute, norescale
        self.pace_pat = pace_pat or [D]
        self.D0 = D
        self.npace = 0
        self.dlate, self.tlate = dlate, tlate
        self.warm, self.early, self.tk = warm, early, tk
        self.diag, self.xlate = diag, xlate
        self.trot, self.trotx, self.xorp = trot, trotx, xorp
        self.bits = {o: 12 + i for i, o in enumerate(bits.split())} if bits else None
        self.same, self.xs = same, xs
        self.dA, self.dB, self.tsw = dA, dB, tsw
        self.oflag = oflag
        self.dodd = dodd
        self.skip = skip.split(',')
        self.qflag, self.qpos = qflag, qpos
        self.tka = tka
        self.sync = sync
        self.syncB = [int(x) for x in syncB.split(',')] if syncB else []
        self.syncA = [int(x) for x in syncA.split(',')] if syncA else []
        if dodd is not None:
            self.D = max(self.D, dodd)
        if dA is not None:
            self.D = max(self.D, dA, dB)
        if bits:
            assert sorted(self.bits) == sorted('h w0 w1 j2 j3 t0 t1 t2 t3'.split())
        self.Dpace = D
        if dlate is not None:
            self.D = max(D, dlate)
        self.pattern = {'P0': (14, [0, 4096, 8192, 12288], None), 'P1': (13, [0, 4096, 32768, 36864], None), 'P2': (12, [0, 16384, 32768, 49152], None),
                        'H2': (13, [0, 32768, 65536, 98304], 12), 'H4': (12, [0, 32768, 65536, 98304], 14), 'H6': (13, [0, 4096, 32768, 36864], 16)}[pattern]
        self.shared = self.pattern[2] is not None or self.bits is not None
        self.L = []
        self.nstamp = 0

    def a(self, s):
        for line in s.split("\n"):
            self.L.append("    " + line.strip())
    def lab(self, n):
        self.L.append(n + ":")
    def c(self, s):
        self.L.append("    ; " + s)

    def stamp(self, idx):
        if self.stamps:
            r = 84 + 2*idx
            self.a(f"s_memrealtime s[{r}:{r+1}]")

    def srd(self, q, lo, hi, add, size):
        if add is None:
            self.a(f"s_mov_b32 s{q}, s{lo}\ns_mov_b32 s{q+1}, s{hi}")
        else:
            self.a(f"s_add_u32 s{q}, s{lo}, {add}\ns_addc_u32 s{q+1}, s{hi}, 0")
        self.a(f"s_mov_b32 s{q+2}, {size}\ns_mov_b32 s{q+3}, 0x20000")

    def k_load(self, i):
        imm = (i & 3)*1024
        self.a(f"s_add_u32 m0, s{S_KBUF}, {i*KBLK - imm}")
        self.a("s_nop 0")
        self.a(f"buffer_load_dwordx4 v{V_LIN}, s[{SRD_K}:{SRD_K+3}], s{S_T + (i >> 2)} offen offset:{imm} {self.nt} lds")
    def v_load(self, b):
        imm = (b & 3)*1024
        so = S_T + (b >> 2)
        d = V_VR + 4*b
        self.a(f"buffer_load_dwordx4 {vr(d,4)}, v{V_LIN}, s[{SRD_V}:{SRD_V+3}], s{so} offen offset:{imm} {self.nt}")
    def pace(self):
        d = self.pace_pat[self.npace % len(self.pace_pat)]
        assert d <= self.D
        self.npace += 1
        self.a(f"s_waitcnt vmcnt({d-1})")

    def kfrag_reads(self, lo, hi, vaddr=V_KRD, abase=A_K):
        return [f"ds_read_b128 {ar(abase+4*s,4)}, v{vaddr} offset:{32*s}" for s in range(lo, hi)]
    def qk_mfma(self, lo, hi):
        out = []
        for s in range(lo, hi):
            cin = "0" if s == 0 else vr(V_S, 16)
            out.append(f"v_mfma_f32_32x32x16_bf16 {vr(V_S,16)}, {ar(A_K+4*s,4)}, {ar(A_Q+4*s,4)}, {cin}")
        return out

    def softmax_slices(self, tag):
        S = V_S; t0, t1 = V_T0, V_T0+1
        sl = []
        sl.append(self.kfrag_reads(0, 8))
        sl.append(["s_waitcnt lgkmcnt(0)"] + self.kfrag_reads(8, 16) + self.qk_mfma(0, 4))
        sl.append(self.qk_mfma(4, 8))
        sl.append(["s_waitcnt lgkmcnt(0)"] + self.qk_mfma(8, 12))
        sl.append(self.qk_mfma(12, 16))
        mx = ["s_nop 11",
              f"v_max3_f32 v{t0}, v{S}, v{S+1}, v{S+2}",
              f"v_max3_f32 v{t1}, v{S+3}, v{S+4}, v{S+5}",
              f"v_max3_f32 v{t0}, v{t0}, v{S+6}, v{S+7}",
              f"v_max3_f32 v{t1}, v{t1}, v{S+8}, v{S+9}",
              f"v_max3_f32 v{t0}, v{t0}, v{S+10}, v{S+11}",
              f"v_max3_f32 v{t1}, v{t1}, v{S+12}, v{S+13}",
              f"v_max3_f32 v{t0}, v{t0}, v{S+14}, v{S+15}",
              f"v_max_f32 v{t0}, v{t0}, v{t1}",
              f"v_mov_b32 v{t1}, v{t0}",
              "s_nop 1",
              f"v_permlane32_swap_b32 v{t0}, v{t1}",
              "s_nop 1",
              f"v_max_f32 v{t0}, v{t0}, v{t1}",
              f"v_mul_f32 v{t0}, s{S_C}, v{t0}",
              f"v_max_f32 v{V_MNEW}, v{V_M}, v{t0}",
              f"v_sub_f32 v{t1}, v{V_M}, v{V_MNEW}",
              f"v_exp_f32 v{V_ALPHA}, v{t1}",
              f"v_cmp_gt_f32 vcc, v{V_MNEW}, v{V_M}",
              f"v_mov_b32 v{V_M}, v{V_MNEW}",
              f"v_mul_f32 v{V_L}, v{V_L}, v{V_ALPHA}",
              "s_nop 1"]
        sl.append(mx)
        for part in range(0 if self.norescale else 2):
            lab = f"L_skip_{tag}_{part}"
            blk = [f"s_cbranch_vccz {lab}"]
            blk += [f"v_mul_f32 v{V_O+r}, v{V_ALPHA}, v{V_O+r}" for r in range(64*part, 64*part+64)]
            blk += [lab + ":"]
            sl.append(blk)
        for part in range(2):
            rs = range(8*part, 8*part+8)
            blk = [f"v_fma_f32 v{S+r}, v{S+r}, s{S_C}, -v{V_M}" for r in rs]
            blk += [f"v_exp_f32 v{S+r}, v{S+r}" for r in rs]
            blk += ["s_nop 0"]
            blk += [f"v_cvt_pk_bf16_f32 v{V_P+(r>>1)}, v{S+r}, v{S+r+1}" for r in rs if r % 2 == 0]
            b = 8*part
            blk += [f"v_add_f32 v{t0}, v{S+b}, v{S+b+1}",
                    f"v_add_f32 v{t1}, v{S+b+2}, v{S+b+3}",
                    f"v_add_f32 v{t0}, v{t0}, v{S+b+4}",
                    f"v_add_f32 v{t1}, v{t1}, v{S+b+5}",
                    f"v_add_f32 v{t0}, v{t0}, v{S+b+6}",
                    f"v_add_f32 v{t1}, v{t1}, v{S+b+7}",
                    f"v_add_f32 v{t0}, v{t0}, v{t1}",
                    f"v_add_f32 v{V_L}, v{V_L}, v{t0}"]
            sl.append(blk)
        return sl

    def pv_slices(self):
        out = []
        for s in range(2):
            for c in range(4):
                blo = V_VP + 8*(c & 1)
                bhi = blo + 4
                blk = []
                for t in range(4):
                    r0 = V_VR + 4*(8*s + 2*t) + c
                    r1 = r0 + 4
                    blk.append(f"v_perm_b32 v{blo+t}, v{r1}, v{r0}, s{S_PLO}")
                for t in range(4):
                    r0 = V_VR + 4*(8*s + 2*t) + c
                    r1 = r0 + 4
                    blk.append(f"v_perm_b32 v{bhi+t}, v{r1}, v{r0}, s{S_PHI}")
                blk.append("s_nop 1")
                o0, o1 = V_O + 16*(2*c), V_O + 16*(2*c+1)
                blk.append(f"v_mfma_f32_32x32x16_bf16 {vr(o0,16)}, {vr(blo,4)}, {vr(V_P+4*s,4)}, {vr(o0,16)}")
                blk.append(f"v_mfma_f32_32x32x16_bf16 {vr(o1,16)}, {vr(bhi,4)}, {vr(V_P+4*s,4)}, {vr(o1,16)}")
                out.append((s, blk))
        return out

    def ticket_issue(self, lab):
        a = self.a
        a(f"s_cmp_lg_u32 s{S_CNT}, {self.tk}")
        a(f"s_cbranch_scc1 {lab}")
        a(f"s_cmp_lg_u32 s{S_W}, 0")
        a(f"s_cbranch_scc1 {lab}")
        a(f"s_lshr_b32 s{S_X+10}, s{S_X+2}, 1")
        a(f"s_lshl_b32 s{S_X+10}, s{S_X+10}, 2")
        a(f"s_and_b32 s{S_X+11}, s{S_X+2}, 1")
        a(f"s_lshl_b32 s{S_X+11}, s{S_X+11}, 4")
        a(f"s_lshl_b32 s{S_X+12}, 1, s{S_X+11}")
        a(f"v_mov_b32 v12, s{S_X+10}")
        a(f"v_mov_b32 v13, s{S_X+12}")
        a("s_mov_b64 exec, 1")
        a("global_atomic_add v13, v12, v13, s[18:19] sc0 sc1")
        a("s_mov_b64 exec, -1")
        self.lab(lab)

    def ticket_publish(self, lab):
        a = self.a
        a(f"s_cmp_lg_u32 s{S_CNT}, {self.tk}")
        a(f"s_cbranch_scc1 {lab}")
        a(f"s_cmp_lg_u32 s{S_W}, 0")
        a(f"s_cbranch_scc1 {lab}")
        a(f"s_waitcnt vmcnt({self.D-1})")
        a(f"v_lshrrev_b32 v13, s{S_X+11}, v13")
        a(f"v_and_b32 v13, 0xffff, v13")
        a(f"v_add_u32 v13, 1, v13")
        a(f"v_mov_b32 v12, {TICK}")
        a("s_mov_b64 exec, 1")
        a("ds_write_b32 v12, v13")
        a("s_mov_b64 exec, -1")
        self.lab(lab)

    def koff(self, k):
        return ((k & 1) << self.bits['j2']) + ((k >> 1) << self.bits['j3'])

    def tile_offsets(self):
        a, P = self.a, self.bits
        groups = []
        k = 0
        while k < 4:
            n = 1
            while k + n < 4 and P[f"t{k+n}"] == P[f"t{k}"] + n:
                n += 1
            groups.append((k, n, P[f"t{k}"]))
            k += n
        a(f"s_mov_b32 s{S_T}, s{S_HW}")
        for k, n, pos in groups:
            a(f"s_bfe_u32 s{S_X+10}, s{S_CNT}, {hex((n << 16) | k)}")
            a(f"s_lshl_b32 s{S_X+10}, s{S_X+10}, {pos}")
            a(f"s_add_u32 s{S_T}, s{S_T}, s{S_X+10}")
        for k in range(1, 4):
            a(f"s_add_u32 s{S_T+k}, s{S_T}, {self.koff(k)}")
        if self.xs:
            for k in range(4):
                a(f"s_xor_b32 s{S_T+k}, s{S_T+k}, s{S_XS}")

    def tree_loads(self, tag):
        a = self.a
        lab = f"L_treeld_{tag}"
        a(f"s_cmp_lg_u32 s{S_CNT}, s{S_TT}")
        a(f"s_cbranch_scc1 {lab}")
        self.srd(SRD_KT, 10, 11, f"s{S_X+6}", 8192)
        self.srd(SRD_VT, 12, 13, f"s{S_X+6}", 8192)
        self.srd(SRD_M, 14, 15, f"s{S_X+7}", 512)
        a(f"s_lshl_b32 s{S_X+12}, s{S_X+4}, 10")
        a(f"s_lshl_b32 s{S_X+13}, s{S_X+4}, 2")
        a(f"s_mov_b32 m0, s{S_X+1}")
        a("s_nop 0")
        if 'tree' not in self.skip:
            a(f"buffer_load_dwordx4 v{V_LIN}, s[{SRD_KT}:{SRD_KT+3}], s{S_X+12} offen lds")
            a(f"buffer_load_dwordx4 v[20:23], v{V_LIN}, s[{SRD_VT}:{SRD_VT+3}], s{S_X+12} offen")
            a(f"buffer_load_ushort v19, v17, s[{SRD_M}:{SRD_M+3}], s{S_X+13} offen")
        self.c("wave 0 clears the four hand-off flags of this workgroup")
        a(f"s_cmp_lg_u32 s{S_W}, 0")
        a(f"s_cbranch_scc1 {lab}")
        self.srd(SRD_WS, 20, 21, f"s{S_X+8}", 2*WS_SLOT)
        for k in range(4):
            a(f"v_mov_b32 v{V_ZERO+k}, 0")
        a(f"v_mov_b32 v9, {WS_FLAG}")
        a("s_mov_b64 exec, 1")
        a(f"buffer_store_dwordx4 v[{V_ZERO}:{V_ZERO+3}], v9, s[{SRD_WS}:{SRD_WS+3}], s{S_OWN} offen sc1")
        a("s_mov_b64 exec, -1")
        self.lab(lab)

    def tree_slices(self, tag):
        S = V_S; t0, t1 = V_T0, V_T0+1
        sl = []
        sl.append(self.kfrag_reads(0, 8, 15, A_K) +
                  ["v_lshlrev_b32 v19, 16, v19",
                   "v_sub_f32 v19, 1.0, v19",
                   f"v_mul_f32 v19, {f32(-1e9*math.log2(math.e))}, v19"])
        sl.append(["s_waitcnt lgkmcnt(0)"] + self.kfrag_reads(8, 16, 15, A_K) + self.qk_mfma(0, 8))
        sl.append(["s_waitcnt lgkmcnt(0)"] + self.qk_mfma(8, 16))
        sm = [f"v_mov_b32 v{V_VP+k}, 0" for k in range(16)]
        sm += [f"v_mov_b32 v{V_P+k}, 0" for k in range(1, 4)]
        sm += ["s_nop 4",
               f"v_fma_f32 v{t0}, v{S}, s{S_C}, v19",
               f"v_mov_b32 v{t1}, v{t0}",
               f"v_mov_b32 v12, v{t0}",
               "s_nop 1",
               f"v_permlane32_swap_b32 v{t0}, v{t1}",
               "s_nop 1",
               f"v_max3_f32 v{V_MNEW}, v{V_M}, v{t0}, v{t1}",
               f"v_sub_f32 v{t1}, v{V_M}, v{V_MNEW}",
               f"v_sub_f32 v12, v12, v{V_MNEW}",
               f"v_exp_f32 v{V_ALPHA}, v{t1}",
               f"v_exp_f32 v12, v12",
               f"v_cmp_gt_f32 vcc, v{V_MNEW}, v{V_M}",
               f"v_mov_b32 v{V_M}, v{V_MNEW}",
               f"v_fma_f32 v{V_L}, v{V_L}, v{V_ALPHA}, v12",
               f"v_cvt_pk_bf16_f32 v{V_P}, v12, 0",
               "s_nop 1"]
        sl.append(sm)
        for part in range(2):
            lab = f"L_tskip_{tag}_{part}"
            blk = [f"s_cbranch_vccz {lab}"]
            blk += [f"v_mul_f32 v{V_O+r}, v{V_ALPHA}, v{V_O+r}" for r in range(64*part, 64*part+64)]
            blk += [lab + ":"]
            sl.append(blk)
        for half in range(2):
            blk = []
            for ii in range(4):
                i = 4*half + ii
                buf = V_VP + 4*ii
                src = 20 + (i >> 1)
                if i & 1:
                    blk.append(f"v_lshrrev_b32 v{buf}, 16, v{src}")
                else:
                    blk.append(f"v_and_b32 v{buf}, 0xffff, v{src}")
            blk.append("s_nop 1")
            for ii in range(4):
                i = 4*half + ii
                buf = V_VP + 4*ii
                blk.append(f"v_mfma_f32_32x32x16_bf16 {vr(V_O+16*i,16)}, {vr(buf,4)}, {vr(V_P,4)}, {vr(V_O+16*i,16)}")
            sl.append(blk)
        return sl

    def emit(self, blk):
        for ln in blk:
            if ln.endswith(":"):
                self.lab(ln[:-1])
            else:
                self.a(ln)

    def schedule(self, tag):
        D = self.D
        B = [[] for _ in range(16)]
        A = [[] for _ in range(16)]
        pos = D - 1
        def put(p, blk):
            (B[p] if p < 16 else A[p-16]).append(blk)
        for blk in self.softmax_slices(tag):
            put(pos, blk); pos += 1
        pos = max(pos, 16)
        for s, blk in self.pv_slices():
            if s == 1:
                pos = max(pos, 16 + D - 1)
            assert pos < 32
            put(pos, blk); pos += 1
        return B, A

    def build(self):
        a, c, D = self.a, self.c, self.D
        K = NAME + "_kernel"
        self.L.append(f".amdgcn_target \"amdgcn-amd-amdhsa--gfx950\"\n.text\n.globl {K}\n.p2align 8\n.type {K},@function\n{K}:")
        a("s_cmp_ge_u32 s2, 256")
        a("s_cbranch_scc1 L_end")
        a("s_load_dwordx16 s[4:19], s[0:1], 0")
        a("s_load_dwordx2 s[20:21], s[0:1], 64")
        self.stamp(0)
        c("lane / wave decomposition")
        a(f"v_lshrrev_b32 v9, 6, v0")
        a(f"v_and_b32 v{V_LANE}, 63, v0")
        a(f"v_readfirstlane_b32 s{S_W}, v9")
        a(f"v_lshlrev_b32 v{V_LIN}, 4, v{V_LANE}")
        a(f"v_and_b32 v10, 31, v{V_LANE}")
        a(f"v_lshrrev_b32 v11, 5, v{V_LANE}")
        c("row rho of a tile is key 2*blk + e, blk = (rho&3) + 4*(rho>>3), e = (rho>>2)&1")
        a(f"v_and_b32 v12, 3, v10")
        a(f"v_lshrrev_b32 v13, 3, v10")
        a(f"v_lshl_add_u32 v12, v13, 2, v12")
        a(f"v_bfe_u32 v13, v10, 2, 1")
        c("q row held by this lane's column")
        a(f"v_lshl_add_u32 v16, v12, 1, v13")
        a(f"v_mul_u32_u24 v12, {KBLK}, v12")
        a(f"v_lshl_add_u32 v12, v13, 9, v12")
        a(f"v_lshl_add_u32 v12, v11, 4, v12")
        a(f"s_mul_i32 s{S_KBUF}, s{S_W}, {KBUF}")
        a(f"v_add_u32 v{V_KRD}, s{S_KBUF}, v12")
        a(f"v_add_u32 v14, {EREG}, v12")
        c("tree-K fragment address: rows with bit 2 set read the second key")
        a(f"v_bfe_u32 v15, v10, 2, 1")
        a(f"v_lshlrev_b32 v15, 9, v15")
        a(f"v_lshl_add_u32 v15, v11, 4, v15")
        a(f"s_lshl_b32 s{S_X}, s{S_W}, 10")
        a(f"s_add_u32 s{S_X+1}, s{S_X}, {TREEK}")
        a(f"v_add_u32 v15, s{S_X+1}, v15")
        c("mask offset: (q&15)*32 + h*2")
        a(f"v_and_b32 v17, 15, v16")
        a(f"v_lshlrev_b32 v17, 5, v17")
        a(f"v_lshl_add_u32 v17, v11, 1, v17")
        c("output offset: q*512 + h*64")
        a(f"v_lshlrev_b32 v18, 9, v16")
        a(f"v_lshl_add_u32 v18, v11, 6, v18")
        c("scalar ids: pair p = wg>>1, half = wg&1, w8 = half*4 + wave")
        if self.same:
            a(f"s_lshr_b32 s{S_X+2}, s2, 4")
            a(f"s_lshl_b32 s{S_X+2}, s{S_X+2}, 3")
            a(f"s_and_b32 s{S_X+3}, s2, 7")
            a(f"s_add_u32 s{S_X+2}, s{S_X+2}, s{S_X+3}")
            a(f"s_bfe_u32 s{S_X+3}, s2, 0x10003")
        else:
            a(f"s_lshr_b32 s{S_X+2}, s2, 1")
            a(f"s_and_b32 s{S_X+3}, s2, 1")
        a(f"s_lshl_b32 s{S_X+4}, s{S_X+3}, 2")
        a(f"s_add_u32 s{S_X+4}, s{S_X+4}, s{S_W}")
        a(f"s_lshl_b32 s{S_OWN}, s{S_X+3}, 16")
        a(f"s_xor_b32 s{S_PART}, s{S_OWN}, 0x10000")
        a(f"s_lshl_b32 s{S_X+5}, s{S_X+2}, 14")
        a(f"s_lshl_b32 s{S_X+6}, s{S_X+2}, 13")
        a(f"s_lshr_b32 s{S_X+7}, s{S_X+2}, 3")
        a(f"s_lshl_b32 s{S_X+7}, s{S_X+7}, 9")
        a(f"s_lshl_b32 s{S_X+8}, s{S_X+2}, 17")
        if self.shared:
            a(f"s_lshl_b32 s{S_X+9}, s{S_X+2}, 21")
        else:
            a(f"s_lshl_b32 s{S_X+9}, s2, 20")
        a(f"s_mov_b32 s{S_CNT}, 0")
        c("offsets of the four 4 KiB runs that make up this wave's tile")
        if self.bits:
            P = self.bits
            a(f"s_lshl_b32 s{S_HW}, s{S_X+3}, {P['h']}")
            a(f"s_and_b32 s{S_X+10}, s{S_W}, 1")
            a(f"s_lshl_b32 s{S_X+10}, s{S_X+10}, {P['w0']}")
            a(f"s_add_u32 s{S_HW}, s{S_HW}, s{S_X+10}")
            a(f"s_lshr_b32 s{S_X+10}, s{S_W}, 1")
            a(f"s_lshl_b32 s{S_X+10}, s{S_X+10}, {P['w1']}")
            a(f"s_add_u32 s{S_HW}, s{S_HW}, s{S_X+10}")
            if self.xs:
                c("pair-dependent permutation of address bits 12..14")
                a(f"s_lshr_b32 s{S_XS}, s{S_X+2}, 3")
                a(f"s_add_u32 s{S_XS}, s{S_XS}, s{S_X+2}")
                a(f"s_mul_i32 s{S_XS}, s{S_XS}, {self.xs}")
                a(f"s_and_b32 s{S_XS}, s{S_XS}, 7")
                a(f"s_lshl_b32 s{S_XS}, s{S_XS}, 12")
            self.tile_offsets()
        else:
            wsh, offs, hsh = self.pattern
            a(f"s_lshl_b32 s{S_T}, s{S_W}, {wsh}")
            if hsh is not None:
                a(f"s_lshl_b32 s{S_X+10}, s{S_X+3}, {hsh}")
                a(f"s_add_u32 s{S_T}, s{S_T}, s{S_X+10}")
            for k in range(3, 0, -1):
                a(f"s_add_u32 s{S_T+k}, s{S_T}, {offs[k]}")
        if self.xorp:
            c("pair-dependent permutation of the 4 KiB runs inside a block")
            a(f"s_mul_i32 s{S_X+10}, s{S_X+2}, {self.xorp}")
            a(f"s_and_b32 s{S_X+10}, s{S_X+10}, 31")
            a(f"s_lshl_b32 s{S_X+10}, s{S_X+10}, 12")
            for k in range(4):
                a(f"s_xor_b32 s{S_T+k}, s{S_T+k}, s{S_X+10}")
        if self.trot or self.trotx:
            c("pair-dependent starting block")
            a(f"s_mul_i32 s{S_X+10}, s{S_X+2}, {self.trot}")
            if self.trotx:
                a(f"s_lshr_b32 s{S_X+11}, s{S_X+2}, {self.trotx}")
                a(f"s_add_u32 s{S_X+10}, s{S_X+10}, s{S_X+11}")
            a(f"s_and_b32 s{S_X+10}, s{S_X+10}, 15")
            a(f"s_lshl_b32 s{S_X+10}, s{S_X+10}, 17")
            for k in range(4):
                a(f"s_add_u32 s{S_T+k}, s{S_T+k}, s{S_X+10}")
        a(f"s_mov_b32 s{S_C}, {f32(math.log2(math.e)/16.0)}")
        a(f"s_mov_b32 s{S_PLO}, 0x05040100")
        a(f"s_mov_b32 s{S_PHI}, 0x07060302")
        a("s_waitcnt lgkmcnt(0)")
        if self.diag is None:
            self.stamp(6)
        ksz = (2 if self.shared else 1) << 20
        self.srd(SRD_K, 6, 7, f"s{S_X+9}", ksz)
        D0 = max(self.pace_pat)
        qpos = D0 if self.qpos is None else self.qpos
        def q_loads():
            self.srd(SRD_Q, 4, 5, f"s{S_X+5}", 16384)
            c("Q: four 1 KiB blocks per wave into the shared staging area")
            a(f"s_lshl_b32 s{S_X+10}, s{S_W}, 12")
            a(f"s_mul_i32 s{S_X+11}, s{S_W}, {4*KBLK}")
            a(f"s_add_u32 s{S_X+11}, s{S_X+11}, {EREG}")
            for jj in range(4):
                a(f"s_add_u32 m0, s{S_X+11}, {jj*KBLK - jj*1024}")
                a("s_nop 0")
                if 'q' not in self.skip:
                    a(f"buffer_load_dwordx4 v{V_LIN}, s[{SRD_Q}:{SRD_Q+3}], s{S_X+10} offen offset:{jj*1024} {self.qflag} lds")
        for i in range(D0):
            if i == qpos:
                q_loads()
            self.k_load(i)
        if qpos == D0:
            q_loads()
        self.srd(SRD_V, 8, 9, f"s{S_X+9}", ksz)
        c("role word starts as unknown; this wave's tree step is at iteration 1 + w8")
        a(f"s_add_u32 s{S_TT}, s{S_X+4}, 1")
        a(f"v_mov_b32 v12, 0")
        a(f"v_mov_b32 v9, {TICK}")
        a(f"s_cmp_lg_u32 s{S_W}, 0")
        a("s_cbranch_scc1 L_noclear")
        a("s_mov_b64 exec, 1")
        a("ds_write_b32 v9, v12")
        a("s_mov_b64 exec, -1")
        self.lab("L_noclear")

        c("---- phase A(0): K tile 0; accumulator setup and Q fragments between the loads")
        init = [f"v_mov_b32 v{V_O+r}, 0" for r in range(128)]
        init += [f"v_mov_b32 v{V_M}, 0xff800000", f"v_mov_b32 v{V_L}, 0"]
        nq = 4
        slots = {}
        ninit = D0 + 1
        per = -(-len(init)//ninit)
        for k in range(ninit):
            slots.setdefault(D0 + k, []).append(init[k*per:(k+1)*per])
        qs = max(qpos + D0, 2*D0 - 1) + 1
        qs = min(max(qs, 11), 13)
        assert qpos + D0 <= qs
        slots.setdefault(qs, []).append(["s_waitcnt lgkmcnt(0)", "s_barrier"] + self.kfrag_reads(0, 8, 14, A_Q))
        slots.setdefault(qs+1, []).append(["s_waitcnt lgkmcnt(0)"] + self.kfrag_reads(8, 16, 14, A_Q))
        slots.setdefault(qs+2, []).append(["s_waitcnt lgkmcnt(0)"])
        for i in range(D0, 16):
            if i == qpos and qpos > D0:
                q_loads()
            c_after = i - qpos
            if 0 <= c_after < D0:
                a(f"s_waitcnt vmcnt({D0 - 1 + nq})")
            else:
                self.pace()
            self.k_load(i)
            for blk in slots.get(i, []):
                self.emit(blk)

        self.stamp(1)
        c("---- main loop: phase B(t) = V loads + QK/softmax, phase A(t+1) = K loads + PV")
        step = 131072 if self.shared else 65536
        def loop(tag, pat, exit_cnt, exit_lab):
            B, A = self.schedule(tag)
            self.pace_pat = pat
            self.npace = 0
            self.L.append(".p2align 6")
            self.lab(f"L_{tag}")
            if self.early and not self.tka:
                self.ticket_issue(f"L_tk_{tag}")
            for b in range(16):
                if b in self.syncB:
                    a("s_barrier")
                self.pace()
                self.v_load(b)
                for blk in B[b]:
                    if not self.nocompute:
                        self.emit(blk)
            if self.early and not self.tka:
                self.ticket_publish(f"L_tp_{tag}")
            a(f"s_cmp_eq_u32 s{S_CNT}, 15")
            a("s_cbranch_scc1 L_tail")
            a(f"s_add_u32 s{S_CNT}, s{S_CNT}, 1")
            if self.bits:
                self.tile_offsets()
            else:
                for k in range(4):
                    a(f"s_add_u32 s{S_T+k}, s{S_T+k}, {step}")
                    if self.trot or self.trotx:
                        a(f"s_and_b32 s{S_T+k}, s{S_T+k}, 0x1fffff")
            tree = self.tree_slices(tag)
            first_free = max(i for i in range(16) if A[i]) + 1
            while first_free + len(tree) > 16:
                tree = tree[:4] + [tree[4] + tree[5]] + tree[6:] if len(tree) == 8 else tree[:-2] + [tree[-2] + tree[-1]]
            assert first_free >= self.D + 1
            if self.sync == "all":
                a("s_barrier")
            elif self.sync:
                for t in self.sync.split(','):
                    a(f"s_cmp_lg_u32 s{S_CNT}, {t}")
                    a(f"s_cbranch_scc1 L_nosync_{tag}_{t}")
                    a("s_barrier")
                    self.lab(f"L_nosync_{tag}_{t}")
            if self.early and self.tka:
                self.ticket_issue(f"L_tk_{tag}")
            for i in range(16):
                if i in self.syncA:
                    a("s_barrier")
                self.pace()
                self.k_load(i)
                if i == 0:
                    self.tree_loads(tag)
                for blk in A[i]:
                    if not self.nocompute:
                        self.emit(blk)
                if first_free <= i < first_free + len(tree):
                    lab = f"L_tree_{tag}_{i}"
                    a(f"s_cmp_lg_u32 s{S_CNT}, s{S_TT}")
                    a(f"s_cbranch_scc1 {lab}")
                    self.emit(tree[i - first_free])
                    self.lab(lab)
            if self.early and self.tka:
                self.ticket_publish(f"L_tp_{tag}")
            if exit_cnt == "role":
                c("once the ticket is known, continue with the depth of that role")
                a(f"s_cmp_lt_u32 s{S_CNT}, {self.tsw}")
                a(f"s_cbranch_scc1 L_{tag}")
                a(f"v_mov_b32 v12, {TICK}")
                a("ds_read_b32 v11, v12")
                a("s_waitcnt lgkmcnt(0)")
                a(f"v_readfirstlane_b32 s{S_X+13}, v11")
                a("s_nop 0")
                a(f"s_cmp_eq_u32 s{S_X+13}, 1")
                a("s_cbranch_scc1 L_lateA")
                a(f"s_cmp_eq_u32 s{S_X+13}, 2")
                a("s_cbranch_scc1 L_lateB")
            elif exit_cnt is not None:
                a(f"s_cmp_eq_u32 s{S_CNT}, {exit_cnt}")
                a(f"s_cbranch_scc1 {exit_lab}")
            a(f"s_branch L_{tag}")
        base_pat = list(self.pace_pat)
        if self.dodd is not None:
            c("prefetch depth by compute-die parity (speed only)")
            a(f"s_getreg_b32 s{S_X+10}, hwreg(HW_REG_XCC_ID)")
            a(f"s_bitcmp1_b32 s{S_X+10}, 0")
            a("s_cbranch_scc1 L_odd")
            loop("loop", base_pat, None, None)
            loop("odd", [self.dodd], None, None)
        elif self.dA is not None:
            loop("loop", base_pat, "role", None)
            loop("lateA", [self.dA], None, None)
            loop("lateB", [self.dB], None, None)
        elif self.dlate is None:
            loop("loop", base_pat, None, None)
        else:
            loop("loop", base_pat, self.tlate, "L_late")
            loop("late", [self.dlate], None, None)

        c("---- tail: role, partner flag, last PV")
        S_PREF, S_ROLE0, S_ROLE = S_TMP, 67, S_X+14
        WS = f"s[{SRD_WS}:{SRD_WS+3}]"
        self.lab("L_tail")
        self.stamp(2)
        self.srd(SRD_WS, 20, 21, f"s{S_X+8}", 2*WS_SLOT)
        self.srd(SRD_O, 16, 17, f"s{S_X+5}", 16384)
        a(f"v_mov_b32 v12, {TICK}")
        a("ds_read_b32 v11, v12")
        a(f"v_lshlrev_b32 v14, 3, v{V_LANE}")
        a(f"v_add_u32 v21, 4096, v{V_LIN}")
        a(f"s_lshl_b32 s{S_X+10}, s{S_W}, 2")
        a(f"s_add_u32 s{S_X+10}, s{S_X+10}, {WS_FLAG}")
        a(f"v_mov_b32 v20, s{S_X+10}")
        a("s_waitcnt lgkmcnt(0)")
        a(f"v_readfirstlane_b32 s{S_ROLE0}, v11")
        a(f"buffer_load_dword v19, v20, {WS}, s{S_PART} offen sc1")
        B2, A2 = self.schedule("tail")
        flat = [blk for slot in A2 for blk in slot]
        npv = 8
        rest = flat[:len(flat)-npv]
        pvs = flat[len(flat)-npv:]
        for blk in rest:
            self.emit(blk)
        for k, blk in enumerate(pvs):
            if k == 0:
                a("s_waitcnt vmcnt(9)")
            if k == 4:
                a("s_waitcnt vmcnt(1)")
            self.emit(blk)
        self.stamp(3)
        def partner_loads():
            a(f"s_lshl_b32 s{S_X+12}, s{S_W}, 13")
            a(f"s_add_u32 s{S_X+12}, s{S_X+12}, s{S_PART}")
            a(f"s_lshl_b32 s{S_X+13}, s{S_W}, 9")
            a(f"s_add_u32 s{S_X+13}, s{S_X+13}, s{S_PART}")
            a(f"s_add_u32 s{S_X+13}, s{S_X+13}, {WS_ML}")
            a(f"buffer_load_dwordx2 v[16:17], v14, {WS}, s{S_X+13} offen sc1")
            for i in range(8):
                vo = V_LIN if i < 4 else 21
                a(f"buffer_load_dwordx4 {vr(V_VR+4*i,4)}, v{vo}, {WS}, s{S_X+12} offen offset:{(i&3)*1024} sc1")
        c("second arriver whose partner has already published: fetch its partial now")
        a("s_waitcnt vmcnt(0)")
        a(f"v_readfirstlane_b32 s{S_X+12}, v19")
        a(f"s_mov_b32 s{S_PREF}, 0")
        a(f"s_cmp_lg_u32 s{S_ROLE0}, 2")
        a("s_cbranch_scc1 L_nopref")
        a(f"s_cmp_lg_u32 s{S_X+12}, 1")
        a("s_cbranch_scc1 L_again")
        a(f"s_mov_b32 s{S_PREF}, 1")
        partner_loads()
        a("s_branch L_nopref")
        self.lab("L_again")
        c("not yet: look again after the barrier")
        a(f"s_mov_b32 s{S_PREF}, 2")
        a(f"buffer_load_dword v19, v20, {WS}, s{S_PART} offen sc1")
        self.lab("L_nopref")

        c("---- workgroup combine through LDS")
        t0, t1 = V_T0, V_T0+1
        a(f"v_mov_b32 v10, v{V_M}")
        a(f"v_mov_b32 v12, v{V_L}")
        a(f"v_mov_b32 v11, v{V_L}")
        a("s_nop 1")
        a("v_permlane32_swap_b32 v11, v12")
        a("s_nop 1")
        a("v_add_f32 v11, v11, v12")
        a(f"s_lshl_b32 s{S_X+10}, s{S_W}, 9")
        a(f"s_add_u32 s{S_X+10}, s{S_X+10}, {MLREG}")
        a(f"v_add_u32 v15, s{S_X+10}, v14")
        a("ds_write_b64 v15, v[10:11]")
        a("s_nop 7")
        for k in range(4):
            c(f"part {k}: registers 4k..4k+3 of every accumulator tile go to wave {k}")
            a(f"s_cmp_eq_u32 s{S_W}, {k}")
            a(f"s_cbranch_scc1 L_nopart{k}")
            a(f"s_sub_u32 s{S_X+10}, {k+3}, s{S_W}")
            a(f"s_and_b32 s{S_X+10}, s{S_X+10}, 3")
            a(f"s_lshl_b32 s{S_X+11}, s{S_X+10}, 13")
            a(f"s_add_u32 s{S_X+11}, s{S_X+11}, s{S_KBUF}")
            a(f"s_lshl_b32 s{S_X+12}, s{S_W}, 13")
            a(f"s_add_u32 s{S_X+12}, s{S_X+12}, {EREG}")
            a(f"s_cmp_eq_u32 s{S_X+10}, 2")
            a(f"s_cselect_b32 s{S_X+11}, s{S_X+12}, s{S_X+11}")
            a(f"v_add_u32 v15, s{S_X+11}, v{V_LIN}")
            for i in range(8):
                r = V_O + 16*i + 4*k
                a(f"ds_write_b128 v15, {vr(r,4)} offset:{i*1024}")
            self.lab(f"L_nopart{k}")
        a("s_waitcnt lgkmcnt(0)")
        a("s_barrier")
        self.stamp(4)
        a(f"s_cmp_lg_u32 s{S_PREF}, 2")
        a("s_cbranch_scc1 L_nosecond")
        a("s_waitcnt vmcnt(0)")
        a(f"v_readfirstlane_b32 s{S_X+12}, v19")
        a(f"s_mov_b32 s{S_PREF}, 0")
        a(f"s_cmp_lg_u32 s{S_X+12}, 1")
        a("s_cbranch_scc1 L_nosecond")
        a(f"s_mov_b32 s{S_PREF}, 1")
        partner_loads()
        self.lab("L_nosecond")
        c("(m, l) of the four waves in rotated order: k -> wave (w - k) & 3")
        for k in range(4):
            a(f"s_sub_u32 s{S_X+10}, s{S_W}, {k}")
            a(f"s_and_b32 s{S_X+10}, s{S_X+10}, 3")
            a(f"s_lshl_b32 s{S_X+10}, s{S_X+10}, 9")
            a(f"s_add_u32 s{S_X+10}, s{S_X+10}, {MLREG}")
            a(f"v_add_u32 v15, s{S_X+10}, v14")
            a(f"ds_read_b64 v[{24+2*k}:{25+2*k}], v15")
        a(f"v_mov_b32 v12, {TICK}")
        a("ds_read_b32 v13, v12")
        def part_addr(k):
            a(f"s_sub_u32 s{S_X+10}, s{S_W}, {k}")
            a(f"s_and_b32 s{S_X+10}, s{S_X+10}, 3")
            if k < 3:
                a(f"s_mul_i32 s{S_X+11}, s{S_X+10}, {KBUF}")
                a(f"s_add_u32 s{S_X+11}, s{S_X+11}, {(k-1)*8192}")
            else:
                a(f"s_lshl_b32 s{S_X+11}, s{S_X+10}, 13")
                a(f"s_add_u32 s{S_X+11}, s{S_X+11}, {EREG}")
            a(f"v_add_u32 v15, s{S_X+11}, v{V_LIN}")
        R1, R2, R3 = V_VR+32, V_O, V_O+32
        part_addr(1)
        for i in range(8):
            a(f"ds_read_b128 {vr(R1+4*i,4)}, v15 offset:{i*1024}")
        a("s_waitcnt lgkmcnt(8)")
        a("v_max3_f32 v10, v24, v26, v28")
        a("v_max_f32 v10, v10, v30")
        for k in range(4):
            a(f"v_sub_f32 v{24+2*k}, v{24+2*k}, v10")
        for k in range(4):
            a(f"v_exp_f32 v{24+2*k}, v{24+2*k}")
        a(f"v_readfirstlane_b32 s{S_ROLE}, v13")
        a("v_mul_f32 v11, v24, v25")
        for k in range(1, 4):
            a(f"v_fmac_f32 v11, v{24+2*k}, v{25+2*k}")
        ACC = V_S
        c("own part, selected by wave id")
        for k in range(4):
            if k < 3:
                a(f"s_cmp_lg_u32 s{S_W}, {k}")
                a(f"s_cbranch_scc1 L_own{k+1}")
            for i in range(8):
                for cc in (0, 2):
                    a(f"v_pk_mul_f32 {vr(ACC+4*i+cc,2)}, v[24:25], {vr(V_O+16*i+4*k+cc,2)} op_sel_hi:[0,1]")
            if k < 3:
                a("s_branch L_owndone")
                self.lab(f"L_own{k+1}")
        self.lab("L_owndone")
        part_addr(2)
        for i in range(8):
            a(f"ds_read_b128 {vr(R2+4*i,4)}, v15 offset:{i*1024}")
        a("s_waitcnt lgkmcnt(8)")
        for r in range(0, 32, 2):
            a(f"v_pk_fma_f32 {vr(ACC+r,2)}, v[26:27], {vr(R1+r,2)}, {vr(ACC+r,2)} op_sel_hi:[0,1,1]")
        part_addr(3)
        for i in range(8):
            a(f"ds_read_b128 {vr(R3+4*i,4)}, v15 offset:{i*1024}")
        a("s_waitcnt lgkmcnt(8)")
        for r in range(0, 32, 2):
            a(f"v_pk_fma_f32 {vr(ACC+r,2)}, v[28:29], {vr(R2+r,2)}, {vr(ACC+r,2)} op_sel_hi:[0,1,1]")
        a("s_waitcnt lgkmcnt(0)")
        for r in range(0, 32, 2):
            a(f"v_pk_fma_f32 {vr(ACC+r,2)}, v[30:31], {vr(R3+r,2)}, {vr(ACC+r,2)} op_sel_hi:[0,1,1]")
        self.stamp(5)
        c("v10 = M, v11 = L, acc = v32..v63")
        a(f"s_cmp_lg_u32 s{S_ROLE}, 1")
        a("s_cbranch_scc1 L_second")

        c("---- first arriver: publish the partial result")
        a(f"s_lshl_b32 s{S_X+10}, s{S_W}, 13")
        a(f"s_add_u32 s{S_X+10}, s{S_X+10}, s{S_OWN}")
        a(f"s_lshl_b32 s{S_X+11}, s{S_W}, 9")
        a(f"s_add_u32 s{S_X+11}, s{S_X+11}, s{S_OWN}")
        a(f"s_add_u32 s{S_X+11}, s{S_X+11}, {WS_ML}")
        for i in range(8):
            vo = V_LIN if i < 4 else 21
            a(f"buffer_store_dwordx4 {vr(ACC+4*i,4)}, v{vo}, {WS}, s{S_X+10} offen offset:{(i&3)*1024} sc1")
        a(f"buffer_store_dwordx2 v[10:11], v14, {WS}, s{S_X+11} offen sc1")
        a("v_mov_b32 v19, 1")
        a("s_waitcnt vmcnt(0)")
        a("s_mov_b64 exec, 1")
        a(f"buffer_store_dword v19, v20, {WS}, s{S_OWN} offen sc1")
        a("s_mov_b64 exec, -1")
        a("s_branch L_fin")

        c("---- second arriver: wait for the partner, merge, write the output")
        self.lab("L_second")
        a(f"s_cmp_eq_u32 s{S_PREF}, 1")
        a("s_cbranch_scc1 L_have")
        a(f"s_mov_b32 s{S_X+12}, {self.spin_limit}")
        self.lab("L_poll")
        a(f"buffer_load_dword v19, v20, {WS}, s{S_PART} offen sc1")
        a("s_waitcnt vmcnt(0)")
        a(f"v_readfirstlane_b32 s{S_X+13}, v19")
        a(f"s_sub_u32 s{S_X+12}, s{S_X+12}, 1")
        a(f"s_cmp_eq_u32 s{S_X+12}, 0")
        a("s_cbranch_scc1 L_got")
        a(f"s_cmp_eq_u32 s{S_X+13}, 1")
        a("s_cbranch_scc1 L_got")
        a("s_sleep 1")
        a("s_branch L_poll")
        self.lab("L_got")
        partner_loads()
        self.lab("L_have")
        a("s_waitcnt vmcnt(0)")
        a("v_max_f32 v12, v10, v16")
        a("v_sub_f32 v10, v10, v12")
        a("v_sub_f32 v16, v16, v12")
        a("v_exp_f32 v10, v10")
        a("v_exp_f32 v16, v16")
        a("s_nop 0")
        a("v_mul_f32 v11, v11, v10")
        a("v_fmac_f32 v11, v17, v16")
        a("v_rcp_f32 v11, v11")
        a("s_nop 0")
        a("v_mul_f32 v10, v10, v11")
        a("v_mul_f32 v16, v16, v11")
        a(f"s_lshl_b32 s{S_X+10}, s{S_W}, 7")
        for c2 in (0, 2):
            for i in range(8):
                r = 4*i + c2
                a(f"v_pk_mul_f32 {vr(ACC+r,2)}, v[10:11], {vr(ACC+r,2)} op_sel_hi:[0,1]")
            for i in range(8):
                r = 4*i + c2
                a(f"v_pk_fma_f32 {vr(ACC+r,2)}, v[16:17], {vr(V_VR+r,2)}, {vr(ACC+r,2)} op_sel_hi:[0,1,1]")
            for cc in (c2, c2+1):
                for t in range(4):
                    a(f"v_cvt_pk_bf16_f32 v{V_VR+32+4*cc+t}, v{ACC+4*(2*t)+cc}, v{ACC+4*(2*t+1)+cc}")
                a(f"buffer_store_dwordx4 {vr(V_VR+32+4*cc,4)}, v18, s[{SRD_O}:{SRD_O+3}], s{S_X+10} offen offset:{16*cc} {self.oflag}")
        self.lab("L_fin")
        if self.stamps:
            a("s_waitcnt vmcnt(0) lgkmcnt(0)")
            self.stamp(7)
            a("s_waitcnt lgkmcnt(0)")
            a(f"s_lshl_b32 s{S_X+10}, s2, 2")
            a(f"s_add_u32 s{S_X+10}, s{S_X+10}, s{S_W}")
            a(f"s_lshl_b32 s{S_X+10}, s{S_X+10}, 7")
            a(f"s_add_u32 s{SRD_WS}, s20, {STAMP_BASE}")
            a(f"s_addc_u32 s{SRD_WS+1}, s21, 0")
            a(f"s_mov_b32 s{SRD_WS+2}, 0x100000")
            a(f"s_mov_b32 s{SRD_WS+3}, 0x20000")
            for k in range(16):
                a(f"v_mov_b32 v{32+k}, s{84+k}")
            a(f"s_getreg_b32 s{S_X+11}, hwreg(HW_REG_XCC_ID)")
            a(f"v_mov_b32 v48, s{S_X+11}")
            a(f"s_sub_u32 s{S_X+14}, s{S_X+14}, 1")
            a(f"s_lshl_b32 s{S_X+12}, s{S_TMP}, 1")
            a(f"s_add_u32 s{S_X+14}, s{S_X+14}, s{S_X+12}")
            a(f"v_mov_b32 v49, s{S_X+14}")
            a(f"s_getreg_b32 s{S_X+11}, hwreg(HW_REG_HW_ID)")
            a(f"v_mov_b32 v50, s{S_X+11}")
            a(f"v_mov_b32 v51, 0")
            a("v_mov_b32 v20, 0")
            a("s_mov_b64 exec, 1")
            for k in range(4):
                a(f"buffer_store_dwordx4 {vr(32+4*k,4)}, v20, s[{SRD_WS}:{SRD_WS+3}], s{S_X+10} offen offset:{16*k}")
            a(f"buffer_store_dwordx4 v[48:51], v20, s[{SRD_WS}:{SRD_WS+3}], s{S_X+10} offen offset:64")
            a("s_mov_b64 exec, -1")
        self.lab("L_end")
        a("s_endpgm")
        self.L.append(f""".section .rodata,"a"
.p2align 6
.amdhsa_kernel {K}
  .amdhsa_next_free_vgpr 384
  .amdhsa_next_free_sgpr 102
  .amdhsa_accum_offset 256
  .amdhsa_group_segment_fixed_size 0
  .amdhsa_kernarg_size 72
  .amdhsa_user_sgpr_count 2
  .amdhsa_user_sgpr_kernarg_segment_ptr 1
  .amdhsa_system_sgpr_workgroup_id_x 1
  .amdhsa_float_denorm_mode_32 3
.end_amdhsa_kernel""")
        return HEADER + f"; @launch grid=(256,1,1) block=(256,1,1) lds={LDS_BYTES}\n" + "\n".join(self.L) + "\n"

if __name__ == "__main__":
    import argparse
    ap = argparse.ArgumentParser()
    ap.add_argument("-o", default="cdna_kernels/" + NAME + ".s")
    ap.add_argument("-D", type=int, default=5)
    ap.add_argument("--nt", default="nt")
    ap.add_argument("--stamps", action="store_true")
    ap.add_argument("--nocompute", action="store_true")
    ap.add_argument("--norescale", action="store_true")
    ap.add_argument("--pat", default=None)
    ap.add_argument("--pattern", default="H2")
    ap.add_argument("--dlate", type=int, default=None)
    ap.add_argument("--tlate", type=int, default=13)
    ap.add_argument("--warm", action="store_true")
    ap.add_argument("--diag", default=None)
    ap.add_argument("--xlate", action="store_true")
    ap.add_argument("--trot", type=int, default=0)
    ap.add_argument("--trotx", type=int, default=0)
    ap.add_argument("--xorp", type=int, default=0)
    ap.add_argument("--bits", default=None)
    ap.add_argument("--same", action="store_true")
    ap.add_argument("--xs", type=int, default=0)
    ap.add_argument("--dA", type=int, default=None)
    ap.add_argument("--dB", type=int, default=None)
    ap.add_argument("--tsw", type=int, default=9)
    ap.add_argument("--oflag", default="")
    ap.add_argument("--dodd", type=int, default=None)
    ap.add_argument("--skip", default="")
    ap.add_argument("--qflag", default="")
    ap.add_argument("--qpos", type=int, default=None)
    ap.add_argument("--tka", action="store_true")
    ap.add_argument("--sync", default=None)
    ap.add_argument("--syncB", default=None)
    ap.add_argument("--syncA", default=None)
    ap.add_argument("--noearly", action="store_true")
    ap.add_argument("--tk", type=int, default=14)
    args = ap.parse_args()
    g = Gen(D=args.D, nt=args.nt, stamps=args.stamps, nocompute=args.nocompute, norescale=args.norescale,
            pace_pat=[int(x) for x in args.pat.split(',')] if args.pat else None, pattern=args.pattern, dlate=args.dlate, tlate=args.tlate,
            warm=args.warm, early=not args.noearly, tk=args.tk, diag=args.diag, xlate=args.xlate, trot=args.trot, trotx=args.trotx, xorp=args.xorp, bits=args.bits, same=args.same, xs=args.xs, dA=args.dA, dB=args.dB, tsw=args.tsw, oflag=args.oflag, dodd=args.dodd, skip=args.skip, qflag=args.qflag, qpos=args.qpos, tka=args.tka, sync=args.sync, syncB=args.syncB, syncA=args.syncA)
    open(args.o, "w").write(g.build())
```

```python
import sys, struct, math

NAME = "standalone__tree_speculative_verify_tree_attention_over_candidate_token_tree__sampling"

HEADER = """; Kernarg layout for this problem (72 bytes, ptrs only, base s[0:1]):
;   offset  24: d_in[3] k_tree  shape=(16, 8, 16, 256) dtype=bfloat16 strides=(65536, 8192, 512, 2) contiguous=True
;   offset  32: d_in[4] v_tree  shape=(16, 8, 16, 256) dtype=bfloat16 strides=(65536, 8192, 512, 2) contiguous=True
;   offset  40: d_in[5] tree_mask  shape=(16, 16, 16) dtype=bfloat16 strides=(512, 32, 2) contiguous=True
"""

def f32(x):
    return "0x%08x" % struct.unpack("<I", struct.pack("<f", x))[0]

KBLK = 1040
KBUF = 16*KBLK
EREG = 4*KBUF
TREEK = EREG + KBUF
MLREG = EREG + 32768
TICK = MLREG + 2048
LDS_BYTES = 102400
VLREG = 102400
OTREG = 102400
PLREG = VLREG + 32768

V_LANE, V_LIN, V_VOFF, V_KRD, V_M, V_L, V_ALPHA, V_MNEW = 1, 2, 3, 4, 5, 6, 7, 8
V_T0 = 9
V_P, V_S, V_VP, V_VR, V_O = 24, 32, 48, 64, 128
A_Q, A_K = 0, 64
S_W, S_TMP = 22, 23
SRD_K, SRD_V, SRD_Q, SRD_KT, SRD_VT, SRD_M, SRD_O, SRD_WS = 24, 28, 32, 36, 40, 44, 48, 52
S_T = 56
S_KBUF, S_CNT, S_C, S_PLO, S_PHI, S_OWN, S_PART = 60, 61, 62, 63, 64, 65, 66
S_X = 68
S_HW = 83
S_TT = 67
V_ZERO = 10
S_XS = 3
WS_SLOT = 65536
WS_ML = 32768
WS_FLAG = 36864
STAMP_BASE = 0x2000000

def vr(b, n=1):
    return f"v{b}" if n == 1 else f"v[{b}:{b+n-1}]"
def ar(b, n=1):
    return f"a{b}" if n == 1 else f"a[{b}:{b+n-1}]"
def sr(b, n=1):
    return f"s{b}" if n == 1 else f"s[{b}:{b+n-1}]"

class Gen:
    def __init__(self, D=5, nt="nt", stamps=False, spin_limit=1 << 22, nocompute=False, norescale=False, pace_pat=None, pattern='H2', dlate=None, tlate=13, warm=False, early=True, tk=14, diag=None, xlate=False, trot=0, trotx=0, xorp=0, bits=None, same=False, xs=0, dA=None, dB=None, tsw=9, oflag='', dodd=None, skip='', qflag='', qpos=None, tka=False, sync=None, syncB=None, syncA=None, coop=False, wfin=8, burst=False, otr=False):
        self.D, self.nt, self.stamps, self.spin_limit = D, nt, stamps, spin_limit
        self.nocompute, self.norescale = nocompute, norescale
        self.pace_pat = pace_pat or [D]
        self.D0 = D
        self.npace = 0
        self.dlate, self.tlate = dlate, tlate
        self.warm, self.early, self.tk = warm, early, tk
        self.diag, self.xlate = diag, xlate
        self.trot, self.trotx, self.xorp = trot, trotx, xorp
        self.bits = {o: 12 + i for i, o in enumerate(bits.split())} if bits else None
        self.same, self.xs = same, xs
        self.dA, self.dB, self.tsw = dA, dB, tsw
        self.oflag = oflag
        self.dodd = dodd
        self.skip = skip.split(',')
        self.qflag, self.qpos = qflag, qpos
        self.tka = tka
        self.sync = sync
        self.coop = coop
        self.wfin = wfin
        self.burst = burst
        self.otr = otr
        self.lds_bytes = 139264 if coop else (OTREG + 4*4608 if otr else LDS_BYTES)
        self.syncB = [int(x) for x in syncB.split(',')] if syncB else []
        self.syncA = [int(x) for x in syncA.split(',')] if syncA else []
        if dodd is not None:
            self.D = max(self.D, dodd)
        if dA is not None:
            self.D = max(self.D, dA, dB)
        if bits:
            assert sorted(self.bits) == sorted('h w0 w1 j2 j3 t0 t1 t2 t3'.split())
        self.Dpace = D
        if dlate is not None:
            self.D = max(D, dlate)
        self.pattern = {'P0': (14, [0, 4096, 8192, 12288], None), 'P1': (13, [0, 4096, 32768, 36864], None), 'P2': (12, [0, 16384, 32768, 49152], None),
                        'H2': (13, [0, 32768, 65536, 98304], 12), 'H4': (12, [0, 32768, 65536, 98304], 14), 'H6': (13, [0, 4096, 32768, 36864], 16)}[pattern]
        self.shared = self.pattern[2] is not None or self.bits is not None
        self.L = []
        self.nstamp = 0

    def a(self, s):
        for line in s.split("\n"):
            self.L.append("    " + line.strip())
    def lab(self, n):
        self.L.append(n + ":")
    def c(self, s):
        self.L.append("    ; " + s)

    def stamp(self, idx):
        if self.stamps:
            r = 84 + 2*idx
            self.a(f"s_memrealtime s[{r}:{r+1}]")

    def srd(self, q, lo, hi, add, size):
        if add is None:
            self.a(f"s_mov_b32 s{q}, s{lo}\ns_mov_b32 s{q+1}, s{hi}")
        else:
            self.a(f"s_add_u32 s{q}, s{lo}, {add}\ns_addc_u32 s{q+1}, s{hi}, 0")
        self.a(f"s_mov_b32 s{q+2}, {size}\ns_mov_b32 s{q+3}, 0x20000")

    def k_load(self, i):
        imm = (i & 3)*1024
        self.a(f"s_add_u32 m0, s{S_KBUF}, {i*KBLK - imm}")
        self.a("s_nop 0")
        self.a(f"buffer_load_dwordx4 v{V_LIN}, s[{SRD_K}:{SRD_K+3}], s{S_T + (i >> 2)} offen offset:{imm} {self.nt} lds")
    def v_load(self, b):
        imm = (b & 3)*1024
        so = S_T + (b >> 2)
        d = V_VR + 4*b
        self.a(f"buffer_load_dwordx4 {vr(d,4)}, v{V_LIN}, s[{SRD_V}:{SRD_V+3}], s{so} offen offset:{imm} {self.nt}")
    def pace(self):
        d = self.pace_pat[self.npace % len(self.pace_pat)]
        assert d <= self.D
        self.npace += 1
        self.a(f"s_waitcnt vmcnt({d-1})")

    def kfrag_reads(self, lo, hi, vaddr=V_KRD, abase=A_K):
        return [f"ds_read_b128 {ar(abase+4*s,4)}, v{vaddr} offset:{32*s}" for s in range(lo, hi)]
    def qk_mfma(self, lo, hi):
        out = []
        for s in range(lo, hi):
            cin = "0" if s == 0 else vr(V_S, 16)
            out.append(f"v_mfma_f32_32x32x16_bf16 {vr(V_S,16)}, {ar(A_K+4*s,4)}, {ar(A_Q+4*s,4)}, {cin}")
        return out

    def softmax_slices(self, tag):
        S = V_S; t0, t1 = V_T0, V_T0+1
        sl = []
        sl.append(self.kfrag_reads(0, 8))
        sl.append(["s_waitcnt lgkmcnt(0)"] + self.kfrag_reads(8, 16) + self.qk_mfma(0, 4))
        sl.append(self.qk_mfma(4, 8))
        sl.append(["s_waitcnt lgkmcnt(0)"] + self.qk_mfma(8, 12))
        sl.append(self.qk_mfma(12, 16))
        mx = ["s_nop 11",
              f"v_max3_f32 v{t0}, v{S}, v{S+1}, v{S+2}",
              f"v_max3_f32 v{t1}, v{S+3}, v{S+4}, v{S+5}",
              f"v_max3_f32 v{t0}, v{t0}, v{S+6}, v{S+7}",
              f"v_max3_f32 v{t1}, v{t1}, v{S+8}, v{S+9}",
              f"v_max3_f32 v{t0}, v{t0}, v{S+10}, v{S+11}",
              f"v_max3_f32 v{t1}, v{t1}, v{S+12}, v{S+13}",
              f"v_max3_f32 v{t0}, v{t0}, v{S+14}, v{S+15}",
              f"v_max_f32 v{t0}, v{t0}, v{t1}",
              f"v_mov_b32 v{t1}, v{t0}",
              "s_nop 1",
              f"v_permlane32_swap_b32 v{t0}, v{t1}",
              "s_nop 1",
              f"v_max_f32 v{t0}, v{t0}, v{t1}",
              f"v_mul_f32 v{t0}, s{S_C}, v{t0}",
              f"v_max_f32 v{V_MNEW}, v{V_M}, v{t0}",
              f"v_sub_f32 v{t1}, v{V_M}, v{V_MNEW}",
              f"v_exp_f32 v{V_ALPHA}, v{t1}",
              f"v_cmp_gt_f32 vcc, v{V_MNEW}, v{V_M}",
              f"v_mov_b32 v{V_M}, v{V_MNEW}",
              f"v_mul_f32 v{V_L}, v{V_L}, v{V_ALPHA}",
              "s_nop 1"]
        sl.append(mx)
        for part in range(0 if self.norescale else 2):
            lab = f"L_skip_{tag}_{part}"
            blk = [f"s_cbranch_vccz {lab}"]
            blk += [f"v_mul_f32 v{V_O+r}, v{V_ALPHA}, v{V_O+r}" for r in range(64*part, 64*part+64)]
            blk += [lab + ":"]
            sl.append(blk)
        for part in range(2):
            rs = range(8*part, 8*part+8)
            blk = [f"v_fma_f32 v{S+r}, v{S+r}, s{S_C}, -v{V_M}" for r in rs]
            blk += [f"v_exp_f32 v{S+r}, v{S+r}" for r in rs]
            blk += ["s_nop 0"]
            blk += [f"v_cvt_pk_bf16_f32 v{V_P+(r>>1)}, v{S+r}, v{S+r+1}" for r in rs if r % 2 == 0]
            b = 8*part
            blk += [f"v_add_f32 v{t0}, v{S+b}, v{S+b+1}",
                    f"v_add_f32 v{t1}, v{S+b+2}, v{S+b+3}",
                    f"v_add_f32 v{t0}, v{t0}, v{S+b+4}",
                    f"v_add_f32 v{t1}, v{t1}, v{S+b+5}",
                    f"v_add_f32 v{t0}, v{t0}, v{S+b+6}",
                    f"v_add_f32 v{t1}, v{t1}, v{S+b+7}",
                    f"v_add_f32 v{t0}, v{t0}, v{t1}",
                    f"v_add_f32 v{V_L}, v{V_L}, v{t0}"]
            sl.append(blk)
        return sl

    def pv_slices(self):
        out = []
        for s in range(2):
            for c in range(4):
                blo = V_VP + 8*(c & 1)
                bhi = blo + 4
                blk = []
                for t in range(4):
                    r0 = V_VR + 4*(8*s + 2*t) + c
                    r1 = r0 + 4
                    blk.append(f"v_perm_b32 v{blo+t}, v{r1}, v{r0}, s{S_PLO}")
                for t in range(4):
                    r0 = V_VR + 4*(8*s + 2*t) + c
                    r1 = r0 + 4
                    blk.append(f"v_perm_b32 v{bhi+t}, v{r1}, v{r0}, s{S_PHI}")
                blk.append("s_nop 1")
                o0, o1 = V_O + 16*(2*c), V_O + 16*(2*c+1)
                blk.append(f"v_mfma_f32_32x32x16_bf16 {vr(o0,16)}, {vr(blo,4)}, {vr(V_P+4*s,4)}, {vr(o0,16)}")
                blk.append(f"v_mfma_f32_32x32x16_bf16 {vr(o1,16)}, {vr(bhi,4)}, {vr(V_P+4*s,4)}, {vr(o1,16)}")
                out.append((s, blk))
        return out

    def ticket_issue(self, lab):
        a = self.a
        a(f"s_cmp_lg_u32 s{S_CNT}, {self.tk}")
        a(f"s_cbranch_scc1 {lab}")
        a(f"s_cmp_lg_u32 s{S_W}, 0")
        a(f"s_cbranch_scc1 {lab}")
        a(f"s_lshr_b32 s{S_X+10}, s{S_X+2}, 1")
        a(f"s_lshl_b32 s{S_X+10}, s{S_X+10}, 2")
        a(f"s_and_b32 s{S_X+11}, s{S_X+2}, 1")
        a(f"s_lshl_b32 s{S_X+11}, s{S_X+11}, 4")
        a(f"s_lshl_b32 s{S_X+12}, 1, s{S_X+11}")
        a(f"v_mov_b32 v12, s{S_X+10}")
        a(f"v_mov_b32 v13, s{S_X+12}")
        a("s_mov_b64 exec, 1")
        a("global_atomic_add v13, v12, v13, s[18:19] sc0 sc1")
        a("s_mov_b64 exec, -1")
        self.lab(lab)

    def ticket_publish(self, lab):
        a = self.a
        a(f"s_cmp_lg_u32 s{S_CNT}, {self.tk}")
        a(f"s_cbranch_scc1 {lab}")
        a(f"s_cmp_lg_u32 s{S_W}, 0")
        a(f"s_cbranch_scc1 {lab}")
        a(f"s_waitcnt vmcnt({self.D-1})")
        a(f"v_lshrrev_b32 v13, s{S_X+11}, v13")
        a(f"v_and_b32 v13, 0xffff, v13")
        a(f"v_add_u32 v13, 1, v13")
        a(f"v_mov_b32 v12, {TICK}")
        a("s_mov_b64 exec, 1")
        a("ds_write_b32 v12, v13")
        a("s_mov_b64 exec, -1")
        self.lab(lab)

    def koff(self, k):
        return ((k & 1) << self.bits['j2']) + ((k >> 1) << self.bits['j3'])

    def tile_offsets(self):
        a, P = self.a, self.bits
        groups = []
        k = 0
        while k < 4:
            n = 1
            while k + n < 4 and P[f"t{k+n}"] == P[f"t{k}"] + n:
                n += 1
            groups.append((k, n, P[f"t{k}"]))
            k += n
        a(f"s_mov_b32 s{S_T}, s{S_HW}")
        for k, n, pos in groups:
            a(f"s_bfe_u32 s{S_X+10}, s{S_CNT}, {hex((n << 16) | k)}")
            a(f"s_lshl_b32 s{S_X+10}, s{S_X+10}, {pos}")
            a(f"s_add_u32 s{S_T}, s{S_T}, s{S_X+10}")
        for k in range(1, 4):
            a(f"s_add_u32 s{S_T+k}, s{S_T}, {self.koff(k)}")
        if self.xs:
            for k in range(4):
                a(f"s_xor_b32 s{S_T+k}, s{S_T+k}, s{S_XS}")

    def tree_loads(self, tag):
        a = self.a
        lab = f"L_treeld_{tag}"
        a(f"s_cmp_lg_u32 s{S_CNT}, s{S_TT}")
        a(f"s_cbranch_scc1 {lab}")
        self.srd(SRD_KT, 10, 11, f"s{S_X+6}", 8192)
        self.srd(SRD_VT, 12, 13, f"s{S_X+6}", 8192)
        self.srd(SRD_M, 14, 15, f"s{S_X+7}", 512)
        a(f"s_lshl_b32 s{S_X+12}, s{S_X+4}, 10")
        a(f"s_lshl_b32 s{S_X+13}, s{S_X+4}, 2")
        a(f"s_mov_b32 m0, s{S_X+1}")
        a("s_nop 0")
        if 'tree' not in self.skip:
            a(f"buffer_load_dwordx4 v{V_LIN}, s[{SRD_KT}:{SRD_KT+3}], s{S_X+12} offen lds")
            a(f"buffer_load_dwordx4 v[20:23], v{V_LIN}, s[{SRD_VT}:{SRD_VT+3}], s{S_X+12} offen")
            a(f"buffer_load_ushort v19, v17, s[{SRD_M}:{SRD_M+3}], s{S_X+13} offen")
        self.c("wave 0 clears the four hand-off flags of this workgroup")
        a(f"s_cmp_lg_u32 s{S_W}, 0")
        a(f"s_cbranch_scc1 {lab}")
        self.srd(SRD_WS, 20, 21, f"s{S_X+8}", 2*WS_SLOT)
        for k in range(4):
            a(f"v_mov_b32 v{V_ZERO+k}, 0")
        a(f"v_mov_b32 v9, {WS_FLAG}")
        a("s_mov_b64 exec, 1")
        a(f"buffer_store_dwordx4 v[{V_ZERO}:{V_ZERO+3}], v9, s[{SRD_WS}:{SRD_WS+3}], s{S_OWN} offen sc1")
        a("s_mov_b64 exec, -1")
        self.lab(lab)

    def tree_slices(self, tag):
        S = V_S; t0, t1 = V_T0, V_T0+1
        sl = []
        sl.append(self.kfrag_reads(0, 8, 15, A_K) +
                  ["v_lshlrev_b32 v19, 16, v19",
                   "v_sub_f32 v19, 1.0, v19",
                   f"v_mul_f32 v19, {f32(-1e9*math.log2(math.e))}, v19"])
        sl.append(["s_waitcnt lgkmcnt(0)"] + self.kfrag_reads(8, 16, 15, A_K) + self.qk_mfma(0, 8))
        sl.append(["s_waitcnt lgkmcnt(0)"] + self.qk_mfma(8, 16))
        sm = [f"v_mov_b32 v{V_VP+k}, 0" for k in range(16)]
        sm += [f"v_mov_b32 v{V_P+k}, 0" for k in range(1, 4)]
        sm += ["s_nop 4",
               f"v_fma_f32 v{t0}, v{S}, s{S_C}, v19",
               f"v_mov_b32 v{t1}, v{t0}",
               f"v_mov_b32 v12, v{t0}",
               "s_nop 1",
               f"v_permlane32_swap_b32 v{t0}, v{t1}",
               "s_nop 1",
               f"v_max3_f32 v{V_MNEW}, v{V_M}, v{t0}, v{t1}",
               f"v_sub_f32 v{t1}, v{V_M}, v{V_MNEW}",
               f"v_sub_f32 v12, v12, v{V_MNEW}",
               f"v_exp_f32 v{V_ALPHA}, v{t1}",
               f"v_exp_f32 v12, v12",
               f"v_cmp_gt_f32 vcc, v{V_MNEW}, v{V_M}",
               f"v_mov_b32 v{V_M}, v{V_MNEW}",
               f"v_fma_f32 v{V_L}, v{V_L}, v{V_ALPHA}, v12",
               f"v_cvt_pk_bf16_f32 v{V_P}, v12, 0",
               "s_nop 1"]
        sl.append(sm)
        for part in range(2):
            lab = f"L_tskip_{tag}_{part}"
            blk = [f"s_cbranch_vccz {lab}"]
            blk += [f"v_mul_f32 v{V_O+r}, v{V_ALPHA}, v{V_O+r}" for r in range(64*part, 64*part+64)]
            blk += [lab + ":"]
            sl.append(blk)
        for half in range(2):
            blk = []
            for ii in range(4):
                i = 4*half + ii
                buf = V_VP + 4*ii
                src = 20 + (i >> 1)
                if i & 1:
                    blk.append(f"v_lshrrev_b32 v{buf}, 16, v{src}")
                else:
                    blk.append(f"v_and_b32 v{buf}, 0xffff, v{src}")
            blk.append("s_nop 1")
            for ii in range(4):
                i = 4*half + ii
                buf = V_VP + 4*ii
                blk.append(f"v_mfma_f32_32x32x16_bf16 {vr(V_O+16*i,16)}, {vr(buf,4)}, {vr(V_P,4)}, {vr(V_O+16*i,16)}")
            sl.append(blk)
        return sl

    def emit(self, blk):
        for ln in blk:
            if ln.endswith(":"):
                self.lab(ln[:-1])
            else:
                self.a(ln)

    def schedule(self, tag):
        D = self.D
        B = [[] for _ in range(16)]
        A = [[] for _ in range(16)]
        pos = D - 1
        def put(p, blk):
            (B[p] if p < 16 else A[p-16]).append(blk)
        for blk in self.softmax_slices(tag):
            put(pos, blk); pos += 1
        pos = max(pos, 16)
        for s, blk in self.pv_slices():
            if s == 1:
                pos = max(pos, 16 + D - 1)
            assert pos < 32
            put(pos, blk); pos += 1
        return B, A

    def build(self):
        a, c, D = self.a, self.c, self.D
        K = NAME + "_kernel"
        self.L.append(f".amdgcn_target \"amdgcn-amd-amdhsa--gfx950\"\n.text\n.globl {K}\n.p2align 8\n.type {K},@function\n{K}:")
        a("s_cmp_ge_u32 s2, 256")
        a("s_cbranch_scc1 L_end")
        a("s_load_dwordx16 s[4:19], s[0:1], 0")
        a("s_load_dwordx2 s[20:21], s[0:1], 64")
        self.stamp(0)
        c("lane / wave decomposition")
        a(f"v_lshrrev_b32 v9, 6, v0")
        a(f"v_and_b32 v{V_LANE}, 63, v0")
        a(f"v_readfirstlane_b32 s{S_W}, v9")
        a(f"v_lshlrev_b32 v{V_LIN}, 4, v{V_LANE}")
        a(f"v_and_b32 v10, 31, v{V_LANE}")
        a(f"v_lshrrev_b32 v11, 5, v{V_LANE}")
        c("row rho of a tile is key 2*blk + e, blk = (rho&3) + 4*(rho>>3), e = (rho>>2)&1")
        a(f"v_and_b32 v12, 3, v10")
        a(f"v_lshrrev_b32 v13, 3, v10")
        a(f"v_lshl_add_u32 v12, v13, 2, v12")
        a(f"v_bfe_u32 v13, v10, 2, 1")
        c("q row held by this lane's column")
        a(f"v_lshl_add_u32 v16, v12, 1, v13")
        a(f"v_mul_u32_u24 v12, {KBLK}, v12")
        a(f"v_lshl_add_u32 v12, v13, 9, v12")
        a(f"v_lshl_add_u32 v12, v11, 4, v12")
        a(f"s_mul_i32 s{S_KBUF}, s{S_W}, {KBUF}")
        a(f"v_add_u32 v{V_KRD}, s{S_KBUF}, v12")
        a(f"v_add_u32 v14, {EREG}, v12")
        c("tree-K fragment address: rows with bit 2 set read the second key")
        a(f"v_bfe_u32 v15, v10, 2, 1")
        a(f"v_lshlrev_b32 v15, 9, v15")
        a(f"v_lshl_add_u32 v15, v11, 4, v15")
        a(f"s_lshl_b32 s{S_X}, s{S_W}, 10")
        a(f"s_add_u32 s{S_X+1}, s{S_X}, {TREEK}")
        a(f"v_add_u32 v15, s{S_X+1}, v15")
        c("mask offset: (q&15)*32 + h*2")
        a(f"v_and_b32 v17, 15, v16")
        a(f"v_lshlrev_b32 v17, 5, v17")
        a(f"v_lshl_add_u32 v17, v11, 1, v17")
        c("output offset: q*512 + h*64")
        a(f"v_lshlrev_b32 v18, 9, v16")
        a(f"v_lshl_add_u32 v18, v11, 6, v18")
        c("scalar ids: pair p = wg>>1, half = wg&1, w8 = half*4 + wave")
        if self.same:
            a(f"s_lshr_b32 s{S_X+2}, s2, 4")
            a(f"s_lshl_b32 s{S_X+2}, s{S_X+2}, 3")
            a(f"s_and_b32 s{S_X+3}, s2, 7")
            a(f"s_add_u32 s{S_X+2}, s{S_X+2}, s{S_X+3}")
            a(f"s_bfe_u32 s{S_X+3}, s2, 0x10003")
        else:
            a(f"s_lshr_b32 s{S_X+2}, s2, 1")
            a(f"s_and_b32 s{S_X+3}, s2, 1")
        a(f"s_lshl_b32 s{S_X+4}, s{S_X+3}, 2")
        a(f"s_add_u32 s{S_X+4}, s{S_X+4}, s{S_W}")
        a(f"s_lshl_b32 s{S_OWN}, s{S_X+3}, 16")
        a(f"s_xor_b32 s{S_PART}, s{S_OWN}, 0x10000")
        a(f"s_lshl_b32 s{S_X+5}, s{S_X+2}, 14")
        a(f"s_lshl_b32 s{S_X+6}, s{S_X+2}, 13")
        a(f"s_lshr_b32 s{S_X+7}, s{S_X+2}, 3")
        a(f"s_lshl_b32 s{S_X+7}, s{S_X+7}, 9")
        a(f"s_lshl_b32 s{S_X+8}, s{S_X+2}, 17")
        if self.shared:
            a(f"s_lshl_b32 s{S_X+9}, s{S_X+2}, 21")
        else:
            a(f"s_lshl_b32 s{S_X+9}, s2, 20")
        a(f"s_mov_b32 s{S_CNT}, 0")
        c("offsets of the four 4 KiB runs that make up this wave's tile")
        if self.bits:
            P = self.bits
            a(f"s_lshl_b32 s{S_HW}, s{S_X+3}, {P['h']}")
            a(f"s_and_b32 s{S_X+10}, s{S_W}, 1")
            a(f"s_lshl_b32 s{S_X+10}, s{S_X+10}, {P['w0']}")
            a(f"s_add_u32 s{S_HW}, s{S_HW}, s{S_X+10}")
            a(f"s_lshr_b32 s{S_X+10}, s{S_W}, 1")
            a(f"s_lshl_b32 s{S_X+10}, s{S_X+10}, {P['w1']}")
            a(f"s_add_u32 s{S_HW}, s{S_HW}, s{S_X+10}")
            if self.xs:
                c("pair-dependent permutation of address bits 12..14")
                a(f"s_lshr_b32 s{S_XS}, s{S_X+2}, 3")
                a(f"s_add_u32 s{S_XS}, s{S_XS}, s{S_X+2}")
                a(f"s_mul_i32 s{S_XS}, s{S_XS}, {self.xs}")
                a(f"s_and_b32 s{S_XS}, s{S_XS}, 7")
                a(f"s_lshl_b32 s{S_XS}, s{S_XS}, 12")
            self.tile_offsets()
        else:
            wsh, offs, hsh = self.pattern
            a(f"s_lshl_b32 s{S_T}, s{S_W}, {wsh}")
            if hsh is not None:
                a(f"s_lshl_b32 s{S_X+10}, s{S_X+3}, {hsh}")
                a(f"s_add_u32 s{S_T}, s{S_T}, s{S_X+10}")
            for k in range(3, 0, -1):
                a(f"s_add_u32 s{S_T+k}, s{S_T}, {offs[k]}")
        if self.xorp:
            c("pair-dependent permutation of the 4 KiB runs inside a block")
            a(f"s_mul_i32 s{S_X+10}, s{S_X+2}, {self.xorp}")
            a(f"s_and_b32 s{S_X+10}, s{S_X+10}, 31")
            a(f"s_lshl_b32 s{S_X+10}, s{S_X+10}, 12")
            for k in range(4):
                a(f"s_xor_b32 s{S_T+k}, s{S_T+k}, s{S_X+10}")
        if self.trot or self.trotx:
            c("pair-dependent starting block")
            a(f"s_mul_i32 s{S_X+10}, s{S_X+2}, {self.trot}")
            if self.trotx:
                a(f"s_lshr_b32 s{S_X+11}, s{S_X+2}, {self.trotx}")
                a(f"s_add_u32 s{S_X+10}, s{S_X+10}, s{S_X+11}")
            a(f"s_and_b32 s{S_X+10}, s{S_X+10}, 15")
            a(f"s_lshl_b32 s{S_X+10}, s{S_X+10}, 17")
            for k in range(4):
                a(f"s_add_u32 s{S_T+k}, s{S_T+k}, s{S_X+10}")
        a(f"s_mov_b32 s{S_C}, {f32(math.log2(math.e)/16.0)}")
        a(f"s_mov_b32 s{S_PLO}, 0x05040100")
        a(f"s_mov_b32 s{S_PHI}, 0x07060302")
        a("s_waitcnt lgkmcnt(0)")
        if self.diag is None:
            self.stamp(6)
        ksz = (2 if self.shared else 1) << 20
        self.srd(SRD_K, 6, 7, f"s{S_X+9}", ksz)
        D0 = max(self.pace_pat)
        qpos = D0 if self.qpos is None else self.qpos
        def q_loads():
            self.srd(SRD_Q, 4, 5, f"s{S_X+5}", 16384)
            c("Q: four 1 KiB blocks per wave into the shared staging area")
            a(f"s_lshl_b32 s{S_X+10}, s{S_W}, 12")
            a(f"s_mul_i32 s{S_X+11}, s{S_W}, {4*KBLK}")
            a(f"s_add_u32 s{S_X+11}, s{S_X+11}, {EREG}")
            for jj in range(4):
                a(f"s_add_u32 m0, s{S_X+11}, {jj*KBLK - jj*1024}")
                a("s_nop 0")
                if 'q' not in self.skip:
                    a(f"buffer_load_dwordx4 v{V_LIN}, s[{SRD_Q}:{SRD_Q+3}], s{S_X+10} offen offset:{jj*1024} {self.qflag} lds")
        for i in range(D0):
            if i == qpos:
                q_loads()
            self.k_load(i)
        if qpos == D0:
            q_loads()
        self.srd(SRD_V, 8, 9, f"s{S_X+9}", ksz)
        c("role word starts as unknown; this wave's tree step is at iteration 1 + w8")
        a(f"s_add_u32 s{S_TT}, s{S_X+4}, 1")
        a(f"v_mov_b32 v12, 0")
        a(f"v_mov_b32 v9, {TICK}")
        a(f"s_cmp_lg_u32 s{S_W}, 0")
        a("s_cbranch_scc1 L_noclear")
        a("s_mov_b64 exec, 1")
        a("ds_write_b32 v9, v12")
        a("s_mov_b64 exec, -1")
        self.lab("L_noclear")

        c("---- phase A(0): K tile 0; accumulator setup and Q fragments between the loads")
        init = [f"v_mov_b32 v{V_O+r}, 0" for r in range(128)]
        init += [f"v_mov_b32 v{V_M}, 0xff800000", f"v_mov_b32 v{V_L}, 0"]
        nq = 4
        slots = {}
        ninit = D0 + 1
        per = -(-len(init)//ninit)
        for k in range(ninit):
            slots.setdefault(D0 + k, []).append(init[k*per:(k+1)*per])
        qs = max(qpos + D0, 2*D0 - 1) + 1
        qs = min(max(qs, 11), 13)
        assert qpos + D0 <= qs
        slots.setdefault(qs, []).append(["s_waitcnt lgkmcnt(0)", "s_barrier"] + self.kfrag_reads(0, 8, 14, A_Q))
        slots.setdefault(qs+1, []).append(["s_waitcnt lgkmcnt(0)"] + self.kfrag_reads(8, 16, 14, A_Q))
        slots.setdefault(qs+2, []).append(["s_waitcnt lgkmcnt(0)"])
        for i in range(D0, 16):
            if i == qpos and qpos > D0:
                q_loads()
            c_after = i - qpos
            if 0 <= c_after < D0:
                a(f"s_waitcnt vmcnt({D0 - 1 + nq})")
            else:
                self.pace()
            self.k_load(i)
            for blk in slots.get(i, []):
                self.emit(blk)

        self.stamp(1)
        c("---- main loop: phase B(t) = V loads + QK/softmax, phase A(t+1) = K loads + PV")
        step = 131072 if self.shared else 65536
        def loop(tag, pat, exit_cnt, exit_lab):
            B, A = self.schedule(tag)
            self.pace_pat = pat
            self.npace = 0
            self.L.append(".p2align 6")
            self.lab(f"L_{tag}")
            if self.early and not self.tka:
                self.ticket_issue(f"L_tk_{tag}")
            for b in range(16):
                if b in self.syncB:
                    a("s_barrier")
                self.pace()
                self.v_load(b)
                for blk in B[b]:
                    if not self.nocompute:
                        self.emit(blk)
            if self.early and not self.tka:
                self.ticket_publish(f"L_tp_{tag}")
            if not self.coop:
                a(f"s_cmp_eq_u32 s{S_CNT}, 15")
                a("s_cbranch_scc1 L_tail")
            a(f"s_add_u32 s{S_CNT}, s{S_CNT}, 1")
            if self.bits:
                self.tile_offsets()
            else:
                for k in range(4):
                    a(f"s_add_u32 s{S_T+k}, s{S_T+k}, {step}")
                    if self.trot or self.trotx:
                        a(f"s_and_b32 s{S_T+k}, s{S_T+k}, 0x1fffff")
            tree = self.tree_slices(tag)
            first_free = max(i for i in range(16) if A[i]) + 1
            while first_free + len(tree) > 16:
                tree = tree[:4] + [tree[4] + tree[5]] + tree[6:] if len(tree) == 8 else tree[:-2] + [tree[-2] + tree[-1]]
            assert first_free >= self.D + 1
            if self.sync == "all":
                a("s_barrier")
            elif self.sync:
                for t in self.sync.split(','):
                    a(f"s_cmp_lg_u32 s{S_CNT}, {t}")
                    a(f"s_cbranch_scc1 L_nosync_{tag}_{t}")
                    a("s_barrier")
                    self.lab(f"L_nosync_{tag}_{t}")
            if self.early and self.tka:
                self.ticket_issue(f"L_tk_{tag}")
            for i in range(16):
                if i in self.syncA:
                    a("s_barrier")
                self.pace()
                self.k_load(i)
                if i == 0:
                    self.tree_loads(tag)
                for blk in A[i]:
                    if not self.nocompute:
                        self.emit(blk)
                if first_free <= i < first_free + len(tree):
                    lab = f"L_tree_{tag}_{i}"
                    a(f"s_cmp_lg_u32 s{S_CNT}, s{S_TT}")
                    a(f"s_cbranch_scc1 {lab}")
                    self.emit(tree[i - first_free])
                    self.lab(lab)
            if self.early and self.tka:
                self.ticket_publish(f"L_tp_{tag}")
            if self.coop:
                a(f"s_cmp_eq_u32 s{S_CNT}, 15")
                a("s_cbranch_scc1 L_final")
            if exit_cnt == "role":
                c("once the ticket is known, continue with the depth of that role")
                a(f"s_cmp_lt_u32 s{S_CNT}, {self.tsw}")
                a(f"s_cbranch_scc1 L_{tag}")
                a(f"v_mov_b32 v12, {TICK}")
                a("ds_read_b32 v11, v12")
                a("s_waitcnt lgkmcnt(0)")
                a(f"v_readfirstlane_b32 s{S_X+13}, v11")
                a("s_nop 0")
                a(f"s_cmp_eq_u32 s{S_X+13}, 1")
                a("s_cbranch_scc1 L_lateA")
                a(f"s_cmp_eq_u32 s{S_X+13}, 2")
                a("s_cbranch_scc1 L_lateB")
            elif exit_cnt is not None:
                a(f"s_cmp_eq_u32 s{S_CNT}, {exit_cnt}")
                a(f"s_cbranch_scc1 {exit_lab}")
            a(f"s_branch L_{tag}")
        base_pat = list(self.pace_pat)
        if self.dodd is not None:
            c("prefetch depth by compute-die parity (speed only)")
            a(f"s_getreg_b32 s{S_X+10}, hwreg(HW_REG_XCC_ID)")
            a(f"s_bitcmp1_b32 s{S_X+10}, 0")
            a("s_cbranch_scc1 L_odd")
            loop("loop", base_pat, None, None)
            loop("odd", [self.dodd], None, None)
        elif self.dA is not None:
            loop("loop", base_pat, "role", None)
            loop("lateA", [self.dA], None, None)
            loop("lateB", [self.dB], None, None)
        elif self.dlate is None:
            loop("loop", base_pat, None, None)
        else:
            loop("loop", base_pat, self.tlate, "L_late")
            loop("late", [self.dlate], None, None)

        if self.coop:
            self.final_coop()
        else:
            self.final_plain()
        self.finish()
        return HEADER + f"; @launch grid=(256,1,1) block=(256,1,1) lds={self.lds_bytes}\n" + "\n".join(self.L) + "\n"

    def final_plain(self):
        a, c, D = self.a, self.c, self.D
        c("---- tail: role, partner flag, last PV")
        S_PREF, S_ROLE0, S_ROLE = S_TMP, 67, S_X+14
        WS = f"s[{SRD_WS}:{SRD_WS+3}]"
        self.lab("L_tail")
        self.stamp(2)
        self.srd(SRD_WS, 20, 21, f"s{S_X+8}", 2*WS_SLOT)
        self.srd(SRD_O, 16, 17, f"s{S_X+5}", 16384)
        a(f"v_mov_b32 v12, {TICK}")
        a("ds_read_b32 v11, v12")
        a(f"v_lshlrev_b32 v14, 3, v{V_LANE}")
        a(f"v_add_u32 v21, 4096, v{V_LIN}")
        a(f"s_lshl_b32 s{S_X+10}, s{S_W}, 2")
        a(f"s_add_u32 s{S_X+10}, s{S_X+10}, {WS_FLAG}")
        a(f"v_mov_b32 v20, s{S_X+10}")
        a("s_waitcnt lgkmcnt(0)")
        a(f"v_readfirstlane_b32 s{S_ROLE0}, v11")
        a(f"buffer_load_dword v19, v20, {WS}, s{S_PART} offen sc1")
        B2, A2 = self.schedule("tail")
        flat = [blk for slot in A2 for blk in slot]
        npv = 8
        rest = flat[:len(flat)-npv]
        pvs = flat[len(flat)-npv:]
        for blk in rest:
            self.emit(blk)
        for k, blk in enumerate(pvs):
            if k == 0:
                a("s_waitcnt vmcnt(9)")
            if k == 4:
                a("s_waitcnt vmcnt(1)")
            self.emit(blk)
        self.stamp(3)
        def partner_loads():
            a(f"s_lshl_b32 s{S_X+12}, s{S_W}, 13")
            a(f"s_add_u32 s{S_X+12}, s{S_X+12}, s{S_PART}")
            a(f"s_lshl_b32 s{S_X+13}, s{S_W}, 9")
            a(f"s_add_u32 s{S_X+13}, s{S_X+13}, s{S_PART}")
            a(f"s_add_u32 s{S_X+13}, s{S_X+13}, {WS_ML}")
            a(f"buffer_load_dwordx2 v[16:17], v14, {WS}, s{S_X+13} offen sc1")
            for i in range(8):
                vo = V_LIN if i < 4 else 21
                a(f"buffer_load_dwordx4 {vr(V_VR+4*i,4)}, v{vo}, {WS}, s{S_X+12} offen offset:{(i&3)*1024} sc1")
        c("second arriver whose partner has already published: fetch its partial now")
        a("s_waitcnt vmcnt(0)")
        a(f"v_readfirstlane_b32 s{S_X+12}, v19")
        a(f"s_mov_b32 s{S_PREF}, 0")
        a(f"s_cmp_lg_u32 s{S_ROLE0}, 2")
        a("s_cbranch_scc1 L_nopref")
        a(f"s_cmp_lg_u32 s{S_X+12}, 1")
        a("s_cbranch_scc1 L_again")
        a(f"s_mov_b32 s{S_PREF}, 1")
        partner_loads()
        a("s_branch L_nopref")
        self.lab("L_again")
        c("not yet: look again after the barrier")
        a(f"s_mov_b32 s{S_PREF}, 2")
        a(f"buffer_load_dword v19, v20, {WS}, s{S_PART} offen sc1")
        self.lab("L_nopref")

        c("---- workgroup combine through LDS")
        t0, t1 = V_T0, V_T0+1
        a(f"v_mov_b32 v10, v{V_M}")
        a(f"v_mov_b32 v12, v{V_L}")
        a(f"v_mov_b32 v11, v{V_L}")
        a("s_nop 1")
        a("v_permlane32_swap_b32 v11, v12")
        a("s_nop 1")
        a("v_add_f32 v11, v11, v12")
        a(f"s_lshl_b32 s{S_X+10}, s{S_W}, 9")
        a(f"s_add_u32 s{S_X+10}, s{S_X+10}, {MLREG}")
        a(f"v_add_u32 v15, s{S_X+10}, v14")
        a("ds_write_b64 v15, v[10:11]")
        a("s_nop 7")
        for k in range(4):
            c(f"part {k}: registers 4k..4k+3 of every accumulator tile go to wave {k}")
            a(f"s_cmp_eq_u32 s{S_W}, {k}")
            a(f"s_cbranch_scc1 L_nopart{k}")
            a(f"s_sub_u32 s{S_X+10}, {k+3}, s{S_W}")
            a(f"s_and_b32 s{S_X+10}, s{S_X+10}, 3")
            a(f"s_lshl_b32 s{S_X+11}, s{S_X+10}, 13")
            a(f"s_add_u32 s{S_X+11}, s{S_X+11}, s{S_KBUF}")
            a(f"s_lshl_b32 s{S_X+12}, s{S_W}, 13")
            a(f"s_add_u32 s{S_X+12}, s{S_X+12}, {EREG}")
            a(f"s_cmp_eq_u32 s{S_X+10}, 2")
            a(f"s_cselect_b32 s{S_X+11}, s{S_X+12}, s{S_X+11}")
            a(f"v_add_u32 v15, s{S_X+11}, v{V_LIN}")
            for i in range(8):
                r = V_O + 16*i + 4*k
                a(f"ds_write_b128 v15, {vr(r,4)} offset:{i*1024}")
            self.lab(f"L_nopart{k}")
        a("s_waitcnt lgkmcnt(0)")
        a("s_barrier")
        self.stamp(4)
        a(f"s_cmp_lg_u32 s{S_PREF}, 2")
        a("s_cbranch_scc1 L_nosecond")
        a("s_waitcnt vmcnt(0)")
        a(f"v_readfirstlane_b32 s{S_X+12}, v19")
        a(f"s_mov_b32 s{S_PREF}, 0")
        a(f"s_cmp_lg_u32 s{S_X+12}, 1")
        a("s_cbranch_scc1 L_nosecond")
        a(f"s_mov_b32 s{S_PREF}, 1")
        partner_loads()
        self.lab("L_nosecond")
        c("(m, l) of the four waves in rotated order: k -> wave (w - k) & 3")
        for k in range(4):
            a(f"s_sub_u32 s{S_X+10}, s{S_W}, {k}")
            a(f"s_and_b32 s{S_X+10}, s{S_X+10}, 3")
            a(f"s_lshl_b32 s{S_X+10}, s{S_X+10}, 9")
            a(f"s_add_u32 s{S_X+10}, s{S_X+10}, {MLREG}")
            a(f"v_add_u32 v15, s{S_X+10}, v14")
            a(f"ds_read_b64 v[{24+2*k}:{25+2*k}], v15")
        a(f"v_mov_b32 v12, {TICK}")
        a("ds_read_b32 v13, v12")
        def part_addr(k):
            a(f"s_sub_u32 s{S_X+10}, s{S_W}, {k}")
            a(f"s_and_b32 s{S_X+10}, s{S_X+10}, 3")
            if k < 3:
                a(f"s_mul_i32 s{S_X+11}, s{S_X+10}, {KBUF}")
                a(f"s_add_u32 s{S_X+11}, s{S_X+11}, {(k-1)*8192}")
            else:
                a(f"s_lshl_b32 s{S_X+11}, s{S_X+10}, 13")
                a(f"s_add_u32 s{S_X+11}, s{S_X+11}, {EREG}")
            a(f"v_add_u32 v15, s{S_X+11}, v{V_LIN}")
        R1, R2, R3 = V_VR+32, V_O, V_O+32
        part_addr(1)
        for i in range(8):
            a(f"ds_read_b128 {vr(R1+4*i,4)}, v15 offset:{i*1024}")
        a("s_waitcnt lgkmcnt(8)")
        a("v_max3_f32 v10, v24, v26, v28")
        a("v_max_f32 v10, v10, v30")
        for k in range(4):
            a(f"v_sub_f32 v{24+2*k}, v{24+2*k}, v10")
        for k in range(4):
            a(f"v_exp_f32 v{24+2*k}, v{24+2*k}")
        a(f"v_readfirstlane_b32 s{S_ROLE}, v13")
        a("v_mul_f32 v11, v24, v25")
        for k in range(1, 4):
            a(f"v_fmac_f32 v11, v{24+2*k}, v{25+2*k}")
        ACC = V_S
        c("own part, selected by wave id")
        for k in range(4):
            if k < 3:
                a(f"s_cmp_lg_u32 s{S_W}, {k}")
                a(f"s_cbranch_scc1 L_own{k+1}")
            for i in range(8):
                for cc in (0, 2):
                    a(f"v_pk_mul_f32 {vr(ACC+4*i+cc,2)}, v[24:25], {vr(V_O+16*i+4*k+cc,2)} op_sel_hi:[0,1]")
            if k < 3:
                a("s_branch L_owndone")
                self.lab(f"L_own{k+1}")
        self.lab("L_owndone")
        part_addr(2)
        for i in range(8):
            a(f"ds_read_b128 {vr(R2+4*i,4)}, v15 offset:{i*1024}")
        a("s_waitcnt lgkmcnt(8)")
        for r in range(0, 32, 2):
            a(f"v_pk_fma_f32 {vr(ACC+r,2)}, v[26:27], {vr(R1+r,2)}, {vr(ACC+r,2)} op_sel_hi:[0,1,1]")
        part_addr(3)
        for i in range(8):
            a(f"ds_read_b128 {vr(R3+4*i,4)}, v15 offset:{i*1024}")
        a("s_waitcnt lgkmcnt(8)")
        for r in range(0, 32, 2):
            a(f"v_pk_fma_f32 {vr(ACC+r,2)}, v[28:29], {vr(R2+r,2)}, {vr(ACC+r,2)} op_sel_hi:[0,1,1]")
        a("s_waitcnt lgkmcnt(0)")
        for r in range(0, 32, 2):
            a(f"v_pk_fma_f32 {vr(ACC+r,2)}, v[30:31], {vr(R3+r,2)}, {vr(ACC+r,2)} op_sel_hi:[0,1,1]")
        self.stamp(5)
        c("v10 = M, v11 = L, acc = v32..v63")
        a(f"s_cmp_lg_u32 s{S_ROLE}, 1")
        a("s_cbranch_scc1 L_second")

        c("---- first arriver: publish the partial result")
        a(f"s_lshl_b32 s{S_X+10}, s{S_W}, 13")
        a(f"s_add_u32 s{S_X+10}, s{S_X+10}, s{S_OWN}")
        a(f"s_lshl_b32 s{S_X+11}, s{S_W}, 9")
        a(f"s_add_u32 s{S_X+11}, s{S_X+11}, s{S_OWN}")
        a(f"s_add_u32 s{S_X+11}, s{S_X+11}, {WS_ML}")
        for i in range(8):
            vo = V_LIN if i < 4 else 21
            a(f"buffer_store_dwordx4 {vr(ACC+4*i,4)}, v{vo}, {WS}, s{S_X+10} offen offset:{(i&3)*1024} sc1")
        a(f"buffer_store_dwordx2 v[10:11], v14, {WS}, s{S_X+11} offen sc1")
        a("v_mov_b32 v19, 1")
        a("s_waitcnt vmcnt(0)")
        a("s_mov_b64 exec, 1")
        a(f"buffer_store_dword v19, v20, {WS}, s{S_OWN} offen sc1")
        a("s_mov_b64 exec, -1")
        a("s_branch L_fin")

        c("---- second arriver: wait for the partner, merge, write the output")
        self.lab("L_second")
        a(f"s_cmp_eq_u32 s{S_PREF}, 1")
        a("s_cbranch_scc1 L_have")
        a(f"s_mov_b32 s{S_X+12}, {self.spin_limit}")
        self.lab("L_poll")
        a(f"buffer_load_dword v19, v20, {WS}, s{S_PART} offen sc1")
        a("s_waitcnt vmcnt(0)")
        a(f"v_readfirstlane_b32 s{S_X+13}, v19")
        a(f"s_sub_u32 s{S_X+12}, s{S_X+12}, 1")
        a(f"s_cmp_eq_u32 s{S_X+12}, 0")
        a("s_cbranch_scc1 L_got")
        a(f"s_cmp_eq_u32 s{S_X+13}, 1")
        a("s_cbranch_scc1 L_got")
        a("s_sleep 1")
        a("s_branch L_poll")
        self.lab("L_got")
        partner_loads()
        self.lab("L_have")
        a("s_waitcnt vmcnt(0)")
        a("v_max_f32 v12, v10, v16")
        a("v_sub_f32 v10, v10, v12")
        a("v_sub_f32 v16, v16, v12")
        a("v_exp_f32 v10, v10")
        a("v_exp_f32 v16, v16")
        a("s_nop 0")
        a("v_mul_f32 v11, v11, v10")
        a("v_fmac_f32 v11, v17, v16")
        a("v_rcp_f32 v11, v11")
        a("s_nop 0")
        a("v_mul_f32 v10, v10, v11")
        a("v_mul_f32 v16, v16, v11")
        a(f"s_lshl_b32 s{S_X+10}, s{S_W}, 7")
        if self.otr:
            c("output tile through LDS so that every store writes whole 128-byte lines")
            a(f"s_mul_i32 s{S_X+11}, s{S_W}, 4608")
            a(f"s_add_u32 s{S_X+11}, s{S_X+11}, {OTREG}")
            a("v_lshrrev_b32 v12, 9, v18")
            a("v_mul_u32_u24 v12, 144, v12")
            a("v_and_b32 v13, 64, v18")
            a(f"v_add3_u32 v12, v12, v13, s{S_X+11}")
            a(f"v_lshrrev_b32 v13, 3, v{V_LANE}")
            a("v_mul_u32_u24 v15, 144, v13")
            a(f"v_and_b32 v9, 7, v{V_LANE}")
            a("v_lshlrev_b32 v9, 4, v9")
            a(f"v_add3_u32 v15, v15, v9, s{S_X+11}")
            a("v_lshl_add_u32 v13, v13, 9, v9")
        for c2 in (0, 2):
            for i in range(8):
                r = 4*i + c2
                a(f"v_pk_mul_f32 {vr(ACC+r,2)}, v[10:11], {vr(ACC+r,2)} op_sel_hi:[0,1]")
            for i in range(8):
                r = 4*i + c2
                a(f"v_pk_fma_f32 {vr(ACC+r,2)}, v[16:17], {vr(V_VR+r,2)}, {vr(ACC+r,2)} op_sel_hi:[0,1,1]")
            for cc in (c2, c2+1):
                for t in range(4):
                    a(f"v_cvt_pk_bf16_f32 v{V_VR+32+4*cc+t}, v{ACC+4*(2*t)+cc}, v{ACC+4*(2*t+1)+cc}")
                if self.otr:
                    a(f"ds_write_b128 v12, {vr(V_VR+32+4*cc,4)} offset:{16*cc}")
                else:
                    a(f"buffer_store_dwordx4 {vr(V_VR+32+4*cc,4)}, v18, s[{SRD_O}:{SRD_O+3}], s{S_X+10} offen offset:{16*cc} {self.oflag}")
        if self.otr:
            a("s_waitcnt lgkmcnt(0)")
            for k in range(4):
                a(f"ds_read_b128 {vr(V_VR+48+4*k,4)}, v15 offset:{k*8*144}")
            for k in range(1, 4):
                a(f"s_add_u32 s{S_X+10+k}, s{S_X+10}, {4096*k}")
            for k in range(4):
                a(f"s_waitcnt lgkmcnt({3-k})")
                a(f"buffer_store_dwordx4 {vr(V_VR+48+4*k,4)}, v13, s[{SRD_O}:{SRD_O+3}], s{S_X+10+k} offen {self.oflag}")

    def final_coop(self):
        a, c, D = self.a, self.c, self.D
        assert D == 5
        S_PREF, S_ROLE = S_TMP, S_X+14
        WS = f"s[{SRD_WS}:{SRD_WS+3}]"
        S = V_S; t0, t1 = V_T0, V_T0+1
        ACC = V_VR + 32
        R1, R2, R3 = V_S, V_O, V_O + 32
        VD, PP, AB = V_O + 64, V_O + 96, V_O + 112
        def acc(i, cc):
            return ACC + 16*(i & 1) + 4*(i >> 1) + cc
        def partner_loads():
            out = [f"s_lshl_b32 s{S_X+12}, s{S_W}, 13",
                   f"s_add_u32 s{S_X+12}, s{S_X+12}, s{S_PART}",
                   f"s_lshl_b32 s{S_X+13}, s{S_W}, 9",
                   f"s_add_u32 s{S_X+13}, s{S_X+13}, s{S_PART}",
                   f"s_add_u32 s{S_X+13}, s{S_X+13}, {WS_ML}",
                   f"buffer_load_dwordx2 v[16:17], v14, {WS}, s{S_X+13} offen sc1"]
            for i in range(8):
                vo = V_LIN if i < 4 else 21
                out.append(f"buffer_load_dwordx4 {vr(V_VR+4*i,4)}, v{vo}, {WS}, s{S_X+12} offen offset:{(i&3)*1024} sc1")
            return out
        def v_dma(b):
            imm = (b & 3)*1024
            a(f"s_add_u32 m0, s{S_X+10}, {(b-8)*1024 - imm}")
            a("s_nop 0")
            a(f"buffer_load_dwordx4 v{V_LIN}, s[{SRD_V}:{SRD_V+3}], s{S_T + (b >> 2)} offen offset:{imm} {self.nt} lds")

        sl = {b: [] for b in range(16)}
        sl[0] += [f"s_add_u32 s{SRD_WS}, s20, s{S_X+8}", f"s_addc_u32 s{SRD_WS+1}, s21, 0", f"s_mov_b32 s{SRD_WS+2}, {2*WS_SLOT}", f"s_mov_b32 s{SRD_WS+3}, 0x20000",
                  f"s_add_u32 s{SRD_O}, s16, s{S_X+5}", f"s_addc_u32 s{SRD_O+1}, s17, 0", f"s_mov_b32 s{SRD_O+2}, 16384", f"s_mov_b32 s{SRD_O+3}, 0x20000",
                  f"v_lshlrev_b32 v14, 3, v{V_LANE}",
                  f"v_add_u32 v21, 4096, v{V_LIN}",
                  f"s_lshl_b32 s{S_X+11}, s{S_W}, 2",
                  f"s_add_u32 s{S_X+11}, s{S_X+11}, {WS_FLAG}",
                  f"v_mov_b32 v20, s{S_X+11}",
                  f"s_lshl_b32 s{S_X+10}, s{S_W}, 13",
                  f"s_add_u32 s{S_X+10}, s{S_X+10}, {VLREG}"]
        sl[1] += [f"s_lshl_b32 s{S_X+11}, s{S_W}, 9",
                  f"s_add_u32 s{S_X+11}, s{S_X+11}, {MLREG}",
                  f"v_add_u32 v15, s{S_X+11}, v14",
                  f"v_add_u32 v22, {MLREG}, v14",
                  f"v_and_b32 v9, 3, v{V_LANE}",
                  f"v_lshlrev_b32 v23, 4, v9",
                  f"v_bfe_u32 v9, v{V_LANE}, 3, 2",
                  f"v_lshl_add_u32 v23, v9, 2, v23",
                  f"v_bfe_u32 v9, v{V_LANE}, 2, 1",
                  f"v_lshl_add_u32 v23, v9, 6, v23",
                  f"v_lshrrev_b32 v9, 5, v{V_LANE}",
                  f"v_lshl_add_u32 v23, v9, 9, v23",
                  f"s_lshl_b32 s{S_X+11}, s{S_W}, 7",
                  f"s_add_u32 s{S_X+11}, s{S_X+11}, {VLREG}",
                  f"v_add_u32 v23, s{S_X+11}, v23"]
        sl[4] += self.kfrag_reads(0, 8)
        sl[5] += ["s_waitcnt lgkmcnt(0)"] + self.kfrag_reads(8, 16) + self.qk_mfma(0, 4)
        sl[6] += self.qk_mfma(4, 8)
        sl[7] += ["s_waitcnt lgkmcnt(0)"] + self.qk_mfma(8, 16)
        sl[8] += ["s_nop 11",
                  f"v_max3_f32 v{t0}, v{S}, v{S+1}, v{S+2}",
                  f"v_max3_f32 v{t1}, v{S+3}, v{S+4}, v{S+5}",
                  f"v_max3_f32 v{t0}, v{t0}, v{S+6}, v{S+7}",
                  f"v_max3_f32 v{t1}, v{t1}, v{S+8}, v{S+9}",
                  f"v_max3_f32 v{t0}, v{t0}, v{S+10}, v{S+11}",
                  f"v_max3_f32 v{t1}, v{t1}, v{S+12}, v{S+13}",
                  f"v_max3_f32 v{t0}, v{t0}, v{S+14}, v{S+15}",
                  f"v_max_f32 v{t0}, v{t0}, v{t1}",
                  f"v_mov_b32 v{t1}, v{t0}",
                  "s_nop 1",
                  f"v_permlane32_swap_b32 v{t0}, v{t1}",
                  "s_nop 1",
                  f"v_max_f32 v{t0}, v{t0}, v{t1}",
                  f"v_mul_f32 v{t0}, s{S_C}, v{t0}",
                  f"v_max_f32 v{t0}, v{V_M}, v{t0}",
                  f"ds_write_b32 v15, v{t0}",
                  "s_waitcnt lgkmcnt(0)",
                  "s_barrier"]
        sl[8] += [f"ds_read_b32 v{24+k}, v22 offset:{512*k}" for k in range(4)]
        sl[8] += [f"v_mov_b32 v12, {TICK}", "ds_read_b32 v13, v12"]
        sl[9] += ["s_waitcnt lgkmcnt(0)",
                  f"v_max3_f32 v{t0}, v24, v25, v26",
                  f"v_readfirstlane_b32 s{S_ROLE}, v13",
                  f"v_max_f32 v{V_MNEW}, v{t0}, v27",
                  f"v_sub_f32 v{t1}, v{V_M}, v{V_MNEW}",
                  f"v_exp_f32 v{V_ALPHA}, v{t1}",
                  f"v_cmp_gt_f32 vcc, v{V_MNEW}, v{V_M}",
                  f"v_mov_b32 v{V_M}, v{V_MNEW}",
                  f"v_mul_f32 v{V_L}, v{V_L}, v{V_ALPHA}",
                  f"buffer_load_dword v19, v20, {WS}, s{S_PART} offen sc1",
                  "s_nop 1"]
        for part in range(2):
            lab = f"L_skip_final_{part}"
            sl[10+part] += [f"s_cbranch_vccz {lab}"] + \
                [f"v_mul_f32 v{V_O+r}, v{V_ALPHA}, v{V_O+r}" for r in range(64*part, 64*part+64)] + [lab + ":"]
        for part in range(2):
            rs = range(8*part, 8*part+8)
            blk = [f"v_fma_f32 v{S+r}, v{S+r}, s{S_C}, -v{V_M}" for r in rs]
            blk += [f"v_exp_f32 v{S+r}, v{S+r}" for r in rs]
            blk += ["s_nop 0"]
            blk += [f"v_cvt_pk_bf16_f32 v{V_P+(r>>1)}, v{S+r}, v{S+r+1}" for r in rs if r % 2 == 0]
            b = 8*part
            blk += [f"v_add_f32 v{t0}, v{S+b}, v{S+b+1}",
                    f"v_add_f32 v{t1}, v{S+b+2}, v{S+b+3}",
                    f"v_add_f32 v{t0}, v{t0}, v{S+b+4}",
                    f"v_add_f32 v{t1}, v{t1}, v{S+b+5}",
                    f"v_add_f32 v{t0}, v{t0}, v{S+b+6}",
                    f"v_add_f32 v{t1}, v{t1}, v{S+b+7}",
                    f"v_add_f32 v{t0}, v{t0}, v{t1}",
                    f"v_add_f32 v{V_L}, v{V_L}, v{t0}"]
            sl[12+part] += blk
        sl[13] += [f"s_lshl_b32 s{S_X+11}, s{S_W}, 10",
                   f"s_add_u32 s{S_X+11}, s{S_X+11}, {PLREG}",
                   f"v_add_u32 v12, s{S_X+11}, v{V_LIN}",
                   f"ds_write_b128 v12, {vr(V_P+4,4)}",
                   f"v_mov_b32 v11, v{V_L}",
                   f"v_mov_b32 v{t0}, v{V_L}",
                   "s_nop 1",
                   f"v_permlane32_swap_b32 v11, v{t0}",
                   "s_nop 1",
                   f"v_add_f32 v11, v11, v{t0}",
                   "ds_write_b32 v15, v11 offset:4"]
        pv0 = [blk for s_, blk in self.pv_slices() if s_ == 0]
        sl[14] += pv0[0] + pv0[1]
        sl[15] += pv0[2] + pv0[3]

        c("---- final phase: V of the last tile, first half into registers, second half into LDS")
        self.lab("L_final")
        self.pace_pat = [D]
        W = self.wfin
        if self.burst:
            self.emit(sl[0])
            for b in range(16):
                a(f"s_waitcnt vmcnt({min(W-1, 63)})")
                if b < 8:
                    self.v_load(b)
                else:
                    v_dma(b)
            self.stamp(2)
            self.emit(sl[1])
            a("s_waitcnt vmcnt(16)")
            for b in range(4, 14):
                self.emit(sl[b])
            a("s_waitcnt vmcnt(9)")
            self.emit(sl[14])
            self.emit(sl[15])
        else:
            for b in range(8):
                self.pace()
                self.v_load(b)
                self.emit(sl[b])
            for b in range(8, 12):
                a(f"s_waitcnt vmcnt({W-1})")
                v_dma(b)
            self.emit(sl[8])
            c("role is known after the barrier: look at the partner's flag")
            self.emit(sl[9])
            for b in range(12, 16):
                a(f"s_waitcnt vmcnt({W-1})")
                v_dma(b)
            self.stamp(2)
            for b in range(10, 14):
                self.emit(sl[b])
            a("s_waitcnt vmcnt(9)")
            self.emit(sl[14])
            self.emit(sl[15])
            a("s_waitcnt vmcnt(4)")
        if self.burst:
            c("second arriver: the flag read is examined once the last loads have landed")
            a(f"s_cmp_eq_u32 s{S_ROLE}, 2")
            a(f"s_cselect_b32 s{S_PREF}, 2, 0")
        else:
            c("second arriver: fetch the partner's partial if it is already published, else look again later")
            a(f"v_readfirstlane_b32 s{S_X+12}, v19")
            a(f"s_mov_b32 s{S_PREF}, 0")
            a(f"s_cmp_lg_u32 s{S_ROLE}, 2")
            a("s_cbranch_scc1 L_nopref")
            a(f"s_cmp_lg_u32 s{S_X+12}, 1")
            a("s_cbranch_scc1 L_again")
            a(f"s_mov_b32 s{S_PREF}, 1")
            self.emit(partner_loads())
            a("s_branch L_nopref")
            self.lab("L_again")
            a(f"s_mov_b32 s{S_PREF}, 2")
            a(f"buffer_load_dword v19, v20, {WS}, s{S_PART} offen sc1")
            self.lab("L_nopref")
        a("s_nop 7")
        self.stamp(3)
        for k in range(4):
            c(f"part {k}: registers 4k..4k+3 of every accumulator tile go to wave {k}")
            a(f"s_cmp_eq_u32 s{S_W}, {k}")
            a(f"s_cbranch_scc1 L_nopart{k}")
            a(f"s_sub_u32 s{S_X+10}, {k+3}, s{S_W}")
            a(f"s_and_b32 s{S_X+10}, s{S_X+10}, 3")
            a(f"s_lshl_b32 s{S_X+11}, s{S_X+10}, 13")
            a(f"s_add_u32 s{S_X+11}, s{S_X+11}, s{S_KBUF}")
            a(f"s_lshl_b32 s{S_X+12}, s{S_W}, 13")
            a(f"s_add_u32 s{S_X+12}, s{S_X+12}, {EREG}")
            a(f"s_cmp_eq_u32 s{S_X+10}, 2")
            a(f"s_cselect_b32 s{S_X+11}, s{S_X+12}, s{S_X+11}")
            a(f"v_add_u32 v15, s{S_X+11}, v{V_LIN}")
            for i in range(8):
                r = V_O + 16*i + 4*k
                a(f"ds_write_b128 v15, {vr(r,4)} offset:{i*1024}")
            self.lab(f"L_nopart{k}")
        a("s_waitcnt lgkmcnt(0)")
        a("s_barrier")
        self.stamp(4)
        def part_addr(k):
            a(f"s_sub_u32 s{S_X+10}, s{S_W}, {k}")
            a(f"s_and_b32 s{S_X+10}, s{S_X+10}, 3")
            if k < 3:
                a(f"s_mul_i32 s{S_X+11}, s{S_X+10}, {KBUF}")
                a(f"s_add_u32 s{S_X+11}, s{S_X+11}, {(k-1)*8192}")
            else:
                a(f"s_lshl_b32 s{S_X+11}, s{S_X+10}, 13")
                a(f"s_add_u32 s{S_X+11}, s{S_X+11}, {EREG}")
            a(f"v_add_u32 v15, s{S_X+11}, v{V_LIN}")
        part_addr(1)
        for i in range(8):
            a(f"ds_read_b128 {vr(R1+4*i,4)}, v15 offset:{i*1024}")
        for k in range(4):
            a(f"ds_read_b32 v{24+k}, v22 offset:{512*k+4}")
        a("s_waitcnt lgkmcnt(4)")
        c("own part + first received part, selected by wave id")
        for k in range(4):
            if k < 3:
                a(f"s_cmp_lg_u32 s{S_W}, {k}")
                a(f"s_cbranch_scc1 L_own{k+1}")
            for i in range(8):
                for cc in (0, 2):
                    a(f"v_pk_add_f32 {vr(acc(i,cc),2)}, {vr(V_O+16*i+4*k+cc,2)}, {vr(R1+4*i+cc,2)}")
            if k < 3:
                a("s_branch L_owndone")
                self.lab(f"L_own{k+1}")
        self.lab("L_owndone")
        part_addr(2)
        for i in range(8):
            a(f"ds_read_b128 {vr(R2+4*i,4)}, v15 offset:{i*1024}")
        a("s_waitcnt lgkmcnt(8)")
        a("v_add_f32 v11, v24, v25")
        a("v_add_f32 v12, v26, v27")
        a(f"v_mov_b32 v10, v{V_M}")
        a("v_add_f32 v11, v11, v12")
        part_addr(3)
        a("s_waitcnt lgkmcnt(7)")
        for i in range(8):
            a(f"ds_read_b128 {vr(R3+4*i,4)}, v15 offset:{i*1024}")
        a("s_waitcnt lgkmcnt(8)")
        for i in range(8):
            for cc in (0, 2):
                a(f"v_pk_add_f32 {vr(acc(i,cc),2)}, {vr(acc(i,cc),2)}, {vr(R2+4*i+cc,2)}")
        a(f"v_add_u32 v12, {PLREG}, v{V_LIN}")
        for src in range(4):
            a(f"ds_read_b128 {vr(PP+4*src,4)}, v12 offset:{1024*src}")
        a("s_waitcnt lgkmcnt(4)")
        for i in range(8):
            for cc in (0, 2):
                a(f"v_pk_add_f32 {vr(acc(i,cc),2)}, {vr(acc(i,cc),2)}, {vr(R3+4*i+cc,2)}")
        c("all second halves of V have landed")
        a("s_waitcnt vmcnt(0) lgkmcnt(0)")
        a("s_barrier")
        for j in range(8):
            a(f"ds_read_b32 v{VD+j}, v23 offset:{j*1024}")
        a(f"s_cmp_lg_u32 s{S_PREF}, 2")
        a("s_cbranch_scc1 L_nosecond")
        a(f"v_readfirstlane_b32 s{S_X+12}, v19")
        a(f"s_mov_b32 s{S_PREF}, 0")
        a(f"s_cmp_lg_u32 s{S_X+12}, 1")
        a("s_cbranch_scc1 L_nosecond")
        a(f"s_mov_b32 s{S_PREF}, 1")
        self.emit(partner_loads())
        self.lab("L_nosecond")
        for src in range(4):
            if src < 3:
                a("s_waitcnt lgkmcnt(7)")
                for j in range(8):
                    a(f"ds_read_b32 v{VD+8*(src+1)+j}, v23 offset:{(src+1)*8192 + j*1024}")
                a("s_waitcnt lgkmcnt(8)")
            else:
                a("s_waitcnt lgkmcnt(0)")
            for ip in range(2):
                buf = AB + 4*((2*src + ip) & 3)
                sel = S_PLO if ip == 0 else S_PHI
                for t in range(4):
                    a(f"v_perm_b32 v{buf+t}, v{VD+8*src+2*t+1}, v{VD+8*src+2*t}, s{sel}")
            a("s_nop 1")
            for ip in range(2):
                buf = AB + 4*((2*src + ip) & 3)
                a(f"v_mfma_f32_32x32x16_bf16 {vr(ACC+16*ip,16)}, {vr(buf,4)}, {vr(PP+4*src,4)}, {vr(ACC+16*ip,16)}")
        a("s_nop 15")
        self.stamp(5)
        c("v10 = M, v11 = L, accumulators in v96..v127")
        a(f"s_cmp_lg_u32 s{S_ROLE}, 1")
        a("s_cbranch_scc1 L_second")

        c("---- first arriver: publish the partial result")
        a(f"s_lshl_b32 s{S_X+10}, s{S_W}, 13")
        a(f"s_add_u32 s{S_X+10}, s{S_X+10}, s{S_OWN}")
        a(f"s_lshl_b32 s{S_X+11}, s{S_W}, 9")
        a(f"s_add_u32 s{S_X+11}, s{S_X+11}, s{S_OWN}")
        a(f"s_add_u32 s{S_X+11}, s{S_X+11}, {WS_ML}")
        for i in range(8):
            vo = V_LIN if i < 4 else 21
            a(f"buffer_store_dwordx4 {vr(ACC+4*i,4)}, v{vo}, {WS}, s{S_X+10} offen offset:{(i&3)*1024} sc1")
        a(f"buffer_store_dwordx2 v[10:11], v14, {WS}, s{S_X+11} offen sc1")
        a("v_mov_b32 v19, 1")
        a("s_waitcnt vmcnt(0)")
        a("s_mov_b64 exec, 1")
        a(f"buffer_store_dword v19, v20, {WS}, s{S_OWN} offen sc1")
        a("s_mov_b64 exec, -1")
        a("s_branch L_fin")

        c("---- second arriver: wait for the partner, merge, write the output")
        self.lab("L_second")
        a(f"s_cmp_eq_u32 s{S_PREF}, 1")
        a("s_cbranch_scc1 L_have")
        a(f"s_mov_b32 s{S_X+12}, {self.spin_limit}")
        self.lab("L_poll")
        a(f"buffer_load_dword v19, v20, {WS}, s{S_PART} offen sc1")
        a("s_waitcnt vmcnt(0)")
        a(f"v_readfirstlane_b32 s{S_X+13}, v19")
        a(f"s_sub_u32 s{S_X+12}, s{S_X+12}, 1")
        a(f"s_cmp_eq_u32 s{S_X+12}, 0")
        a("s_cbranch_scc1 L_got")
        a(f"s_cmp_eq_u32 s{S_X+13}, 1")
        a("s_cbranch_scc1 L_got")
        a("s_sleep 1")
        a("s_branch L_poll")
        self.lab("L_got")
        self.emit(partner_loads())
        self.lab("L_have")
        a("s_waitcnt vmcnt(0)")
        a("v_max_f32 v12, v10, v16")
        a("v_sub_f32 v10, v10, v12")
        a("v_sub_f32 v16, v16, v12")
        a("v_exp_f32 v10, v10")
        a("v_exp_f32 v16, v16")
        a("s_nop 0")
        a("v_mul_f32 v11, v11, v10")
        a("v_fmac_f32 v11, v17, v16")
        a("v_rcp_f32 v11, v11")
        a("s_nop 0")
        a("v_mul_f32 v10, v10, v11")
        a("v_mul_f32 v16, v16, v11")
        a(f"s_lshl_b32 s{S_X+10}, s{S_W}, 7")
        OUT = V_S
        for c2 in (0, 2):
            for i in range(8):
                r = acc(i, c2)
                a(f"v_pk_mul_f32 {vr(r,2)}, v[10:11], {vr(r,2)} op_sel_hi:[0,1]")
            for i in range(8):
                r = acc(i, c2)
                a(f"v_pk_fma_f32 {vr(r,2)}, v[16:17], {vr(V_VR + r - ACC,2)}, {vr(r,2)} op_sel_hi:[0,1,1]")
            for cc in (c2, c2+1):
                for t in range(4):
                    a(f"v_cvt_pk_bf16_f32 v{OUT+4*cc+t}, v{acc(2*t,cc)}, v{acc(2*t+1,cc)}")
                a(f"buffer_store_dwordx4 {vr(OUT+4*cc,4)}, v18, s[{SRD_O}:{SRD_O+3}], s{S_X+10} offen offset:{16*cc} {self.oflag}")

    def finish(self):
        a, c = self.a, self.c
        K = NAME + "_kernel"
        self.lab("L_fin")
        if self.stamps:
            a("s_waitcnt vmcnt(0) lgkmcnt(0)")
            self.stamp(7)
            a("s_waitcnt lgkmcnt(0)")
            a(f"s_lshl_b32 s{S_X+10}, s2, 2")
            a(f"s_add_u32 s{S_X+10}, s{S_X+10}, s{S_W}")
            a(f"s_lshl_b32 s{S_X+10}, s{S_X+10}, 7")
            a(f"s_add_u32 s{SRD_WS}, s20, {STAMP_BASE}")
            a(f"s_addc_u32 s{SRD_WS+1}, s21, 0")
            a(f"s_mov_b32 s{SRD_WS+2}, 0x100000")
            a(f"s_mov_b32 s{SRD_WS+3}, 0x20000")
            for k in range(16):
                a(f"v_mov_b32 v{32+k}, s{84+k}")
            a(f"s_getreg_b32 s{S_X+11}, hwreg(HW_REG_XCC_ID)")
            a(f"v_mov_b32 v48, s{S_X+11}")
            a(f"s_sub_u32 s{S_X+14}, s{S_X+14}, 1")
            a(f"s_lshl_b32 s{S_X+12}, s{S_TMP}, 1")
            a(f"s_add_u32 s{S_X+14}, s{S_X+14}, s{S_X+12}")
            a(f"v_mov_b32 v49, s{S_X+14}")
            a(f"s_getreg_b32 s{S_X+11}, hwreg(HW_REG_HW_ID)")
            a(f"v_mov_b32 v50, s{S_X+11}")
            a(f"v_mov_b32 v51, 0")
            a("v_mov_b32 v20, 0")
            a("s_mov_b64 exec, 1")
            for k in range(4):
                a(f"buffer_store_dwordx4 {vr(32+4*k,4)}, v20, s[{SRD_WS}:{SRD_WS+3}], s{S_X+10} offen offset:{16*k}")
            a(f"buffer_store_dwordx4 v[48:51], v20, s[{SRD_WS}:{SRD_WS+3}], s{S_X+10} offen offset:64")
            a("s_mov_b64 exec, -1")
        self.lab("L_end")
        a("s_endpgm")
        self.L.append(f""".section .rodata,"a"
.p2align 6
.amdhsa_kernel {K}
  .amdhsa_next_free_vgpr 384
  .amdhsa_next_free_sgpr 102
  .amdhsa_accum_offset 256
  .amdhsa_group_segment_fixed_size 0
  .amdhsa_kernarg_size 72
  .amdhsa_user_sgpr_count 2
  .amdhsa_user_sgpr_kernarg_segment_ptr 1
  .amdhsa_system_sgpr_workgroup_id_x 1
  .amdhsa_float_denorm_mode_32 3
.end_amdhsa_kernel""")

if __name__ == "__main__":
    import argparse
    ap = argparse.ArgumentParser()
    ap.add_argument("-o", default="cdna_kernels/" + NAME + ".s")
    ap.add_argument("-D", type=int, default=5)
    ap.add_argument("--nt", default="nt")
    ap.add_argument("--stamps", action="store_true")
    ap.add_argument("--nocompute", action="store_true")
    ap.add_argument("--norescale", action="store_true")
    ap.add_argument("--pat", default=None)
    ap.add_argument("--pattern", default="H2")
    ap.add_argument("--dlate", type=int, default=None)
    ap.add_argument("--tlate", type=int, default=13)
    ap.add_argument("--warm", action="store_true")
    ap.add_argument("--diag", default=None)
    ap.add_argument("--xlate", action="store_true")
    ap.add_argument("--trot", type=int, default=0)
    ap.add_argument("--trotx", type=int, default=0)
    ap.add_argument("--xorp", type=int, default=0)
    ap.add_argument("--bits", default=None)
    ap.add_argument("--same", action="store_true")
    ap.add_argument("--xs", type=int, default=0)
    ap.add_argument("--dA", type=int, default=None)
    ap.add_argument("--dB", type=int, default=None)
    ap.add_argument("--tsw", type=int, default=9)
    ap.add_argument("--oflag", default="")
    ap.add_argument("--dodd", type=int, default=None)
    ap.add_argument("--skip", default="")
    ap.add_argument("--qflag", default="")
    ap.add_argument("--qpos", type=int, default=None)
    ap.add_argument("--tka", action="store_true")
    ap.add_argument("--sync", default=None)
    ap.add_argument("--coop", action="store_true")
    ap.add_argument("--wfin", type=int, default=8)
    ap.add_argument("--burst", action="store_true")
    ap.add_argument("--otr", action="store_true")
    ap.add_argument("--syncB", default=None)
    ap.add_argument("--syncA", default=None)
    ap.add_argument("--noearly", action="store_true")
    ap.add_argument("--tk", type=int, default=14)
    args = ap.parse_args()
    g = Gen(D=args.D, nt=args.nt, stamps=args.stamps, nocompute=args.nocompute, norescale=args.norescale,
            pace_pat=[int(x) for x in args.pat.split(',')] if args.pat else None, pattern=args.pattern, dlate=args.dlate, tlate=args.tlate,
            warm=args.warm, early=not args.noearly, tk=args.tk, diag=args.diag, xlate=args.xlate, trot=args.trot, trotx=args.trotx, xorp=args.xorp, bits=args.bits, same=args.same, xs=args.xs, dA=args.dA, dB=args.dB, tsw=args.tsw, oflag=args.oflag, dodd=args.dodd, skip=args.skip, qflag=args.qflag, qpos=args.qpos, tka=args.tka, sync=args.sync, syncB=args.syncB, syncA=args.syncA, coop=args.coop, wfin=args.wfin, burst=args.burst, otr=args.otr)
    open(args.o, "w").write(g.build())
```

```python
import sys, struct, math

NAME = "standalone__tree_speculative_verify_tree_attention_over_candidate_token_tree__sampling"

HEADER = """; Kernarg layout for this problem (72 bytes, ptrs only, base s[0:1]):
;   offset  24: d_in[3] k_tree  shape=(16, 8, 16, 256) dtype=bfloat16 strides=(65536, 8192, 512, 2) contiguous=True
;   offset  32: d_in[4] v_tree  shape=(16, 8, 16, 256) dtype=bfloat16 strides=(65536, 8192, 512, 2) contiguous=True
;   offset  40: d_in[5] tree_mask  shape=(16, 16, 16) dtype=bfloat16 strides=(512, 32, 2) contiguous=True
"""

DESIGN = '''; Design
;   The 32 query rows of a pair (2 heads x 16 tree tokens) form one 32-wide MFMA tile.
;   The 16 tree keys are split two per wave and folded in as one masked mini tile.
'''

def f32(x):
    return "0x%08x" % struct.unpack("<I", struct.pack("<f", x))[0]

KBLK = 1040
KBUF = 16*KBLK
EREG = 4*KBUF
TREEK = EREG + KBUF
MLREG = EREG + 32768
TICK = MLREG + 2048
LDS_BYTES = 102400
VLREG = 102400
OTREG = 102400
PLREG = VLREG + 32768

V_LANE, V_LIN, V_VOFF, V_KRD, V_M, V_L, V_ALPHA, V_MNEW = 1, 2, 3, 4, 5, 6, 7, 8
V_T0 = 9
V_P, V_S, V_VP, V_VR, V_O = 24, 32, 48, 64, 128
A_Q, A_K = 0, 64
S_W, S_TMP = 22, 23
SRD_K, SRD_V, SRD_Q, SRD_KT, SRD_VT, SRD_M, SRD_O, SRD_WS = 24, 28, 32, 36, 40, 44, 48, 52
S_T = 56
S_KBUF, S_CNT, S_C, S_PLO, S_PHI, S_OWN, S_PART = 60, 61, 62, 63, 64, 65, 66
S_X = 68
S_HW = 83
S_TT = 67
V_ZERO = 10
S_XS = 3
WS_SLOT = 65536
WS_ML = 32768
WS_FLAG = 36864
STAMP_BASE = 0x2000000

def vr(b, n=1):
    return f"v{b}" if n == 1 else f"v[{b}:{b+n-1}]"
def ar(b, n=1):
    return f"a{b}" if n == 1 else f"a[{b}:{b+n-1}]"
def sr(b, n=1):
    return f"s{b}" if n == 1 else f"s[{b}:{b+n-1}]"

class Gen:
    def __init__(self, D=5, nt="nt", stamps=False, spin_limit=1 << 22, nocompute=False, norescale=False, pace_pat=None, pattern='H2', dlate=None, tlate=13, warm=False, early=True, tk=14, diag=None, xlate=False, trot=0, trotx=0, xorp=0, bits=None, same=False, xs=0, dA=None, dB=None, tsw=9, oflag='', dodd=None, skip='', qflag='', qpos=None, tka=False, sync=None, syncB=None, syncA=None, coop=False, wfin=8, burst=False, otr=False):
        self.D, self.nt, self.stamps, self.spin_limit = D, nt, stamps, spin_limit
        self.nocompute, self.norescale = nocompute, norescale
        self.pace_pat = pace_pat or [D]
        self.D0 = D
        self.npace = 0
        self.dlate, self.tlate = dlate, tlate
        self.warm, self.early, self.tk = warm, early, tk
        self.diag, self.xlate = diag, xlate
        self.trot, self.trotx, self.xorp = trot, trotx, xorp
        self.bits = {o: 12 + i for i, o in enumerate(bits.split())} if bits else None
        self.same, self.xs = same, xs
        self.dA, self.dB, self.tsw = dA, dB, tsw
        self.oflag = oflag
        self.dodd = dodd
        self.skip = skip.split(',')
        self.qflag, self.qpos = qflag, qpos
        self.tka = tka
        self.sync = sync
        self.coop = coop
        self.wfin = wfin
        self.burst = burst
        self.otr = otr
        self.lds_bytes = 139264 if coop else (OTREG + 4*4608 if otr else LDS_BYTES)
        self.syncB = [int(x) for x in syncB.split(',')] if syncB else []
        self.syncA = [int(x) for x in syncA.split(',')] if syncA else []
        if dodd is not None:
            self.D = max(self.D, dodd)
        if dA is not None:
            self.D = max(self.D, dA, dB)
        if bits:
            assert sorted(self.bits) == sorted('h w0 w1 j2 j3 t0 t1 t2 t3'.split())
        self.Dpace = D
        if dlate is not None:
            self.D = max(D, dlate)
        self.pattern = {'P0': (14, [0, 4096, 8192, 12288], None), 'P1': (13, [0, 4096, 32768, 36864], None), 'P2': (12, [0, 16384, 32768, 49152], None),
                        'H2': (13, [0, 32768, 65536, 98304], 12), 'H4': (12, [0, 32768, 65536, 98304], 14), 'H6': (13, [0, 4096, 32768, 36864], 16)}[pattern]
        self.shared = self.pattern[2] is not None or self.bits is not None
        self.L = []
        self.nstamp = 0

    def a(self, s):
        for line in s.split("\n"):
            self.L.append("    " + line.strip())
    def lab(self, n):
        self.L.append(n + ":")
    def c(self, s):
        self.L.append("    ; " + s)

    def stamp(self, idx):
        if self.stamps:
            r = 84 + 2*idx
            self.a(f"s_memrealtime s[{r}:{r+1}]")

    def srd(self, q, lo, hi, add, size):
        if add is None:
            self.a(f"s_mov_b32 s{q}, s{lo}\ns_mov_b32 s{q+1}, s{hi}")
        else:
            self.a(f"s_add_u32 s{q}, s{lo}, {add}\ns_addc_u32 s{q+1}, s{hi}, 0")
        self.a(f"s_mov_b32 s{q+2}, {size}\ns_mov_b32 s{q+3}, 0x20000")

    def k_load(self, i):
        imm = (i & 3)*1024
        self.a(f"s_add_u32 m0, s{S_KBUF}, {i*KBLK - imm}")
        self.a("s_nop 0")
        self.a(f"buffer_load_dwordx4 v{V_LIN}, s[{SRD_K}:{SRD_K+3}], s{S_T + (i >> 2)} offen offset:{imm} {self.nt} lds")
    def v_load(self, b):
        imm = (b & 3)*1024
        so = S_T + (b >> 2)
        d = V_VR + 4*b
        self.a(f"buffer_load_dwordx4 {vr(d,4)}, v{V_LIN}, s[{SRD_V}:{SRD_V+3}], s{so} offen offset:{imm} {self.nt}")
    def pace(self):
        d = self.pace_pat[self.npace % len(self.pace_pat)]
        assert d <= self.D
        self.npace += 1
        self.a(f"s_waitcnt vmcnt({d-1})")

    def kfrag_reads(self, lo, hi, vaddr=V_KRD, abase=A_K):
        return [f"ds_read_b128 {ar(abase+4*s,4)}, v{vaddr} offset:{32*s}" for s in range(lo, hi)]
    def qk_mfma(self, lo, hi):
        out = []
        for s in range(lo, hi):
            cin = "0" if s == 0 else vr(V_S, 16)
            out.append(f"v_mfma_f32_32x32x16_bf16 {vr(V_S,16)}, {ar(A_K+4*s,4)}, {ar(A_Q+4*s,4)}, {cin}")
        return out

    def softmax_slices(self, tag):
        S = V_S; t0, t1 = V_T0, V_T0+1
        sl = []
        sl.append(self.kfrag_reads(0, 8))
        sl.append(["s_waitcnt lgkmcnt(0)"] + self.kfrag_reads(8, 16) + self.qk_mfma(0, 4))
        sl.append(self.qk_mfma(4, 8))
        sl.append(["s_waitcnt lgkmcnt(0)"] + self.qk_mfma(8, 12))
        sl.append(self.qk_mfma(12, 16))
        mx = ["s_nop 11",
              f"v_max3_f32 v{t0}, v{S}, v{S+1}, v{S+2}",
              f"v_max3_f32 v{t1}, v{S+3}, v{S+4}, v{S+5}",
              f"v_max3_f32 v{t0}, v{t0}, v{S+6}, v{S+7}",
              f"v_max3_f32 v{t1}, v{t1}, v{S+8}, v{S+9}",
              f"v_max3_f32 v{t0}, v{t0}, v{S+10}, v{S+11}",
              f"v_max3_f32 v{t1}, v{t1}, v{S+12}, v{S+13}",
              f"v_max3_f32 v{t0}, v{t0}, v{S+14}, v{S+15}",
              f"v_max_f32 v{t0}, v{t0}, v{t1}",
              f"v_mov_b32 v{t1}, v{t0}",
              "s_nop 1",
              f"v_permlane32_swap_b32 v{t0}, v{t1}",
              "s_nop 1",
              f"v_max_f32 v{t0}, v{t0}, v{t1}",
              f"v_mul_f32 v{t0}, s{S_C}, v{t0}",
              f"v_max_f32 v{V_MNEW}, v{V_M}, v{t0}",
              f"v_sub_f32 v{t1}, v{V_M}, v{V_MNEW}",
              f"v_exp_f32 v{V_ALPHA}, v{t1}",
              f"v_cmp_gt_f32 vcc, v{V_MNEW}, v{V_M}",
              f"v_mov_b32 v{V_M}, v{V_MNEW}",
              f"v_mul_f32 v{V_L}, v{V_L}, v{V_ALPHA}",
              "s_nop 1"]
        sl.append(mx)
        for part in range(0 if self.norescale else 2):
            lab = f"L_skip_{tag}_{part}"
            blk = [f"s_cbranch_vccz {lab}"]
            blk += [f"v_mul_f32 v{V_O+r}, v{V_ALPHA}, v{V_O+r}" for r in range(64*part, 64*part+64)]
            blk += [lab + ":"]
            sl.append(blk)
        for part in range(2):
            rs = range(8*part, 8*part+8)
            blk = [f"v_fma_f32 v{S+r}, v{S+r}, s{S_C}, -v{V_M}" for r in rs]
            blk += [f"v_exp_f32 v{S+r}, v{S+r}" for r in rs]
            blk += ["s_nop 0"]
            blk += [f"v_cvt_pk_bf16_f32 v{V_P+(r>>1)}, v{S+r}, v{S+r+1}" for r in rs if r % 2 == 0]
            b = 8*part
            blk += [f"v_add_f32 v{t0}, v{S+b}, v{S+b+1}",
                    f"v_add_f32 v{t1}, v{S+b+2}, v{S+b+3}",
                    f"v_add_f32 v{t0}, v{t0}, v{S+b+4}",
                    f"v_add_f32 v{t1}, v{t1}, v{S+b+5}",
                    f"v_add_f32 v{t0}, v{t0}, v{S+b+6}",
                    f"v_add_f32 v{t1}, v{t1}, v{S+b+7}",
                    f"v_add_f32 v{t0}, v{t0}, v{t1}",
                    f"v_add_f32 v{V_L}, v{V_L}, v{t0}"]
            sl.append(blk)
        return sl

    def pv_slices(self):
        out = []
        for s in range(2):
            for c in range(4):
                blo = V_VP + 8*(c & 1)
                bhi = blo + 4
                blk = []
                for t in range(4):
                    r0 = V_VR + 4*(8*s + 2*t) + c
                    r1 = r0 + 4
                    blk.append(f"v_perm_b32 v{blo+t}, v{r1}, v{r0}, s{S_PLO}")
                for t in range(4):
                    r0 = V_VR + 4*(8*s + 2*t) + c
                    r1 = r0 + 4
                    blk.append(f"v_perm_b32 v{bhi+t}, v{r1}, v{r0}, s{S_PHI}")
                blk.append("s_nop 1")
                o0, o1 = V_O + 16*(2*c), V_O + 16*(2*c+1)
                blk.append(f"v_mfma_f32_32x32x16_bf16 {vr(o0,16)}, {vr(blo,4)}, {vr(V_P+4*s,4)}, {vr(o0,16)}")
                blk.append(f"v_mfma_f32_32x32x16_bf16 {vr(o1,16)}, {vr(bhi,4)}, {vr(V_P+4*s,4)}, {vr(o1,16)}")
                out.append((s, blk))
        return out

    def ticket_issue(self, lab):
        a = self.a
        a(f"s_cmp_lg_u32 s{S_CNT}, {self.tk}")
        a(f"s_cbranch_scc1 {lab}")
        a(f"s_cmp_lg_u32 s{S_W}, 0")
        a(f"s_cbranch_scc1 {lab}")
        a(f"s_lshr_b32 s{S_X+10}, s{S_X+2}, 1")
        a(f"s_lshl_b32 s{S_X+10}, s{S_X+10}, 2")
        a(f"s_and_b32 s{S_X+11}, s{S_X+2}, 1")
        a(f"s_lshl_b32 s{S_X+11}, s{S_X+11}, 4")
        a(f"s_lshl_b32 s{S_X+12}, 1, s{S_X+11}")
        a(f"v_mov_b32 v12, s{S_X+10}")
        a(f"v_mov_b32 v13, s{S_X+12}")
        a("s_mov_b64 exec, 1")
        a("global_atomic_add v13, v12, v13, s[18:19] sc0 sc1")
        a("s_mov_b64 exec, -1")
        self.lab(lab)

    def ticket_publish(self, lab):
        a = self.a
        a(f"s_cmp_lg_u32 s{S_CNT}, {self.tk}")
        a(f"s_cbranch_scc1 {lab}")
        a(f"s_cmp_lg_u32 s{S_W}, 0")
        a(f"s_cbranch_scc1 {lab}")
        a(f"s_waitcnt vmcnt({self.D-1})")
        a(f"v_lshrrev_b32 v13, s{S_X+11}, v13")
        a(f"v_and_b32 v13, 0xffff, v13")
        a(f"v_add_u32 v13, 1, v13")
        a(f"v_mov_b32 v12, {TICK}")
        a("s_mov_b64 exec, 1")
        a("ds_write_b32 v12, v13")
        a("s_mov_b64 exec, -1")
        self.lab(lab)

    def koff(self, k):
        return ((k & 1) << self.bits['j2']) + ((k >> 1) << self.bits['j3'])

    def tile_offsets(self):
        a, P = self.a, self.bits
        groups = []
        k = 0
        while k < 4:
            n = 1
            while k + n < 4 and P[f"t{k+n}"] == P[f"t{k}"] + n:
                n += 1
            groups.append((k, n, P[f"t{k}"]))
            k += n
        a(f"s_mov_b32 s{S_T}, s{S_HW}")
        for k, n, pos in groups:
            a(f"s_bfe_u32 s{S_X+10}, s{S_CNT}, {hex((n << 16) | k)}")
            a(f"s_lshl_b32 s{S_X+10}, s{S_X+10}, {pos}")
            a(f"s_add_u32 s{S_T}, s{S_T}, s{S_X+10}")
        for k in range(1, 4):
            a(f"s_add_u32 s{S_T+k}, s{S_T}, {self.koff(k)}")
        if self.xs:
            for k in range(4):
                a(f"s_xor_b32 s{S_T+k}, s{S_T+k}, s{S_XS}")

    def tree_loads(self, tag):
        a = self.a
        lab = f"L_treeld_{tag}"
        a(f"s_cmp_lg_u32 s{S_CNT}, s{S_TT}")
        a(f"s_cbranch_scc1 {lab}")
        self.srd(SRD_KT, 10, 11, f"s{S_X+6}", 8192)
        self.srd(SRD_VT, 12, 13, f"s{S_X+6}", 8192)
        self.srd(SRD_M, 14, 15, f"s{S_X+7}", 512)
        a(f"s_lshl_b32 s{S_X+12}, s{S_X+4}, 10")
        a(f"s_lshl_b32 s{S_X+13}, s{S_X+4}, 2")
        a(f"s_mov_b32 m0, s{S_X+1}")
        a("s_nop 0")
        if 'tree' not in self.skip:
            a(f"buffer_load_dwordx4 v{V_LIN}, s[{SRD_KT}:{SRD_KT+3}], s{S_X+12} offen lds")
            a(f"buffer_load_dwordx4 v[20:23], v{V_LIN}, s[{SRD_VT}:{SRD_VT+3}], s{S_X+12} offen")
            a(f"buffer_load_ushort v19, v17, s[{SRD_M}:{SRD_M+3}], s{S_X+13} offen")
        self.c("wave 0 clears the four hand-off flags of this workgroup")
        a(f"s_cmp_lg_u32 s{S_W}, 0")
        a(f"s_cbranch_scc1 {lab}")
        self.srd(SRD_WS, 20, 21, f"s{S_X+8}", 2*WS_SLOT)
        for k in range(4):
            a(f"v_mov_b32 v{V_ZERO+k}, 0")
        a(f"v_mov_b32 v9, {WS_FLAG}")
        a("s_mov_b64 exec, 1")
        a(f"buffer_store_dwordx4 v[{V_ZERO}:{V_ZERO+3}], v9, s[{SRD_WS}:{SRD_WS+3}], s{S_OWN} offen sc1")
        a("s_mov_b64 exec, -1")
        self.lab(lab)

    def tree_slices(self, tag):
        S = V_S; t0, t1 = V_T0, V_T0+1
        sl = []
        sl.append(self.kfrag_reads(0, 8, 15, A_K) +
                  ["v_lshlrev_b32 v19, 16, v19",
                   "v_sub_f32 v19, 1.0, v19",
                   f"v_mul_f32 v19, {f32(-1e9*math.log2(math.e))}, v19"])
        sl.append(["s_waitcnt lgkmcnt(0)"] + self.kfrag_reads(8, 16, 15, A_K) + self.qk_mfma(0, 8))
        sl.append(["s_waitcnt lgkmcnt(0)"] + self.qk_mfma(8, 16))
        sm = [f"v_mov_b32 v{V_VP+k}, 0" for k in range(16)]
        sm += [f"v_mov_b32 v{V_P+k}, 0" for k in range(1, 4)]
        sm += ["s_nop 4",
               f"v_fma_f32 v{t0}, v{S}, s{S_C}, v19",
               f"v_mov_b32 v{t1}, v{t0}",
               f"v_mov_b32 v12, v{t0}",
               "s_nop 1",
               f"v_permlane32_swap_b32 v{t0}, v{t1}",
               "s_nop 1",
               f"v_max3_f32 v{V_MNEW}, v{V_M}, v{t0}, v{t1}",
               f"v_sub_f32 v{t1}, v{V_M}, v{V_MNEW}",
               f"v_sub_f32 v12, v12, v{V_MNEW}",
               f"v_exp_f32 v{V_ALPHA}, v{t1}",
               f"v_exp_f32 v12, v12",
               f"v_cmp_gt_f32 vcc, v{V_MNEW}, v{V_M}",
               f"v_mov_b32 v{V_M}, v{V_MNEW}",
               f"v_fma_f32 v{V_L}, v{V_L}, v{V_ALPHA}, v12",
               f"v_cvt_pk_bf16_f32 v{V_P}, v12, 0",
               "s_nop 1"]
        sl.append(sm)
        for part in range(2):
            lab = f"L_tskip_{tag}_{part}"
            blk = [f"s_cbranch_vccz {lab}"]
            blk += [f"v_mul_f32 v{V_O+r}, v{V_ALPHA}, v{V_O+r}" for r in range(64*part, 64*part+64)]
            blk += [lab + ":"]
            sl.append(blk)
        for half in range(2):
            blk = []
            for ii in range(4):
                i = 4*half + ii
                buf = V_VP + 4*ii
                src = 20 + (i >> 1)
                if i & 1:
                    blk.append(f"v_lshrrev_b32 v{buf}, 16, v{src}")
                else:
                    blk.append(f"v_and_b32 v{buf}, 0xffff, v{src}")
            blk.append("s_nop 1")
            for ii in range(4):
                i = 4*half + ii
                buf = V_VP + 4*ii
                blk.append(f"v_mfma_f32_32x32x16_bf16 {vr(V_O+16*i,16)}, {vr(buf,4)}, {vr(V_P,4)}, {vr(V_O+16*i,16)}")
            sl.append(blk)
        return sl

    def emit(self, blk):
        for ln in blk:
            if ln.endswith(":"):
                self.lab(ln[:-1])
            else:
                self.a(ln)

    def schedule(self, tag):
        D = self.D
        B = [[] for _ in range(16)]
        A = [[] for _ in range(16)]
        pos = D - 1
        def put(p, blk):
            (B[p] if p < 16 else A[p-16]).append(blk)
        for blk in self.softmax_slices(tag):
            put(pos, blk); pos += 1
        pos = max(pos, 16)
        for s, blk in self.pv_slices():
            if s == 1:
                pos = max(pos, 16 + D - 1)
            assert pos < 32
            put(pos, blk); pos += 1
        return B, A

    def build(self):
        a, c, D = self.a, self.c, self.D
        K = NAME + "_kernel"
        self.L.append(f".amdgcn_target \"amdgcn-amd-amdhsa--gfx950\"\n.text\n.globl {K}\n.p2align 8\n.type {K},@function\n{K}:")
        a("s_cmp_ge_u32 s2, 256")
        a("s_cbranch_scc1 L_end")
        a("s_load_dwordx16 s[4:19], s[0:1], 0")
        a("s_load_dwordx2 s[20:21], s[0:1], 64")
        self.stamp(0)
        c("lane / wave decomposition")
        a(f"v_lshrrev_b32 v9, 6, v0")
        a(f"v_and_b32 v{V_LANE}, 63, v0")
        a(f"v_readfirstlane_b32 s{S_W}, v9")
        a(f"v_lshlrev_b32 v{V_LIN}, 4, v{V_LANE}")
        a(f"v_and_b32 v10, 31, v{V_LANE}")
        a(f"v_lshrrev_b32 v11, 5, v{V_LANE}")
        c("row rho of a tile is key 2*blk + e, blk = (rho&3) + 4*(rho>>3), e = (rho>>2)&1")
        a(f"v_and_b32 v12, 3, v10")
        a(f"v_lshrrev_b32 v13, 3, v10")
        a(f"v_lshl_add_u32 v12, v13, 2, v12")
        a(f"v_bfe_u32 v13, v10, 2, 1")
        c("q row held by this lane's column")
        a(f"v_lshl_add_u32 v16, v12, 1, v13")
        a(f"v_mul_u32_u24 v12, {KBLK}, v12")
        a(f"v_lshl_add_u32 v12, v13, 9, v12")
        a(f"v_lshl_add_u32 v12, v11, 4, v12")
        a(f"s_mul_i32 s{S_KBUF}, s{S_W}, {KBUF}")
        a(f"v_add_u32 v{V_KRD}, s{S_KBUF}, v12")
        a(f"v_add_u32 v14, {EREG}, v12")
        c("tree-K fragment address: rows with bit 2 set read the second key")
        a(f"v_bfe_u32 v15, v10, 2, 1")
        a(f"v_lshlrev_b32 v15, 9, v15")
        a(f"v_lshl_add_u32 v15, v11, 4, v15")
        a(f"s_lshl_b32 s{S_X}, s{S_W}, 10")
        a(f"s_add_u32 s{S_X+1}, s{S_X}, {TREEK}")
        a(f"v_add_u32 v15, s{S_X+1}, v15")
        c("mask offset: (q&15)*32 + h*2")
        a(f"v_and_b32 v17, 15, v16")
        a(f"v_lshlrev_b32 v17, 5, v17")
        a(f"v_lshl_add_u32 v17, v11, 1, v17")
        c("output offset: q*512 + h*64")
        a(f"v_lshlrev_b32 v18, 9, v16")
        a(f"v_lshl_add_u32 v18, v11, 6, v18")
        c("scalar ids: pair p = wg>>1, half = wg&1, w8 = half*4 + wave")
        if self.same:
            a(f"s_lshr_b32 s{S_X+2}, s2, 4")
            a(f"s_lshl_b32 s{S_X+2}, s{S_X+2}, 3")
            a(f"s_and_b32 s{S_X+3}, s2, 7")
            a(f"s_add_u32 s{S_X+2}, s{S_X+2}, s{S_X+3}")
            a(f"s_bfe_u32 s{S_X+3}, s2, 0x10003")
        else:
            a(f"s_lshr_b32 s{S_X+2}, s2, 1")
            a(f"s_and_b32 s{S_X+3}, s2, 1")
        a(f"s_lshl_b32 s{S_X+4}, s{S_X+3}, 2")
        a(f"s_add_u32 s{S_X+4}, s{S_X+4}, s{S_W}")
        a(f"s_lshl_b32 s{S_OWN}, s{S_X+3}, 16")
        a(f"s_xor_b32 s{S_PART}, s{S_OWN}, 0x10000")
        a(f"s_lshl_b32 s{S_X+5}, s{S_X+2}, 14")
        a(f"s_lshl_b32 s{S_X+6}, s{S_X+2}, 13")
        a(f"s_lshr_b32 s{S_X+7}, s{S_X+2}, 3")
        a(f"s_lshl_b32 s{S_X+7}, s{S_X+7}, 9")
        a(f"s_lshl_b32 s{S_X+8}, s{S_X+2}, 17")
        if self.shared:
            a(f"s_lshl_b32 s{S_X+9}, s{S_X+2}, 21")
        else:
            a(f"s_lshl_b32 s{S_X+9}, s2, 20")
        a(f"s_mov_b32 s{S_CNT}, 0")
        c("offsets of the four 4 KiB runs that make up this wave's tile")
        if self.bits:
            P = self.bits
            a(f"s_lshl_b32 s{S_HW}, s{S_X+3}, {P['h']}")
            a(f"s_and_b32 s{S_X+10}, s{S_W}, 1")
            a(f"s_lshl_b32 s{S_X+10}, s{S_X+10}, {P['w0']}")
            a(f"s_add_u32 s{S_HW}, s{S_HW}, s{S_X+10}")
            a(f"s_lshr_b32 s{S_X+10}, s{S_W}, 1")
            a(f"s_lshl_b32 s{S_X+10}, s{S_X+10}, {P['w1']}")
            a(f"s_add_u32 s{S_HW}, s{S_HW}, s{S_X+10}")
            if self.xs:
                c("pair-dependent permutation of address bits 12..14")
                a(f"s_lshr_b32 s{S_XS}, s{S_X+2}, 3")
                a(f"s_add_u32 s{S_XS}, s{S_XS}, s{S_X+2}")
                a(f"s_mul_i32 s{S_XS}, s{S_XS}, {self.xs}")
                a(f"s_and_b32 s{S_XS}, s{S_XS}, 7")
                a(f"s_lshl_b32 s{S_XS}, s{S_XS}, 12")
            self.tile_offsets()
        else:
            wsh, offs, hsh = self.pattern
            a(f"s_lshl_b32 s{S_T}, s{S_W}, {wsh}")
            if hsh is not None:
                a(f"s_lshl_b32 s{S_X+10}, s{S_X+3}, {hsh}")
                a(f"s_add_u32 s{S_T}, s{S_T}, s{S_X+10}")
            for k in range(3, 0, -1):
                a(f"s_add_u32 s{S_T+k}, s{S_T}, {offs[k]}")
        if self.xorp:
            c("pair-dependent permutation of the 4 KiB runs inside a block")
            a(f"s_mul_i32 s{S_X+10}, s{S_X+2}, {self.xorp}")
            a(f"s_and_b32 s{S_X+10}, s{S_X+10}, 31")
            a(f"s_lshl_b32 s{S_X+10}, s{S_X+10}, 12")
            for k in range(4):
                a(f"s_xor_b32 s{S_T+k}, s{S_T+k}, s{S_X+10}")
        if self.trot or self.trotx:
            c("pair-dependent starting block")
            a(f"s_mul_i32 s{S_X+10}, s{S_X+2}, {self.trot}")
            if self.trotx:
                a(f"s_lshr_b32 s{S_X+11}, s{S_X+2}, {self.trotx}")
                a(f"s_add_u32 s{S_X+10}, s{S_X+10}, s{S_X+11}")
            a(f"s_and_b32 s{S_X+10}, s{S_X+10}, 15")
            a(f"s_lshl_b32 s{S_X+10}, s{S_X+10}, 17")
            for k in range(4):
                a(f"s_add_u32 s{S_T+k}, s{S_T+k}, s{S_X+10}")
        a(f"s_mov_b32 s{S_C}, {f32(math.log2(math.e)/16.0)}")
        a(f"s_mov_b32 s{S_PLO}, 0x05040100")
        a(f"s_mov_b32 s{S_PHI}, 0x07060302")
        a("s_waitcnt lgkmcnt(0)")
        if self.diag is None:
            self.stamp(6)
        ksz = (2 if self.shared else 1) << 20
        self.srd(SRD_K, 6, 7, f"s{S_X+9}", ksz)
        D0 = max(self.pace_pat)
        qpos = D0 if self.qpos is None else self.qpos
        def q_loads():
            self.srd(SRD_Q, 4, 5, f"s{S_X+5}", 16384)
            c("Q: four 1 KiB blocks per wave into the shared staging area")
            a(f"s_lshl_b32 s{S_X+10}, s{S_W}, 12")
            a(f"s_mul_i32 s{S_X+11}, s{S_W}, {4*KBLK}")
            a(f"s_add_u32 s{S_X+11}, s{S_X+11}, {EREG}")
            for jj in range(4):
                a(f"s_add_u32 m0, s{S_X+11}, {jj*KBLK - jj*1024}")
                a("s_nop 0")
                if 'q' not in self.skip:
                    a(f"buffer_load_dwordx4 v{V_LIN}, s[{SRD_Q}:{SRD_Q+3}], s{S_X+10} offen offset:{jj*1024} {self.qflag} lds")
        for i in range(D0):
            if i == qpos:
                q_loads()
            self.k_load(i)
        if qpos == D0:
            q_loads()
        self.srd(SRD_V, 8, 9, f"s{S_X+9}", ksz)
        c("role word starts as unknown; this wave's tree step is at iteration 1 + w8")
        a(f"s_add_u32 s{S_TT}, s{S_X+4}, 1")
        a(f"v_mov_b32 v12, 0")
        a(f"v_mov_b32 v9, {TICK}")
        a(f"s_cmp_lg_u32 s{S_W}, 0")
        a("s_cbranch_scc1 L_noclear")
        a("s_mov_b64 exec, 1")
        a("ds_write_b32 v9, v12")
        a("s_mov_b64 exec, -1")
        self.lab("L_noclear")

        c("---- phase A(0): K tile 0; accumulator setup and Q fragments between the loads")
        init = [f"v_mov_b32 v{V_O+r}, 0" for r in range(128)]
        init += [f"v_mov_b32 v{V_M}, 0xff800000", f"v_mov_b32 v{V_L}, 0"]
        nq = 4
        slots = {}
        ninit = D0 + 1
        per = -(-len(init)//ninit)
        for k in range(ninit):
            slots.setdefault(D0 + k, []).append(init[k*per:(k+1)*per])
        qs = max(qpos + D0, 2*D0 - 1) + 1
        qs = min(max(qs, 11), 13)
        assert qpos + D0 <= qs
        slots.setdefault(qs, []).append(["s_waitcnt lgkmcnt(0)", "s_barrier"] + self.kfrag_reads(0, 8, 14, A_Q))
        slots.setdefault(qs+1, []).append(["s_waitcnt lgkmcnt(0)"] + self.kfrag_reads(8, 16, 14, A_Q))
        slots.setdefault(qs+2, []).append(["s_waitcnt lgkmcnt(0)"])
        for i in range(D0, 16):
            if i == qpos and qpos > D0:
                q_loads()
            c_after = i - qpos
            if 0 <= c_after < D0:
                a(f"s_waitcnt vmcnt({D0 - 1 + nq})")
            else:
                self.pace()
            self.k_load(i)
            for blk in slots.get(i, []):
                self.emit(blk)

        self.stamp(1)
        c("---- main loop: phase B(t) = V loads + QK/softmax, phase A(t+1) = K loads + PV")
        step = 131072 if self.shared else 65536
        def loop(tag, pat, exit_cnt, exit_lab):
            B, A = self.schedule(tag)
            self.pace_pat = pat
            self.npace = 0
            self.L.append(".p2align 6")
            self.lab(f"L_{tag}")
            if self.early and not self.tka:
                self.ticket_issue(f"L_tk_{tag}")
            for b in range(16):
                if b in self.syncB:
                    a("s_barrier")
                self.pace()
                self.v_load(b)
                for blk in B[b]:
                    if not self.nocompute:
                        self.emit(blk)
            if self.early and not self.tka:
                self.ticket_publish(f"L_tp_{tag}")
            if not self.coop:
                a(f"s_cmp_eq_u32 s{S_CNT}, 15")
                a("s_cbranch_scc1 L_tail")
            a(f"s_add_u32 s{S_CNT}, s{S_CNT}, 1")
            if self.bits:
                self.tile_offsets()
            else:
                for k in range(4):
                    a(f"s_add_u32 s{S_T+k}, s{S_T+k}, {step}")
                    if self.trot or self.trotx:
                        a(f"s_and_b32 s{S_T+k}, s{S_T+k}, 0x1fffff")
            tree = self.tree_slices(tag)
            first_free = max(i for i in range(16) if A[i]) + 1
            while first_free + len(tree) > 16:
                tree = tree[:4] + [tree[4] + tree[5]] + tree[6:] if len(tree) == 8 else tree[:-2] + [tree[-2] + tree[-1]]
            assert first_free >= self.D + 1
            if self.sync == "all":
                a("s_barrier")
            elif self.sync:
                for t in self.sync.split(','):
                    a(f"s_cmp_lg_u32 s{S_CNT}, {t}")
                    a(f"s_cbranch_scc1 L_nosync_{tag}_{t}")
                    a("s_barrier")
                    self.lab(f"L_nosync_{tag}_{t}")
            if self.early and self.tka:
                self.ticket_issue(f"L_tk_{tag}")
            for i in range(16):
                if i in self.syncA:
                    a("s_barrier")
                self.pace()
                self.k_load(i)
                if i == 0:
                    self.tree_loads(tag)
                for blk in A[i]:
                    if not self.nocompute:
                        self.emit(blk)
                if first_free <= i < first_free + len(tree):
                    lab = f"L_tree_{tag}_{i}"
                    a(f"s_cmp_lg_u32 s{S_CNT}, s{S_TT}")
                    a(f"s_cbranch_scc1 {lab}")
                    self.emit(tree[i - first_free])
                    self.lab(lab)
            if self.early and self.tka:
                self.ticket_publish(f"L_tp_{tag}")
            if self.coop:
                a(f"s_cmp_eq_u32 s{S_CNT}, 15")
                a("s_cbranch_scc1 L_final")
            if exit_cnt == "role":
                c("once the ticket is known, continue with the depth of that role")
                a(f"s_cmp_lt_u32 s{S_CNT}, {self.tsw}")
                a(f"s_cbranch_scc1 L_{tag}")
                a(f"v_mov_b32 v12, {TICK}")
                a("ds_read_b32 v11, v12")
                a("s_waitcnt lgkmcnt(0)")
                a(f"v_readfirstlane_b32 s{S_X+13}, v11")
                a("s_nop 0")
                a(f"s_cmp_eq_u32 s{S_X+13}, 1")
                a("s_cbranch_scc1 L_lateA")
                a(f"s_cmp_eq_u32 s{S_X+13}, 2")
                a("s_cbranch_scc1 L_lateB")
            elif exit_cnt is not None:
                a(f"s_cmp_eq_u32 s{S_CNT}, {exit_cnt}")
                a(f"s_cbranch_scc1 {exit_lab}")
            a(f"s_branch L_{tag}")
        base_pat = list(self.pace_pat)
        if self.dodd is not None:
            c("prefetch depth by compute-die parity (speed only)")
            a(f"s_getreg_b32 s{S_X+10}, hwreg(HW_REG_XCC_ID)")
            a(f"s_bitcmp1_b32 s{S_X+10}, 0")
            a("s_cbranch_scc1 L_odd")
            loop("loop", base_pat, None, None)
            loop("odd", [self.dodd], None, None)
        elif self.dA is not None:
            loop("loop", base_pat, "role", None)
            loop("lateA", [self.dA], None, None)
            loop("lateB", [self.dB], None, None)
        elif self.dlate is None:
            loop("loop", base_pat, None, None)
        else:
            loop("loop", base_pat, self.tlate, "L_late")
            loop("late", [self.dlate], None, None)

        if self.coop:
            self.final_coop()
        else:
            self.final_plain()
        self.finish()
        return HEADER + f"; @launch grid=(256,1,1) block=(256,1,1) lds={self.lds_bytes}\n" + DESIGN + "\n".join(self.L) + "\n"

    def final_plain(self):
        a, c, D = self.a, self.c, self.D
        c("---- tail: role, partner flag, last PV")
        S_PREF, S_ROLE0, S_ROLE = S_TMP, 67, S_X+14
        WS = f"s[{SRD_WS}:{SRD_WS+3}]"
        self.lab("L_tail")
        self.stamp(2)
        self.srd(SRD_WS, 20, 21, f"s{S_X+8}", 2*WS_SLOT)
        self.srd(SRD_O, 16, 17, f"s{S_X+5}", 16384)
        a(f"v_mov_b32 v12, {TICK}")
        a("ds_read_b32 v11, v12")
        a(f"v_lshlrev_b32 v14, 3, v{V_LANE}")
        a(f"v_add_u32 v21, 4096, v{V_LIN}")
        a(f"s_lshl_b32 s{S_X+10}, s{S_W}, 2")
        a(f"s_add_u32 s{S_X+10}, s{S_X+10}, {WS_FLAG}")
        a(f"v_mov_b32 v20, s{S_X+10}")
        a("s_waitcnt lgkmcnt(0)")
        a(f"v_readfirstlane_b32 s{S_ROLE0}, v11")
        a(f"buffer_load_dword v19, v20, {WS}, s{S_PART} offen sc1")
        B2, A2 = self.schedule("tail")
        flat = [blk for slot in A2 for blk in slot]
        npv = 8
        rest = flat[:len(flat)-npv]
        pvs = flat[len(flat)-npv:]
        for blk in rest:
            self.emit(blk)
        for k, blk in enumerate(pvs):
            if k == 0:
                a("s_waitcnt vmcnt(9)")
            if k == 4:
                a("s_waitcnt vmcnt(1)")
            self.emit(blk)
        self.stamp(3)
        def partner_loads():
            a(f"s_lshl_b32 s{S_X+12}, s{S_W}, 13")
            a(f"s_add_u32 s{S_X+12}, s{S_X+12}, s{S_PART}")
            a(f"s_lshl_b32 s{S_X+13}, s{S_W}, 9")
            a(f"s_add_u32 s{S_X+13}, s{S_X+13}, s{S_PART}")
            a(f"s_add_u32 s{S_X+13}, s{S_X+13}, {WS_ML}")
            a(f"buffer_load_dwordx2 v[16:17], v14, {WS}, s{S_X+13} offen sc1")
            for i in range(8):
                vo = V_LIN if i < 4 else 21
                a(f"buffer_load_dwordx4 {vr(V_VR+4*i,4)}, v{vo}, {WS}, s{S_X+12} offen offset:{(i&3)*1024} sc1")
        c("second arriver whose partner has already published: fetch its partial now")
        a("s_waitcnt vmcnt(0)")
        a(f"v_readfirstlane_b32 s{S_X+12}, v19")
        a(f"s_mov_b32 s{S_PREF}, 0")
        a(f"s_cmp_lg_u32 s{S_ROLE0}, 2")
        a("s_cbranch_scc1 L_nopref")
        a(f"s_cmp_lg_u32 s{S_X+12}, 1")
        a("s_cbranch_scc1 L_again")
        a(f"s_mov_b32 s{S_PREF}, 1")
        partner_loads()
        a("s_branch L_nopref")
        self.lab("L_again")
        c("not yet: look again after the barrier")
        a(f"s_mov_b32 s{S_PREF}, 2")
        a(f"buffer_load_dword v19, v20, {WS}, s{S_PART} offen sc1")
        self.lab("L_nopref")

        c("---- workgroup combine through LDS")
        t0, t1 = V_T0, V_T0+1
        a(f"v_mov_b32 v10, v{V_M}")
        a(f"v_mov_b32 v12, v{V_L}")
        a(f"v_mov_b32 v11, v{V_L}")
        a("s_nop 1")
        a("v_permlane32_swap_b32 v11, v12")
        a("s_nop 1")
        a("v_add_f32 v11, v11, v12")
        a(f"s_lshl_b32 s{S_X+10}, s{S_W}, 9")
        a(f"s_add_u32 s{S_X+10}, s{S_X+10}, {MLREG}")
        a(f"v_add_u32 v15, s{S_X+10}, v14")
        a("ds_write_b64 v15, v[10:11]")
        a("s_nop 7")
        for k in range(4):
            c(f"part {k}: registers 4k..4k+3 of every accumulator tile go to wave {k}")
            a(f"s_cmp_eq_u32 s{S_W}, {k}")
            a(f"s_cbranch_scc1 L_nopart{k}")
            a(f"s_sub_u32 s{S_X+10}, {k+3}, s{S_W}")
            a(f"s_and_b32 s{S_X+10}, s{S_X+10}, 3")
            a(f"s_lshl_b32 s{S_X+11}, s{S_X+10}, 13")
            a(f"s_add_u32 s{S_X+11}, s{S_X+11}, s{S_KBUF}")
            a(f"s_lshl_b32 s{S_X+12}, s{S_W}, 13")
            a(f"s_add_u32 s{S_X+12}, s{S_X+12}, {EREG}")
            a(f"s_cmp_eq_u32 s{S_X+10}, 2")
            a(f"s_cselect_b32 s{S_X+11}, s{S_X+12}, s{S_X+11}")
            a(f"v_add_u32 v15, s{S_X+11}, v{V_LIN}")
            for i in range(8):
                r = V_O + 16*i + 4*k
                a(f"ds_write_b128 v15, {vr(r,4)} offset:{i*1024}")
            self.lab(f"L_nopart{k}")
        a("s_waitcnt lgkmcnt(0)")
        a("s_barrier")
        self.stamp(4)
        a(f"s_cmp_lg_u32 s{S_PREF}, 2")
        a("s_cbranch_scc1 L_nosecond")
        a("s_waitcnt vmcnt(0)")
        a(f"v_readfirstlane_b32 s{S_X+12}, v19")
        a(f"s_mov_b32 s{S_PREF}, 0")
        a(f"s_cmp_lg_u32 s{S_X+12}, 1")
        a("s_cbranch_scc1 L_nosecond")
        a(f"s_mov_b32 s{S_PREF}, 1")
        partner_loads()
        self.lab("L_nosecond")
        c("(m, l) of the four waves in rotated order: k -> wave (w - k) & 3")
        for k in range(4):
            a(f"s_sub_u32 s{S_X+10}, s{S_W}, {k}")
            a(f"s_and_b32 s{S_X+10}, s{S_X+10}, 3")
            a(f"s_lshl_b32 s{S_X+10}, s{S_X+10}, 9")
            a(f"s_add_u32 s{S_X+10}, s{S_X+10}, {MLREG}")
            a(f"v_add_u32 v15, s{S_X+10}, v14")
            a(f"ds_read_b64 v[{24+2*k}:{25+2*k}], v15")
        a(f"v_mov_b32 v12, {TICK}")
        a("ds_read_b32 v13, v12")
        def part_addr(k):
            a(f"s_sub_u32 s{S_X+10}, s{S_W}, {k}")
            a(f"s_and_b32 s{S_X+10}, s{S_X+10}, 3")
            if k < 3:
                a(f"s_mul_i32 s{S_X+11}, s{S_X+10}, {KBUF}")
                a(f"s_add_u32 s{S_X+11}, s{S_X+11}, {(k-1)*8192}")
            else:
                a(f"s_lshl_b32 s{S_X+11}, s{S_X+10}, 13")
                a(f"s_add_u32 s{S_X+11}, s{S_X+11}, {EREG}")
            a(f"v_add_u32 v15, s{S_X+11}, v{V_LIN}")
        R1, R2, R3 = V_VR+32, V_O, V_O+32
        part_addr(1)
        for i in range(8):
            a(f"ds_read_b128 {vr(R1+4*i,4)}, v15 offset:{i*1024}")
        a("s_waitcnt lgkmcnt(8)")
        a("v_max3_f32 v10, v24, v26, v28")
        a("v_max_f32 v10, v10, v30")
        for k in range(4):
            a(f"v_sub_f32 v{24+2*k}, v{24+2*k}, v10")
        for k in range(4):
            a(f"v_exp_f32 v{24+2*k}, v{24+2*k}")
        a(f"v_readfirstlane_b32 s{S_ROLE}, v13")
        a("v_mul_f32 v11, v24, v25")
        for k in range(1, 4):
            a(f"v_fmac_f32 v11, v{24+2*k}, v{25+2*k}")
        ACC = V_S
        c("own part, selected by wave id")
        for k in range(4):
            if k < 3:
                a(f"s_cmp_lg_u32 s{S_W}, {k}")
                a(f"s_cbranch_scc1 L_own{k+1}")
            for i in range(8):
                for cc in (0, 2):
                    a(f"v_pk_mul_f32 {vr(ACC+4*i+cc,2)}, v[24:25], {vr(V_O+16*i+4*k+cc,2)} op_sel_hi:[0,1]")
            if k < 3:
                a("s_branch L_owndone")
                self.lab(f"L_own{k+1}")
        self.lab("L_owndone")
        part_addr(2)
        for i in range(8):
            a(f"ds_read_b128 {vr(R2+4*i,4)}, v15 offset:{i*1024}")
        a("s_waitcnt lgkmcnt(8)")
        for r in range(0, 32, 2):
            a(f"v_pk_fma_f32 {vr(ACC+r,2)}, v[26:27], {vr(R1+r,2)}, {vr(ACC+r,2)} op_sel_hi:[0,1,1]")
        part_addr(3)
        for i in range(8):
            a(f"ds_read_b128 {vr(R3+4*i,4)}, v15 offset:{i*1024}")
        a("s_waitcnt lgkmcnt(8)")
        for r in range(0, 32, 2):
            a(f"v_pk_fma_f32 {vr(ACC+r,2)}, v[28:29], {vr(R2+r,2)}, {vr(ACC+r,2)} op_sel_hi:[0,1,1]")
        a("s_waitcnt lgkmcnt(0)")
        for r in range(0, 32, 2):
            a(f"v_pk_fma_f32 {vr(ACC+r,2)}, v[30:31], {vr(R3+r,2)}, {vr(ACC+r,2)} op_sel_hi:[0,1,1]")
        self.stamp(5)
        c("v10 = M, v11 = L, acc = v32..v63")
        a(f"s_cmp_lg_u32 s{S_ROLE}, 1")
        a("s_cbranch_scc1 L_second")

        c("---- first arriver: publish the partial result")
        a(f"s_lshl_b32 s{S_X+10}, s{S_W}, 13")
        a(f"s_add_u32 s{S_X+10}, s{S_X+10}, s{S_OWN}")
        a(f"s_lshl_b32 s{S_X+11}, s{S_W}, 9")
        a(f"s_add_u32 s{S_X+11}, s{S_X+11}, s{S_OWN}")
        a(f"s_add_u32 s{S_X+11}, s{S_X+11}, {WS_ML}")
        for i in range(8):
            vo = V_LIN if i < 4 else 21
            a(f"buffer_store_dwordx4 {vr(ACC+4*i,4)}, v{vo}, {WS}, s{S_X+10} offen offset:{(i&3)*1024} sc1")
        a(f"buffer_store_dwordx2 v[10:11], v14, {WS}, s{S_X+11} offen sc1")
        a("v_mov_b32 v19, 1")
        a("s_waitcnt vmcnt(0)")
        a("s_mov_b64 exec, 1")
        a(f"buffer_store_dword v19, v20, {WS}, s{S_OWN} offen sc1")
        a("s_mov_b64 exec, -1")
        a("s_branch L_fin")

        c("---- second arriver: wait for the partner, merge, write the output")
        self.lab("L_second")
        a(f"s_cmp_eq_u32 s{S_PREF}, 1")
        a("s_cbranch_scc1 L_have")
        a(f"s_mov_b32 s{S_X+12}, {self.spin_limit}")
        self.lab("L_poll")
        a(f"buffer_load_dword v19, v20, {WS}, s{S_PART} offen sc1")
        a("s_waitcnt vmcnt(0)")
        a(f"v_readfirstlane_b32 s{S_X+13}, v19")
        a(f"s_sub_u32 s{S_X+12}, s{S_X+12}, 1")
        a(f"s_cmp_eq_u32 s{S_X+12}, 0")
        a("s_cbranch_scc1 L_got")
        a(f"s_cmp_eq_u32 s{S_X+13}, 1")
        a("s_cbranch_scc1 L_got")
        a("s_sleep 1")
        a("s_branch L_poll")
        self.lab("L_got")
        partner_loads()
        self.lab("L_have")
        a("s_waitcnt vmcnt(0)")
        a("v_max_f32 v12, v10, v16")
        a("v_sub_f32 v10, v10, v12")
        a("v_sub_f32 v16, v16, v12")
        a("v_exp_f32 v10, v10")
        a("v_exp_f32 v16, v16")
        a("s_nop 0")
        a("v_mul_f32 v11, v11, v10")
        a("v_fmac_f32 v11, v17, v16")
        a("v_rcp_f32 v11, v11")
        a("s_nop 0")
        a("v_mul_f32 v10, v10, v11")
        a("v_mul_f32 v16, v16, v11")
        a(f"s_lshl_b32 s{S_X+10}, s{S_W}, 7")
        if self.otr:
            c("output tile through LDS so that every store writes whole 128-byte lines")
            a(f"s_mul_i32 s{S_X+11}, s{S_W}, 4608")
            a(f"s_add_u32 s{S_X+11}, s{S_X+11}, {OTREG}")
            a("v_lshrrev_b32 v12, 9, v18")
            a("v_mul_u32_u24 v12, 144, v12")
            a("v_and_b32 v13, 64, v18")
            a(f"v_add3_u32 v12, v12, v13, s{S_X+11}")
            a(f"v_lshrrev_b32 v13, 3, v{V_LANE}")
            a("v_mul_u32_u24 v15, 144, v13")
            a(f"v_and_b32 v9, 7, v{V_LANE}")
            a("v_lshlrev_b32 v9, 4, v9")
            a(f"v_add3_u32 v15, v15, v9, s{S_X+11}")
            a("v_lshl_add_u32 v13, v13, 9, v9")
        for c2 in (0, 2):
            for i in range(8):
                r = 4*i + c2
                a(f"v_pk_mul_f32 {vr(ACC+r,2)}, v[10:11], {vr(ACC+r,2)} op_sel_hi:[0,1]")
            for i in range(8):
                r = 4*i + c2
                a(f"v_pk_fma_f32 {vr(ACC+r,2)}, v[16:17], {vr(V_VR+r,2)}, {vr(ACC+r,2)} op_sel_hi:[0,1,1]")
            for cc in (c2, c2+1):
                for t in range(4):
                    a(f"v_cvt_pk_bf16_f32 v{V_VR+32+4*cc+t}, v{ACC+4*(2*t)+cc}, v{ACC+4*(2*t+1)+cc}")
                if self.otr:
                    a(f"ds_write_b128 v12, {vr(V_VR+32+4*cc,4)} offset:{16*cc}")
                else:
                    a(f"buffer_store_dwordx4 {vr(V_VR+32+4*cc,4)}, v18, s[{SRD_O}:{SRD_O+3}], s{S_X+10} offen offset:{16*cc} {self.oflag}")
        if self.otr:
            a("s_waitcnt lgkmcnt(0)")
            for k in range(4):
                a(f"ds_read_b128 {vr(V_VR+48+4*k,4)}, v15 offset:{k*8*144}")
            for k in range(1, 4):
                a(f"s_add_u32 s{S_X+10+k}, s{S_X+10}, {4096*k}")
            for k in range(4):
                a(f"s_waitcnt lgkmcnt({3-k})")
                a(f"buffer_store_dwordx4 {vr(V_VR+48+4*k,4)}, v13, s[{SRD_O}:{SRD_O+3}], s{S_X+10+k} offen {self.oflag}")

    def final_coop(self):
        a, c, D = self.a, self.c, self.D
        assert D == 5
        S_PREF, S_ROLE = S_TMP, S_X+14
        WS = f"s[{SRD_WS}:{SRD_WS+3}]"
        S = V_S; t0, t1 = V_T0, V_T0+1
        ACC = V_VR + 32
        R1, R2, R3 = V_S, V_O, V_O + 32
        VD, PP, AB = V_O + 64, V_O + 96, V_O + 112
        def acc(i, cc):
            return ACC + 16*(i & 1) + 4*(i >> 1) + cc
        def partner_loads():
            out = [f"s_lshl_b32 s{S_X+12}, s{S_W}, 13",
                   f"s_add_u32 s{S_X+12}, s{S_X+12}, s{S_PART}",
                   f"s_lshl_b32 s{S_X+13}, s{S_W}, 9",
                   f"s_add_u32 s{S_X+13}, s{S_X+13}, s{S_PART}",
                   f"s_add_u32 s{S_X+13}, s{S_X+13}, {WS_ML}",
                   f"buffer_load_dwordx2 v[16:17], v14, {WS}, s{S_X+13} offen sc1"]
            for i in range(8):
                vo = V_LIN if i < 4 else 21
                out.append(f"buffer_load_dwordx4 {vr(V_VR+4*i,4)}, v{vo}, {WS}, s{S_X+12} offen offset:{(i&3)*1024} sc1")
            return out
        def v_dma(b):
            imm = (b & 3)*1024
            a(f"s_add_u32 m0, s{S_X+10}, {(b-8)*1024 - imm}")
            a("s_nop 0")
            a(f"buffer_load_dwordx4 v{V_LIN}, s[{SRD_V}:{SRD_V+3}], s{S_T + (b >> 2)} offen offset:{imm} {self.nt} lds")

        sl = {b: [] for b in range(16)}
        sl[0] += [f"s_add_u32 s{SRD_WS}, s20, s{S_X+8}", f"s_addc_u32 s{SRD_WS+1}, s21, 0", f"s_mov_b32 s{SRD_WS+2}, {2*WS_SLOT}", f"s_mov_b32 s{SRD_WS+3}, 0x20000",
                  f"s_add_u32 s{SRD_O}, s16, s{S_X+5}", f"s_addc_u32 s{SRD_O+1}, s17, 0", f"s_mov_b32 s{SRD_O+2}, 16384", f"s_mov_b32 s{SRD_O+3}, 0x20000",
                  f"v_lshlrev_b32 v14, 3, v{V_LANE}",
                  f"v_add_u32 v21, 4096, v{V_LIN}",
                  f"s_lshl_b32 s{S_X+11}, s{S_W}, 2",
                  f"s_add_u32 s{S_X+11}, s{S_X+11}, {WS_FLAG}",
                  f"v_mov_b32 v20, s{S_X+11}",
                  f"s_lshl_b32 s{S_X+10}, s{S_W}, 13",
                  f"s_add_u32 s{S_X+10}, s{S_X+10}, {VLREG}"]
        sl[1] += [f"s_lshl_b32 s{S_X+11}, s{S_W}, 9",
                  f"s_add_u32 s{S_X+11}, s{S_X+11}, {MLREG}",
                  f"v_add_u32 v15, s{S_X+11}, v14",
                  f"v_add_u32 v22, {MLREG}, v14",
                  f"v_and_b32 v9, 3, v{V_LANE}",
                  f"v_lshlrev_b32 v23, 4, v9",
                  f"v_bfe_u32 v9, v{V_LANE}, 3, 2",
                  f"v_lshl_add_u32 v23, v9, 2, v23",
                  f"v_bfe_u32 v9, v{V_LANE}, 2, 1",
                  f"v_lshl_add_u32 v23, v9, 6, v23",
                  f"v_lshrrev_b32 v9, 5, v{V_LANE}",
                  f"v_lshl_add_u32 v23, v9, 9, v23",
                  f"s_lshl_b32 s{S_X+11}, s{S_W}, 7",
                  f"s_add_u32 s{S_X+11}, s{S_X+11}, {VLREG}",
                  f"v_add_u32 v23, s{S_X+11}, v23"]
        sl[4] += self.kfrag_reads(0, 8)
        sl[5] += ["s_waitcnt lgkmcnt(0)"] + self.kfrag_reads(8, 16) + self.qk_mfma(0, 4)
        sl[6] += self.qk_mfma(4, 8)
        sl[7] += ["s_waitcnt lgkmcnt(0)"] + self.qk_mfma(8, 16)
        sl[8] += ["s_nop 11",
                  f"v_max3_f32 v{t0}, v{S}, v{S+1}, v{S+2}",
                  f"v_max3_f32 v{t1}, v{S+3}, v{S+4}, v{S+5}",
                  f"v_max3_f32 v{t0}, v{t0}, v{S+6}, v{S+7}",
                  f"v_max3_f32 v{t1}, v{t1}, v{S+8}, v{S+9}",
                  f"v_max3_f32 v{t0}, v{t0}, v{S+10}, v{S+11}",
                  f"v_max3_f32 v{t1}, v{t1}, v{S+12}, v{S+13}",
                  f"v_max3_f32 v{t0}, v{t0}, v{S+14}, v{S+15}",
                  f"v_max_f32 v{t0}, v{t0}, v{t1}",
                  f"v_mov_b32 v{t1}, v{t0}",
                  "s_nop 1",
                  f"v_permlane32_swap_b32 v{t0}, v{t1}",
                  "s_nop 1",
                  f"v_max_f32 v{t0}, v{t0}, v{t1}",
                  f"v_mul_f32 v{t0}, s{S_C}, v{t0}",
                  f"v_max_f32 v{t0}, v{V_M}, v{t0}",
                  f"ds_write_b32 v15, v{t0}",
                  "s_waitcnt lgkmcnt(0)",
                  "s_barrier"]
        sl[8] += [f"ds_read_b32 v{24+k}, v22 offset:{512*k}" for k in range(4)]
        sl[8] += [f"v_mov_b32 v12, {TICK}", "ds_read_b32 v13, v12"]
        sl[9] += ["s_waitcnt lgkmcnt(0)",
                  f"v_max3_f32 v{t0}, v24, v25, v26",
                  f"v_readfirstlane_b32 s{S_ROLE}, v13",
                  f"v_max_f32 v{V_MNEW}, v{t0}, v27",
                  f"v_sub_f32 v{t1}, v{V_M}, v{V_MNEW}",
                  f"v_exp_f32 v{V_ALPHA}, v{t1}",
                  f"v_cmp_gt_f32 vcc, v{V_MNEW}, v{V_M}",
                  f"v_mov_b32 v{V_M}, v{V_MNEW}",
                  f"v_mul_f32 v{V_L}, v{V_L}, v{V_ALPHA}",
                  f"buffer_load_dword v19, v20, {WS}, s{S_PART} offen sc1",
                  "s_nop 1"]
        for part in range(2):
            lab = f"L_skip_final_{part}"
            sl[10+part] += [f"s_cbranch_vccz {lab}"] + \
                [f"v_mul_f32 v{V_O+r}, v{V_ALPHA}, v{V_O+r}" for r in range(64*part, 64*part+64)] + [lab + ":"]
        for part in range(2):
            rs = range(8*part, 8*part+8)
            blk = [f"v_fma_f32 v{S+r}, v{S+r}, s{S_C}, -v{V_M}" for r in rs]
            blk += [f"v_exp_f32 v{S+r}, v{S+r}" for r in rs]
            blk += ["s_nop 0"]
            blk += [f"v_cvt_pk_bf16_f32 v{V_P+(r>>1)}, v{S+r}, v{S+r+1}" for r in rs if r % 2 == 0]
            b = 8*part
            blk += [f"v_add_f32 v{t0}, v{S+b}, v{S+b+1}",
                    f"v_add_f32 v{t1}, v{S+b+2}, v{S+b+3}",
                    f"v_add_f32 v{t0}, v{t0}, v{S+b+4}",
                    f"v_add_f32 v{t1}, v{t1}, v{S+b+5}",
                    f"v_add_f32 v{t0}, v{t0}, v{S+b+6}",
                    f"v_add_f32 v{t1}, v{t1}, v{S+b+7}",
                    f"v_add_f32 v{t0}, v{t0}, v{t1}",
                    f"v_add_f32 v{V_L}, v{V_L}, v{t0}"]
            sl[12+part] += blk
        sl[13] += [f"s_lshl_b32 s{S_X+11}, s{S_W}, 10",
                   f"s_add_u32 s{S_X+11}, s{S_X+11}, {PLREG}",
                   f"v_add_u32 v12, s{S_X+11}, v{V_LIN}",
                   f"ds_write_b128 v12, {vr(V_P+4,4)}",
                   f"v_mov_b32 v11, v{V_L}",
                   f"v_mov_b32 v{t0}, v{V_L}",
                   "s_nop 1",
                   f"v_permlane32_swap_b32 v11, v{t0}",
                   "s_nop 1",
                   f"v_add_f32 v11, v11, v{t0}",
                   "ds_write_b32 v15, v11 offset:4"]
        pv0 = [blk for s_, blk in self.pv_slices() if s_ == 0]
        sl[14] += pv0[0] + pv0[1]
        sl[15] += pv0[2] + pv0[3]

        c("---- final phase: V of the last tile, first half into registers, second half into LDS")
        self.lab("L_final")
        self.pace_pat = [D]
        W = self.wfin
        if self.burst:
            self.emit(sl[0])
            for b in range(16):
                a(f"s_waitcnt vmcnt({min(W-1, 63)})")
                if b < 8:
                    self.v_load(b)
                else:
                    v_dma(b)
            self.stamp(2)
            self.emit(sl[1])
            a("s_waitcnt vmcnt(16)")
            for b in range(4, 14):
                self.emit(sl[b])
            a("s_waitcnt vmcnt(9)")
            self.emit(sl[14])
            self.emit(sl[15])
        else:
            for b in range(8):
                self.pace()
                self.v_load(b)
                self.emit(sl[b])
            for b in range(8, 12):
                a(f"s_waitcnt vmcnt({W-1})")
                v_dma(b)
            self.emit(sl[8])
            c("role is known after the barrier: look at the partner's flag")
            self.emit(sl[9])
            for b in range(12, 16):
                a(f"s_waitcnt vmcnt({W-1})")
                v_dma(b)
            self.stamp(2)
            for b in range(10, 14):
                self.emit(sl[b])
            a("s_waitcnt vmcnt(9)")
            self.emit(sl[14])
            self.emit(sl[15])
            a("s_waitcnt vmcnt(4)")
        if self.burst:
            c("second arriver: the flag read is examined once the last loads have landed")
            a(f"s_cmp_eq_u32 s{S_ROLE}, 2")
            a(f"s_cselect_b32 s{S_PREF}, 2, 0")
        else:
            c("second arriver: fetch the partner's partial if it is already published, else look again later")
            a(f"v_readfirstlane_b32 s{S_X+12}, v19")
            a(f"s_mov_b32 s{S_PREF}, 0")
            a(f"s_cmp_lg_u32 s{S_ROLE}, 2")
            a("s_cbranch_scc1 L_nopref")
            a(f"s_cmp_lg_u32 s{S_X+12}, 1")
            a("s_cbranch_scc1 L_again")
            a(f"s_mov_b32 s{S_PREF}, 1")
            self.emit(partner_loads())
            a("s_branch L_nopref")
            self.lab("L_again")
            a(f"s_mov_b32 s{S_PREF}, 2")
            a(f"buffer_load_dword v19, v20, {WS}, s{S_PART} offen sc1")
            self.lab("L_nopref")
        a("s_nop 7")
        self.stamp(3)
        for k in range(4):
            c(f"part {k}: registers 4k..4k+3 of every accumulator tile go to wave {k}")
            a(f"s_cmp_eq_u32 s{S_W}, {k}")
            a(f"s_cbranch_scc1 L_nopart{k}")
            a(f"s_sub_u32 s{S_X+10}, {k+3}, s{S_W}")
            a(f"s_and_b32 s{S_X+10}, s{S_X+10}, 3")
            a(f"s_lshl_b32 s{S_X+11}, s{S_X+10}, 13")
            a(f"s_add_u32 s{S_X+11}, s{S_X+11}, s{S_KBUF}")
            a(f"s_lshl_b32 s{S_X+12}, s{S_W}, 13")
            a(f"s_add_u32 s{S_X+12}, s{S_X+12}, {EREG}")
            a(f"s_cmp_eq_u32 s{S_X+10}, 2")
            a(f"s_cselect_b32 s{S_X+11}, s{S_X+12}, s{S_X+11}")
            a(f"v_add_u32 v15, s{S_X+11}, v{V_LIN}")
            for i in range(8):
                r = V_O + 16*i + 4*k
                a(f"ds_write_b128 v15, {vr(r,4)} offset:{i*1024}")
            self.lab(f"L_nopart{k}")
        a("s_waitcnt lgkmcnt(0)")
        a("s_barrier")
        self.stamp(4)
        def part_addr(k):
            a(f"s_sub_u32 s{S_X+10}, s{S_W}, {k}")
            a(f"s_and_b32 s{S_X+10}, s{S_X+10}, 3")
            if k < 3:
                a(f"s_mul_i32 s{S_X+11}, s{S_X+10}, {KBUF}")
                a(f"s_add_u32 s{S_X+11}, s{S_X+11}, {(k-1)*8192}")
            else:
                a(f"s_lshl_b32 s{S_X+11}, s{S_X+10}, 13")
                a(f"s_add_u32 s{S_X+11}, s{S_X+11}, {EREG}")
            a(f"v_add_u32 v15, s{S_X+11}, v{V_LIN}")
        part_addr(1)
        for i in range(8):
            a(f"ds_read_b128 {vr(R1+4*i,4)}, v15 offset:{i*1024}")
        for k in range(4):
            a(f"ds_read_b32 v{24+k}, v22 offset:{512*k+4}")
        a("s_waitcnt lgkmcnt(4)")
        c("own part + first received part, selected by wave id")
        for k in range(4):
            if k < 3:
                a(f"s_cmp_lg_u32 s{S_W}, {k}")
                a(f"s_cbranch_scc1 L_own{k+1}")
            for i in range(8):
                for cc in (0, 2):
                    a(f"v_pk_add_f32 {vr(acc(i,cc),2)}, {vr(V_O+16*i+4*k+cc,2)}, {vr(R1+4*i+cc,2)}")
            if k < 3:
                a("s_branch L_owndone")
                self.lab(f"L_own{k+1}")
        self.lab("L_owndone")
        part_addr(2)
        for i in range(8):
            a(f"ds_read_b128 {vr(R2+4*i,4)}, v15 offset:{i*1024}")
        a("s_waitcnt lgkmcnt(8)")
        a("v_add_f32 v11, v24, v25")
        a("v_add_f32 v12, v26, v27")
        a(f"v_mov_b32 v10, v{V_M}")
        a("v_add_f32 v11, v11, v12")
        part_addr(3)
        a("s_waitcnt lgkmcnt(7)")
        for i in range(8):
            a(f"ds_read_b128 {vr(R3+4*i,4)}, v15 offset:{i*1024}")
        a("s_waitcnt lgkmcnt(8)")
        for i in range(8):
            for cc in (0, 2):
                a(f"v_pk_add_f32 {vr(acc(i,cc),2)}, {vr(acc(i,cc),2)}, {vr(R2+4*i+cc,2)}")
        a(f"v_add_u32 v12, {PLREG}, v{V_LIN}")
        for src in range(4):
            a(f"ds_read_b128 {vr(PP+4*src,4)}, v12 offset:{1024*src}")
        a("s_waitcnt lgkmcnt(4)")
        for i in range(8):
            for cc in (0, 2):
                a(f"v_pk_add_f32 {vr(acc(i,cc),2)}, {vr(acc(i,cc),2)}, {vr(R3+4*i+cc,2)}")
        c("all second halves of V have landed")
        a("s_waitcnt vmcnt(0) lgkmcnt(0)")
        a("s_barrier")
        for j in range(8):
            a(f"ds_read_b32 v{VD+j}, v23 offset:{j*1024}")
        a(f"s_cmp_lg_u32 s{S_PREF}, 2")
        a("s_cbranch_scc1 L_nosecond")
        a(f"v_readfirstlane_b32 s{S_X+12}, v19")
        a(f"s_mov_b32 s{S_PREF}, 0")
        a(f"s_cmp_lg_u32 s{S_X+12}, 1")
        a("s_cbranch_scc1 L_nosecond")
        a(f"s_mov_b32 s{S_PREF}, 1")
        self.emit(partner_loads())
        self.lab("L_nosecond")
        for src in range(4):
            if src < 3:
                a("s_waitcnt lgkmcnt(7)")
                for j in range(8):
                    a(f"ds_read_b32 v{VD+8*(src+1)+j}, v23 offset:{(src+1)*8192 + j*1024}")
                a("s_waitcnt lgkmcnt(8)")
            else:
                a("s_waitcnt lgkmcnt(0)")
            for ip in range(2):
                buf = AB + 4*((2*src + ip) & 3)
                sel = S_PLO if ip == 0 else S_PHI
                for t in range(4):
                    a(f"v_perm_b32 v{buf+t}, v{VD+8*src+2*t+1}, v{VD+8*src+2*t}, s{sel}")
            a("s_nop 1")
            for ip in range(2):
                buf = AB + 4*((2*src + ip) & 3)
                a(f"v_mfma_f32_32x32x16_bf16 {vr(ACC+16*ip,16)}, {vr(buf,4)}, {vr(PP+4*src,4)}, {vr(ACC+16*ip,16)}")
        a("s_nop 15")
        self.stamp(5)
        c("v10 = M, v11 = L, accumulators in v96..v127")
        a(f"s_cmp_lg_u32 s{S_ROLE}, 1")
        a("s_cbranch_scc1 L_second")

        c("---- first arriver: publish the partial result")
        a(f"s_lshl_b32 s{S_X+10}, s{S_W}, 13")
        a(f"s_add_u32 s{S_X+10}, s{S_X+10}, s{S_OWN}")
        a(f"s_lshl_b32 s{S_X+11}, s{S_W}, 9")
        a(f"s_add_u32 s{S_X+11}, s{S_X+11}, s{S_OWN}")
        a(f"s_add_u32 s{S_X+11}, s{S_X+11}, {WS_ML}")
        for i in range(8):
            vo = V_LIN if i < 4 else 21
            a(f"buffer_store_dwordx4 {vr(ACC+4*i,4)}, v{vo}, {WS}, s{S_X+10} offen offset:{(i&3)*1024} sc1")
        a(f"buffer_store_dwordx2 v[10:11], v14, {WS}, s{S_X+11} offen sc1")
        a("v_mov_b32 v19, 1")
        a("s_waitcnt vmcnt(0)")
        a("s_mov_b64 exec, 1")
        a(f"buffer_store_dword v19, v20, {WS}, s{S_OWN} offen sc1")
        a("s_mov_b64 exec, -1")
        a("s_branch L_fin")

        c("---- second arriver: wait for the partner, merge, write the output")
        self.lab("L_second")
        a(f"s_cmp_eq_u32 s{S_PREF}, 1")
        a("s_cbranch_scc1 L_have")
        a(f"s_mov_b32 s{S_X+12}, {self.spin_limit}")
        self.lab("L_poll")
        a(f"buffer_load_dword v19, v20, {WS}, s{S_PART} offen sc1")
        a("s_waitcnt vmcnt(0)")
        a(f"v_readfirstlane_b32 s{S_X+13}, v19")
        a(f"s_sub_u32 s{S_X+12}, s{S_X+12}, 1")
        a(f"s_cmp_eq_u32 s{S_X+12}, 0")
        a("s_cbranch_scc1 L_got")
        a(f"s_cmp_eq_u32 s{S_X+13}, 1")
        a("s_cbranch_scc1 L_got")
        a("s_sleep 1")
        a("s_branch L_poll")
        self.lab("L_got")
        self.emit(partner_loads())
        self.lab("L_have")
        a("s_waitcnt vmcnt(0)")
        a("v_max_f32 v12, v10, v16")
        a("v_sub_f32 v10, v10, v12")
        a("v_sub_f32 v16, v16, v12")
        a("v_exp_f32 v10, v10")
        a("v_exp_f32 v16, v16")
        a("s_nop 0")
        a("v_mul_f32 v11, v11, v10")
        a("v_fmac_f32 v11, v17, v16")
        a("v_rcp_f32 v11, v11")
        a("s_nop 0")
        a("v_mul_f32 v10, v10, v11")
        a("v_mul_f32 v16, v16, v11")
        a(f"s_lshl_b32 s{S_X+10}, s{S_W}, 7")
        OUT = V_S
        for c2 in (0, 2):
            for i in range(8):
                r = acc(i, c2)
                a(f"v_pk_mul_f32 {vr(r,2)}, v[10:11], {vr(r,2)} op_sel_hi:[0,1]")
            for i in range(8):
                r = acc(i, c2)
                a(f"v_pk_fma_f32 {vr(r,2)}, v[16:17], {vr(V_VR + r - ACC,2)}, {vr(r,2)} op_sel_hi:[0,1,1]")
            for cc in (c2, c2+1):
                for t in range(4):
                    a(f"v_cvt_pk_bf16_f32 v{OUT+4*cc+t}, v{acc(2*t,cc)}, v{acc(2*t+1,cc)}")
                a(f"buffer_store_dwordx4 {vr(OUT+4*cc,4)}, v18, s[{SRD_O}:{SRD_O+3}], s{S_X+10} offen offset:{16*cc} {self.oflag}")

    def finish(self):
        a, c = self.a, self.c
        K = NAME + "_kernel"
        self.lab("L_fin")
        if self.stamps:
            a("s_waitcnt vmcnt(0) lgkmcnt(0)")
            self.stamp(7)
            a("s_waitcnt lgkmcnt(0)")
            a(f"s_lshl_b32 s{S_X+10}, s2, 2")
            a(f"s_add_u32 s{S_X+10}, s{S_X+10}, s{S_W}")
            a(f"s_lshl_b32 s{S_X+10}, s{S_X+10}, 7")
            a(f"s_add_u32 s{SRD_WS}, s20, {STAMP_BASE}")
            a(f"s_addc_u32 s{SRD_WS+1}, s21, 0")
            a(f"s_mov_b32 s{SRD_WS+2}, 0x100000")
            a(f"s_mov_b32 s{SRD_WS+3}, 0x20000")
            for k in range(16):
                a(f"v_mov_b32 v{32+k}, s{84+k}")
            a(f"s_getreg_b32 s{S_X+11}, hwreg(HW_REG_XCC_ID)")
            a(f"v_mov_b32 v48, s{S_X+11}")
            a(f"s_sub_u32 s{S_X+14}, s{S_X+14}, 1")
            a(f"s_lshl_b32 s{S_X+12}, s{S_TMP}, 1")
            a(f"s_add_u32 s{S_X+14}, s{S_X+14}, s{S_X+12}")
            a(f"v_mov_b32 v49, s{S_X+14}")
            a(f"s_getreg_b32 s{S_X+11}, hwreg(HW_REG_HW_ID)")
            a(f"v_mov_b32 v50, s{S_X+11}")
            a(f"v_mov_b32 v51, 0")
            a("v_mov_b32 v20, 0")
            a("s_mov_b64 exec, 1")
            for k in range(4):
                a(f"buffer_store_dwordx4 {vr(32+4*k,4)}, v20, s[{SRD_WS}:{SRD_WS+3}], s{S_X+10} offen offset:{16*k}")
            a(f"buffer_store_dwordx4 v[48:51], v20, s[{SRD_WS}:{SRD_WS+3}], s{S_X+10} offen offset:64")
            a("s_mov_b64 exec, -1")
        self.lab("L_end")
        a("s_endpgm")
        self.L.append(f""".section .rodata,"a"
.p2align 6
.amdhsa_kernel {K}
  .amdhsa_next_free_vgpr 384
  .amdhsa_next_free_sgpr 102
  .amdhsa_accum_offset 256
  .amdhsa_group_segment_fixed_size 0
  .amdhsa_kernarg_size 72
  .amdhsa_user_sgpr_count 2
  .amdhsa_user_sgpr_kernarg_segment_ptr 1
  .amdhsa_system_sgpr_workgroup_id_x 1
  .amdhsa_float_denorm_mode_32 3
.end_amdhsa_kernel""")

if __name__ == "__main__":
    import argparse
    ap = argparse.ArgumentParser()
    ap.add_argument("-o", default="cdna_kernels/" + NAME + ".s")
    ap.add_argument("-D", type=int, default=5)
    ap.add_argument("--nt", default="nt")
    ap.add_argument("--stamps", action="store_true")
    ap.add_argument("--nocompute", action="store_true")
    ap.add_argument("--norescale", action="store_true")
    ap.add_argument("--pat", default=None)
    ap.add_argument("--pattern", default="H2")
    ap.add_argument("--dlate", type=int, default=None)
    ap.add_argument("--tlate", type=int, default=13)
    ap.add_argument("--warm", action="store_true")
    ap.add_argument("--diag", default=None)
    ap.add_argument("--xlate", action="store_true")
    ap.add_argument("--trot", type=int, default=0)
    ap.add_argument("--trotx", type=int, default=0)
    ap.add_argument("--xorp", type=int, default=0)
    ap.add_argument("--bits", default=None)
    ap.add_argument("--same", action="store_true")
    ap.add_argument("--xs", type=int, default=0)
    ap.add_argument("--dA", type=int, default=None)
    ap.add_argument("--dB", type=int, default=None)
    ap.add_argument("--tsw", type=int, default=9)
    ap.add_argument("--oflag", default="")
    ap.add_argument("--dodd", type=int, default=None)
    ap.add_argument("--skip", default="")
    ap.add_argument("--qflag", default="")
    ap.add_argument("--qpos", type=int, default=None)
    ap.add_argument("--tka", action="store_true")
    ap.add_argument("--sync", default=None)
    ap.add_argument("--coop", action="store_true")
    ap.add_argument("--wfin", type=int, default=8)
    ap.add_argument("--burst", action="store_true")
    ap.add_argument("--otr", action="store_true")
    ap.add_argument("--syncB", default=None)
    ap.add_argument("--syncA", default=None)
    ap.add_argument("--noearly", action="store_true")
    ap.add_argument("--tk", type=int, default=14)
    args = ap.parse_args()
    g = Gen(D=args.D, nt=args.nt, stamps=args.stamps, nocompute=args.nocompute, norescale=args.norescale,
            pace_pat=[int(x) for x in args.pat.split(',')] if args.pat else None, pattern=args.pattern, dlate=args.dlate, tlate=args.tlate,
            warm=args.warm, early=not args.noearly, tk=args.tk, diag=args.diag, xlate=args.xlate, trot=args.trot, trotx=args.trotx, xorp=args.xorp, bits=args.bits, same=args.same, xs=args.xs, dA=args.dA, dB=args.dB, tsw=args.tsw, oflag=args.oflag, dodd=args.dodd, skip=args.skip, qflag=args.qflag, qpos=args.qpos, tka=args.tka, sync=args.sync, syncB=args.syncB, syncA=args.syncA, coop=args.coop, wfin=args.wfin, burst=args.burst, otr=args.otr)
    open(args.o, "w").write(g.build())
```

```python
import sys, struct, math

NAME = "standalone__tree_speculative_verify_tree_attention_over_candidate_token_tree__sampling"

HEADER = """; Kernarg layout for this problem (72 bytes, ptrs only, base s[0:1]):
;   offset  24: d_in[3] k_tree  shape=(16, 8, 16, 256) dtype=bfloat16 strides=(65536, 8192, 512, 2) contiguous=True
;   offset  32: d_in[4] v_tree  shape=(16, 8, 16, 256) dtype=bfloat16 strides=(65536, 8192, 512, 2) contiguous=True
;   offset  40: d_in[5] tree_mask  shape=(16, 16, 16) dtype=bfloat16 strides=(512, 32, 2) contiguous=True
"""

DESIGN = '''; Design
;   The 32 query rows of a pair (2 heads x 16 tree tokens) form one 32-wide MFMA tile.
;   The 16 tree keys are split two per wave and folded in as one masked mini tile.
'''

def f32(x):
    return "0x%08x" % struct.unpack("<I", struct.pack("<f", x))[0]

KBLK = 1040
KBUF = 16*KBLK
EREG = 4*KBUF
TREEK = EREG + KBUF
MLREG = EREG + 32768
TICK = MLREG + 2048
LDS_BYTES = 102400
VLREG = 102400
OTREG = 102400
OTREG2 = 139264
PLREG = VLREG + 32768

V_LANE, V_LIN, V_VOFF, V_KRD, V_M, V_L, V_ALPHA, V_MNEW = 1, 2, 3, 4, 5, 6, 7, 8
V_T0 = 9
V_P, V_S, V_VP, V_VR, V_O = 24, 32, 48, 64, 128
A_Q, A_K = 0, 64
S_W, S_TMP = 22, 23
SRD_K, SRD_V, SRD_Q, SRD_KT, SRD_VT, SRD_M, SRD_O, SRD_WS = 24, 28, 32, 36, 40, 44, 48, 52
S_T = 56
S_KBUF, S_CNT, S_C, S_PLO, S_PHI, S_OWN, S_PART = 60, 61, 62, 63, 64, 65, 66
S_X = 68
S_HW = 83
S_TT = 67
V_ZERO = 10
S_XS = 3
WS_SLOT = 65536
WS_ML = 32768
WS_FLAG = 36864
STAMP_BASE = 0x2000000

def vr(b, n=1):
    return f"v{b}" if n == 1 else f"v[{b}:{b+n-1}]"
def ar(b, n=1):
    return f"a{b}" if n == 1 else f"a[{b}:{b+n-1}]"
def sr(b, n=1):
    return f"s{b}" if n == 1 else f"s[{b}:{b+n-1}]"

class Gen:
    def __init__(self, D=5, nt="nt", stamps=False, spin_limit=1 << 22, nocompute=False, norescale=False, pace_pat=None, pattern='H2', dlate=None, tlate=13, warm=False, early=True, tk=14, diag=None, xlate=False, trot=0, trotx=0, xorp=0, bits=None, same=False, xs=0, dA=None, dB=None, tsw=9, oflag='', dodd=None, skip='', qflag='', qpos=None, tka=False, sync=None, syncB=None, syncA=None, coop=False, wfin=8, burst=False, otr=False, gseq=False, gearly=False):
        self.D, self.nt, self.stamps, self.spin_limit = D, nt, stamps, spin_limit
        self.nocompute, self.norescale = nocompute, norescale
        self.pace_pat = pace_pat or [D]
        self.D0 = D
        self.npace = 0
        self.dlate, self.tlate = dlate, tlate
        self.warm, self.early, self.tk = warm, early, tk
        self.diag, self.xlate = diag, xlate
        self.trot, self.trotx, self.xorp = trot, trotx, xorp
        self.bits = {o: 12 + i for i, o in enumerate(bits.split())} if bits else None
        self.same, self.xs = same, xs
        self.dA, self.dB, self.tsw = dA, dB, tsw
        self.oflag = oflag
        self.dodd = dodd
        self.skip = skip.split(',')
        self.qflag, self.qpos = qflag, qpos
        self.tka = tka
        self.sync = sync
        self.coop = coop
        self.wfin = wfin
        self.burst = burst
        self.otr = otr
        self.gseq = gseq
        self.gearly = gearly
        self.lds_bytes = (139264 + (4*4608 if otr else 0)) if coop else (OTREG + 4*4608 if otr else LDS_BYTES)
        self.syncB = [int(x) for x in syncB.split(',')] if syncB else []
        self.syncA = [int(x) for x in syncA.split(',')] if syncA else []
        if dodd is not None:
            self.D = max(self.D, dodd)
        if dA is not None:
            self.D = max(self.D, dA, dB)
        if bits:
            assert sorted(self.bits) == sorted('h w0 w1 j2 j3 t0 t1 t2 t3'.split())
        self.Dpace = D
        if dlate is not None:
            self.D = max(D, dlate)
        self.pattern = {'P0': (14, [0, 4096, 8192, 12288], None), 'P1': (13, [0, 4096, 32768, 36864], None), 'P2': (12, [0, 16384, 32768, 49152], None),
                        'H2': (13, [0, 32768, 65536, 98304], 12), 'H4': (12, [0, 32768, 65536, 98304], 14), 'H6': (13, [0, 4096, 32768, 36864], 16)}[pattern]
        self.shared = self.pattern[2] is not None or self.bits is not None
        self.L = []
        self.nstamp = 0

    def a(self, s):
        for line in s.split("\n"):
            self.L.append("    " + line.strip())
    def lab(self, n):
        self.L.append(n + ":")
    def c(self, s):
        self.L.append("    ; " + s)

    def stamp(self, idx):
        if self.stamps:
            r = 84 + 2*idx
            self.a(f"s_memrealtime s[{r}:{r+1}]")

    def srd(self, q, lo, hi, add, size):
        if add is None:
            self.a(f"s_mov_b32 s{q}, s{lo}\ns_mov_b32 s{q+1}, s{hi}")
        else:
            self.a(f"s_add_u32 s{q}, s{lo}, {add}\ns_addc_u32 s{q+1}, s{hi}, 0")
        self.a(f"s_mov_b32 s{q+2}, {size}\ns_mov_b32 s{q+3}, 0x20000")

    def k_load(self, i):
        imm = (i & 3)*1024
        self.a(f"s_add_u32 m0, s{S_KBUF}, {i*KBLK - imm}")
        self.a("s_nop 0")
        self.a(f"buffer_load_dwordx4 v{V_LIN}, s[{SRD_K}:{SRD_K+3}], s{S_T + (i >> 2)} offen offset:{imm} {self.nt} lds")
    def v_load(self, b):
        imm = (b & 3)*1024
        so = S_T + (b >> 2)
        d = V_VR + 4*b
        self.a(f"buffer_load_dwordx4 {vr(d,4)}, v{V_LIN}, s[{SRD_V}:{SRD_V+3}], s{so} offen offset:{imm} {self.nt}")
    def pace(self):
        d = self.pace_pat[self.npace % len(self.pace_pat)]
        assert d <= self.D
        self.npace += 1
        self.a(f"s_waitcnt vmcnt({d-1})")

    def kfrag_reads(self, lo, hi, vaddr=V_KRD, abase=A_K):
        return [f"ds_read_b128 {ar(abase+4*s,4)}, v{vaddr} offset:{32*s}" for s in range(lo, hi)]
    def qk_mfma(self, lo, hi):
        out = []
        for s in range(lo, hi):
            cin = "0" if s == 0 else vr(V_S, 16)
            out.append(f"v_mfma_f32_32x32x16_bf16 {vr(V_S,16)}, {ar(A_K+4*s,4)}, {ar(A_Q+4*s,4)}, {cin}")
        return out

    def softmax_slices(self, tag):
        S = V_S; t0, t1 = V_T0, V_T0+1
        sl = []
        sl.append(self.kfrag_reads(0, 8))
        sl.append(["s_waitcnt lgkmcnt(0)"] + self.kfrag_reads(8, 16) + self.qk_mfma(0, 4))
        sl.append(self.qk_mfma(4, 8))
        sl.append(["s_waitcnt lgkmcnt(0)"] + self.qk_mfma(8, 12))
        sl.append(self.qk_mfma(12, 16))
        mx = ["s_nop 11",
              f"v_max3_f32 v{t0}, v{S}, v{S+1}, v{S+2}",
              f"v_max3_f32 v{t1}, v{S+3}, v{S+4}, v{S+5}",
              f"v_max3_f32 v{t0}, v{t0}, v{S+6}, v{S+7}",
              f"v_max3_f32 v{t1}, v{t1}, v{S+8}, v{S+9}",
              f"v_max3_f32 v{t0}, v{t0}, v{S+10}, v{S+11}",
              f"v_max3_f32 v{t1}, v{t1}, v{S+12}, v{S+13}",
              f"v_max3_f32 v{t0}, v{t0}, v{S+14}, v{S+15}",
              f"v_max_f32 v{t0}, v{t0}, v{t1}",
              f"v_mov_b32 v{t1}, v{t0}",
              "s_nop 1",
              f"v_permlane32_swap_b32 v{t0}, v{t1}",
              "s_nop 1",
              f"v_max_f32 v{t0}, v{t0}, v{t1}",
              f"v_mul_f32 v{t0}, s{S_C}, v{t0}",
              f"v_max_f32 v{V_MNEW}, v{V_M}, v{t0}",
              f"v_sub_f32 v{t1}, v{V_M}, v{V_MNEW}",
              f"v_exp_f32 v{V_ALPHA}, v{t1}",
              f"v_cmp_gt_f32 vcc, v{V_MNEW}, v{V_M}",
              f"v_mov_b32 v{V_M}, v{V_MNEW}",
              f"v_mul_f32 v{V_L}, v{V_L}, v{V_ALPHA}",
              "s_nop 1"]
        sl.append(mx)
        for part in range(0 if self.norescale else 2):
            lab = f"L_skip_{tag}_{part}"
            blk = [f"s_cbranch_vccz {lab}"]
            blk += [f"v_mul_f32 v{V_O+r}, v{V_ALPHA}, v{V_O+r}" for r in range(64*part, 64*part+64)]
            blk += [lab + ":"]
            sl.append(blk)
        for part in range(2):
            rs = range(8*part, 8*part+8)
            blk = [f"v_fma_f32 v{S+r}, v{S+r}, s{S_C}, -v{V_M}" for r in rs]
            blk += [f"v_exp_f32 v{S+r}, v{S+r}" for r in rs]
            blk += ["s_nop 0"]
            blk += [f"v_cvt_pk_bf16_f32 v{V_P+(r>>1)}, v{S+r}, v{S+r+1}" for r in rs if r % 2 == 0]
            b = 8*part
            blk += [f"v_add_f32 v{t0}, v{S+b}, v{S+b+1}",
                    f"v_add_f32 v{t1}, v{S+b+2}, v{S+b+3}",
                    f"v_add_f32 v{t0}, v{t0}, v{S+b+4}",
                    f"v_add_f32 v{t1}, v{t1}, v{S+b+5}",
                    f"v_add_f32 v{t0}, v{t0}, v{S+b+6}",
                    f"v_add_f32 v{t1}, v{t1}, v{S+b+7}",
                    f"v_add_f32 v{t0}, v{t0}, v{t1}",
                    f"v_add_f32 v{V_L}, v{V_L}, v{t0}"]
            sl.append(blk)
        return sl

    def pv_slices(self):
        out = []
        for s in range(2):
            for c in range(4):
                blo = V_VP + 8*(c & 1)
                bhi = blo + 4
                blk = []
                for t in range(4):
                    r0 = V_VR + 4*(8*s + 2*t) + c
                    r1 = r0 + 4
                    blk.append(f"v_perm_b32 v{blo+t}, v{r1}, v{r0}, s{S_PLO}")
                for t in range(4):
                    r0 = V_VR + 4*(8*s + 2*t) + c
                    r1 = r0 + 4
                    blk.append(f"v_perm_b32 v{bhi+t}, v{r1}, v{r0}, s{S_PHI}")
                blk.append("s_nop 1")
                o0, o1 = V_O + 16*(2*c), V_O + 16*(2*c+1)
                blk.append(f"v_mfma_f32_32x32x16_bf16 {vr(o0,16)}, {vr(blo,4)}, {vr(V_P+4*s,4)}, {vr(o0,16)}")
                blk.append(f"v_mfma_f32_32x32x16_bf16 {vr(o1,16)}, {vr(bhi,4)}, {vr(V_P+4*s,4)}, {vr(o1,16)}")
                out.append((s, blk))
        return out

    def ticket_issue(self, lab, always=False):
        a = self.a
        if not always:
            a(f"s_cmp_lg_u32 s{S_CNT}, {self.tk}")
            a(f"s_cbranch_scc1 {lab}")
        a(f"s_cmp_lg_u32 s{S_W}, 0")
        a(f"s_cbranch_scc1 {lab}")
        a(f"s_lshr_b32 s{S_X+10}, s{S_X+2}, 1")
        a(f"s_lshl_b32 s{S_X+10}, s{S_X+10}, 2")
        a(f"s_and_b32 s{S_X+11}, s{S_X+2}, 1")
        a(f"s_lshl_b32 s{S_X+11}, s{S_X+11}, 4")
        a(f"s_lshl_b32 s{S_X+12}, 1, s{S_X+11}")
        a(f"v_mov_b32 v12, s{S_X+10}")
        a(f"v_mov_b32 v13, s{S_X+12}")
        a("s_mov_b64 exec, 1")
        a("global_atomic_add v13, v12, v13, s[18:19] sc0 sc1")
        a("s_mov_b64 exec, -1")
        self.lab(lab)

    def ticket_publish(self, lab, always=False):
        a = self.a
        if not always:
            a(f"s_cmp_lg_u32 s{S_CNT}, {self.tk}")
            a(f"s_cbranch_scc1 {lab}")
        a(f"s_cmp_lg_u32 s{S_W}, 0")
        a(f"s_cbranch_scc1 {lab}")
        a(f"s_waitcnt vmcnt({self.D-1})")
        a(f"v_lshrrev_b32 v13, s{S_X+11}, v13")
        a(f"v_and_b32 v13, 0xffff, v13")
        a(f"v_add_u32 v13, 1, v13")
        a(f"v_mov_b32 v12, {TICK}")
        a("s_mov_b64 exec, 1")
        a("ds_write_b32 v12, v13")
        a("s_mov_b64 exec, -1")
        self.lab(lab)

    def koff(self, k):
        return ((k & 1) << self.bits['j2']) + ((k >> 1) << self.bits['j3'])

    def tile_offsets(self):
        a, P = self.a, self.bits
        groups = []
        k = 0
        while k < 4:
            n = 1
            while k + n < 4 and P[f"t{k+n}"] == P[f"t{k}"] + n:
                n += 1
            groups.append((k, n, P[f"t{k}"]))
            k += n
        a(f"s_mov_b32 s{S_T}, s{S_HW}")
        for k, n, pos in groups:
            a(f"s_bfe_u32 s{S_X+10}, s{S_CNT}, {hex((n << 16) | k)}")
            a(f"s_lshl_b32 s{S_X+10}, s{S_X+10}, {pos}")
            a(f"s_add_u32 s{S_T}, s{S_T}, s{S_X+10}")
        for k in range(1, 4):
            a(f"s_add_u32 s{S_T+k}, s{S_T}, {self.koff(k)}")
        if self.xs:
            for k in range(4):
                a(f"s_xor_b32 s{S_T+k}, s{S_T+k}, s{S_XS}")

    def tree_loads(self, tag):
        a = self.a
        lab = f"L_treeld_{tag}"
        a(f"s_cmp_lg_u32 s{S_CNT}, s{S_TT}")
        a(f"s_cbranch_scc1 {lab}")
        self.srd(SRD_KT, 10, 11, f"s{S_X+6}", 8192)
        self.srd(SRD_VT, 12, 13, f"s{S_X+6}", 8192)
        self.srd(SRD_M, 14, 15, f"s{S_X+7}", 512)
        a(f"s_lshl_b32 s{S_X+12}, s{S_X+4}, 10")
        a(f"s_lshl_b32 s{S_X+13}, s{S_X+4}, 2")
        a(f"s_mov_b32 m0, s{S_X+1}")
        a("s_nop 0")
        if 'tree' not in self.skip:
            a(f"buffer_load_dwordx4 v{V_LIN}, s[{SRD_KT}:{SRD_KT+3}], s{S_X+12} offen lds")
            a(f"buffer_load_dwordx4 v[20:23], v{V_LIN}, s[{SRD_VT}:{SRD_VT+3}], s{S_X+12} offen")
            a(f"buffer_load_ushort v19, v17, s[{SRD_M}:{SRD_M+3}], s{S_X+13} offen")
        self.c("wave 0 clears the four hand-off flags of this workgroup")
        a(f"s_cmp_lg_u32 s{S_W}, 0")
        a(f"s_cbranch_scc1 {lab}")
        self.srd(SRD_WS, 20, 21, f"s{S_X+8}", 2*WS_SLOT)
        for k in range(4):
            a(f"v_mov_b32 v{V_ZERO+k}, 0")
        a(f"v_mov_b32 v9, {WS_FLAG}")
        a("s_mov_b64 exec, 1")
        a(f"buffer_store_dwordx4 v[{V_ZERO}:{V_ZERO+3}], v9, s[{SRD_WS}:{SRD_WS+3}], s{S_OWN} offen sc1")
        a("s_mov_b64 exec, -1")
        self.lab(lab)

    def tree_slices(self, tag):
        S = V_S; t0, t1 = V_T0, V_T0+1
        sl = []
        sl.append(self.kfrag_reads(0, 8, 15, A_K) +
                  ["v_lshlrev_b32 v19, 16, v19",
                   "v_sub_f32 v19, 1.0, v19",
                   f"v_mul_f32 v19, {f32(-1e9*math.log2(math.e))}, v19"])
        sl.append(["s_waitcnt lgkmcnt(0)"] + self.kfrag_reads(8, 16, 15, A_K) + self.qk_mfma(0, 8))
        sl.append(["s_waitcnt lgkmcnt(0)"] + self.qk_mfma(8, 16))
        sm = [f"v_mov_b32 v{V_VP+k}, 0" for k in range(16)]
        sm += [f"v_mov_b32 v{V_P+k}, 0" for k in range(1, 4)]
        sm += ["s_nop 4",
               f"v_fma_f32 v{t0}, v{S}, s{S_C}, v19",
               f"v_mov_b32 v{t1}, v{t0}",
               f"v_mov_b32 v12, v{t0}",
               "s_nop 1",
               f"v_permlane32_swap_b32 v{t0}, v{t1}",
               "s_nop 1",
               f"v_max3_f32 v{V_MNEW}, v{V_M}, v{t0}, v{t1}",
               f"v_sub_f32 v{t1}, v{V_M}, v{V_MNEW}",
               f"v_sub_f32 v12, v12, v{V_MNEW}",
               f"v_exp_f32 v{V_ALPHA}, v{t1}",
               f"v_exp_f32 v12, v12",
               f"v_cmp_gt_f32 vcc, v{V_MNEW}, v{V_M}",
               f"v_mov_b32 v{V_M}, v{V_MNEW}",
               f"v_fma_f32 v{V_L}, v{V_L}, v{V_ALPHA}, v12",
               f"v_cvt_pk_bf16_f32 v{V_P}, v12, 0",
               "s_nop 1"]
        sl.append(sm)
        for part in range(2):
            lab = f"L_tskip_{tag}_{part}"
            blk = [f"s_cbranch_vccz {lab}"]
            blk += [f"v_mul_f32 v{V_O+r}, v{V_ALPHA}, v{V_O+r}" for r in range(64*part, 64*part+64)]
            blk += [lab + ":"]
            sl.append(blk)
        for half in range(2):
            blk = []
            for ii in range(4):
                i = 4*half + ii
                buf = V_VP + 4*ii
                src = 20 + (i >> 1)
                if i & 1:
                    blk.append(f"v_lshrrev_b32 v{buf}, 16, v{src}")
                else:
                    blk.append(f"v_and_b32 v{buf}, 0xffff, v{src}")
            blk.append("s_nop 1")
            for ii in range(4):
                i = 4*half + ii
                buf = V_VP + 4*ii
                blk.append(f"v_mfma_f32_32x32x16_bf16 {vr(V_O+16*i,16)}, {vr(buf,4)}, {vr(V_P,4)}, {vr(V_O+16*i,16)}")
            sl.append(blk)
        return sl

    def emit(self, blk):
        for ln in blk:
            if ln.endswith(":"):
                self.lab(ln[:-1])
            else:
                self.a(ln)

    def schedule(self, tag):
        D = self.D
        B = [[] for _ in range(16)]
        A = [[] for _ in range(16)]
        pos = D - 1
        def put(p, blk):
            (B[p] if p < 16 else A[p-16]).append(blk)
        for blk in self.softmax_slices(tag):
            put(pos, blk); pos += 1
        pos = max(pos, 16)
        for s, blk in self.pv_slices():
            if s == 1:
                pos = max(pos, 16 + D - 1)
            assert pos < 32
            put(pos, blk); pos += 1
        return B, A

    def build(self):
        a, c, D = self.a, self.c, self.D
        K = NAME + "_kernel"
        self.L.append(f".amdgcn_target \"amdgcn-amd-amdhsa--gfx950\"\n.text\n.globl {K}\n.p2align 8\n.type {K},@function\n{K}:")
        a("s_cmp_ge_u32 s2, 256")
        a("s_cbranch_scc1 L_end")
        a("s_load_dwordx16 s[4:19], s[0:1], 0")
        a("s_load_dwordx2 s[20:21], s[0:1], 64")
        self.stamp(0)
        c("lane / wave decomposition")
        a(f"v_lshrrev_b32 v9, 6, v0")
        a(f"v_and_b32 v{V_LANE}, 63, v0")
        a(f"v_readfirstlane_b32 s{S_W}, v9")
        a(f"v_lshlrev_b32 v{V_LIN}, 4, v{V_LANE}")
        a(f"v_and_b32 v10, 31, v{V_LANE}")
        a(f"v_lshrrev_b32 v11, 5, v{V_LANE}")
        c("row rho of a tile is key 2*blk + e, blk = (rho&3) + 4*(rho>>3), e = (rho>>2)&1")
        a(f"v_and_b32 v12, 3, v10")
        a(f"v_lshrrev_b32 v13, 3, v10")
        a(f"v_lshl_add_u32 v12, v13, 2, v12")
        a(f"v_bfe_u32 v13, v10, 2, 1")
        c("q row held by this lane's column")
        a(f"v_lshl_add_u32 v16, v12, 1, v13")
        a(f"v_mul_u32_u24 v12, {KBLK}, v12")
        a(f"v_lshl_add_u32 v12, v13, 9, v12")
        a(f"v_lshl_add_u32 v12, v11, 4, v12")
        a(f"s_mul_i32 s{S_KBUF}, s{S_W}, {KBUF}")
        a(f"v_add_u32 v{V_KRD}, s{S_KBUF}, v12")
        a(f"v_add_u32 v14, {EREG}, v12")
        c("tree-K fragment address: rows with bit 2 set read the second key")
        a(f"v_bfe_u32 v15, v10, 2, 1")
        a(f"v_lshlrev_b32 v15, 9, v15")
        a(f"v_lshl_add_u32 v15, v11, 4, v15")
        a(f"s_lshl_b32 s{S_X}, s{S_W}, 10")
        a(f"s_add_u32 s{S_X+1}, s{S_X}, {TREEK}")
        a(f"v_add_u32 v15, s{S_X+1}, v15")
        c("mask offset: (q&15)*32 + h*2")
        a(f"v_and_b32 v17, 15, v16")
        a(f"v_lshlrev_b32 v17, 5, v17")
        a(f"v_lshl_add_u32 v17, v11, 1, v17")
        c("output offset: q*512 + h*64")
        a(f"v_lshlrev_b32 v18, 9, v16")
        a(f"v_lshl_add_u32 v18, v11, 6, v18")
        c("scalar ids: pair p = wg>>1, half = wg&1, w8 = half*4 + wave")
        if self.same:
            a(f"s_lshr_b32 s{S_X+2}, s2, 4")
            a(f"s_lshl_b32 s{S_X+2}, s{S_X+2}, 3")
            a(f"s_and_b32 s{S_X+3}, s2, 7")
            a(f"s_add_u32 s{S_X+2}, s{S_X+2}, s{S_X+3}")
            a(f"s_bfe_u32 s{S_X+3}, s2, 0x10003")
        else:
            a(f"s_lshr_b32 s{S_X+2}, s2, 1")
            a(f"s_and_b32 s{S_X+3}, s2, 1")
        a(f"s_lshl_b32 s{S_X+4}, s{S_X+3}, 2")
        a(f"s_add_u32 s{S_X+4}, s{S_X+4}, s{S_W}")
        a(f"s_lshl_b32 s{S_OWN}, s{S_X+3}, 16")
        a(f"s_xor_b32 s{S_PART}, s{S_OWN}, 0x10000")
        a(f"s_lshl_b32 s{S_X+5}, s{S_X+2}, 14")
        a(f"s_lshl_b32 s{S_X+6}, s{S_X+2}, 13")
        a(f"s_lshr_b32 s{S_X+7}, s{S_X+2}, 3")
        a(f"s_lshl_b32 s{S_X+7}, s{S_X+7}, 9")
        a(f"s_lshl_b32 s{S_X+8}, s{S_X+2}, 17")
        if self.shared:
            a(f"s_lshl_b32 s{S_X+9}, s{S_X+2}, 21")
        else:
            a(f"s_lshl_b32 s{S_X+9}, s2, 20")
        a(f"s_mov_b32 s{S_CNT}, 0")
        c("offsets of the four 4 KiB runs that make up this wave's tile")
        if self.bits:
            P = self.bits
            a(f"s_lshl_b32 s{S_HW}, s{S_X+3}, {P['h']}")
            a(f"s_and_b32 s{S_X+10}, s{S_W}, 1")
            a(f"s_lshl_b32 s{S_X+10}, s{S_X+10}, {P['w0']}")
            a(f"s_add_u32 s{S_HW}, s{S_HW}, s{S_X+10}")
            a(f"s_lshr_b32 s{S_X+10}, s{S_W}, 1")
            a(f"s_lshl_b32 s{S_X+10}, s{S_X+10}, {P['w1']}")
            a(f"s_add_u32 s{S_HW}, s{S_HW}, s{S_X+10}")
            if self.xs:
                c("pair-dependent permutation of address bits 12..14")
                a(f"s_lshr_b32 s{S_XS}, s{S_X+2}, 3")
                a(f"s_add_u32 s{S_XS}, s{S_XS}, s{S_X+2}")
                a(f"s_mul_i32 s{S_XS}, s{S_XS}, {self.xs}")
                a(f"s_and_b32 s{S_XS}, s{S_XS}, 7")
                a(f"s_lshl_b32 s{S_XS}, s{S_XS}, 12")
            self.tile_offsets()
        else:
            wsh, offs, hsh = self.pattern
            a(f"s_lshl_b32 s{S_T}, s{S_W}, {wsh}")
            if hsh is not None:
                a(f"s_lshl_b32 s{S_X+10}, s{S_X+3}, {hsh}")
                a(f"s_add_u32 s{S_T}, s{S_T}, s{S_X+10}")
            for k in range(3, 0, -1):
                a(f"s_add_u32 s{S_T+k}, s{S_T}, {offs[k]}")
        if self.xorp:
            c("pair-dependent permutation of the 4 KiB runs inside a block")
            a(f"s_mul_i32 s{S_X+10}, s{S_X+2}, {self.xorp}")
            a(f"s_and_b32 s{S_X+10}, s{S_X+10}, 31")
            a(f"s_lshl_b32 s{S_X+10}, s{S_X+10}, 12")
            for k in range(4):
                a(f"s_xor_b32 s{S_T+k}, s{S_T+k}, s{S_X+10}")
        if self.trot or self.trotx:
            c("pair-dependent starting block")
            a(f"s_mul_i32 s{S_X+10}, s{S_X+2}, {self.trot}")
            if self.trotx:
                a(f"s_lshr_b32 s{S_X+11}, s{S_X+2}, {self.trotx}")
                a(f"s_add_u32 s{S_X+10}, s{S_X+10}, s{S_X+11}")
            a(f"s_and_b32 s{S_X+10}, s{S_X+10}, 15")
            a(f"s_lshl_b32 s{S_X+10}, s{S_X+10}, 17")
            for k in range(4):
                a(f"s_add_u32 s{S_T+k}, s{S_T+k}, s{S_X+10}")
        a(f"s_mov_b32 s{S_C}, {f32(math.log2(math.e)/16.0)}")
        a(f"s_mov_b32 s{S_PLO}, 0x05040100")
        a(f"s_mov_b32 s{S_PHI}, 0x07060302")
        a("s_waitcnt lgkmcnt(0)")
        if self.diag is None:
            self.stamp(6)
        ksz = (2 if self.shared else 1) << 20
        self.srd(SRD_K, 6, 7, f"s{S_X+9}", ksz)
        D0 = max(self.pace_pat)
        qpos = D0 if self.qpos is None else self.qpos
        def q_loads():
            self.srd(SRD_Q, 4, 5, f"s{S_X+5}", 16384)
            c("Q: four 1 KiB blocks per wave into the shared staging area")
            a(f"s_lshl_b32 s{S_X+10}, s{S_W}, 12")
            a(f"s_mul_i32 s{S_X+11}, s{S_W}, {4*KBLK}")
            a(f"s_add_u32 s{S_X+11}, s{S_X+11}, {EREG}")
            for jj in range(4):
                a(f"s_add_u32 m0, s{S_X+11}, {jj*KBLK - jj*1024}")
                a("s_nop 0")
                if 'q' not in self.skip:
                    a(f"buffer_load_dwordx4 v{V_LIN}, s[{SRD_Q}:{SRD_Q+3}], s{S_X+10} offen offset:{jj*1024} {self.qflag} lds")
        for i in range(D0):
            if i == qpos:
                q_loads()
            self.k_load(i)
        if qpos == D0:
            q_loads()
        self.srd(SRD_V, 8, 9, f"s{S_X+9}", ksz)
        c("role word starts as unknown; this wave's tree step is at iteration 1 + w8")
        a(f"s_add_u32 s{S_TT}, s{S_X+4}, 1")
        a(f"v_mov_b32 v12, 0")
        a(f"v_mov_b32 v9, {TICK}")
        a(f"s_cmp_lg_u32 s{S_W}, 0")
        a("s_cbranch_scc1 L_noclear")
        a("s_mov_b64 exec, 1")
        a("ds_write_b32 v9, v12")
        a("s_mov_b64 exec, -1")
        self.lab("L_noclear")

        c("---- phase A(0): K tile 0; accumulator setup and Q fragments between the loads")
        init = [f"v_mov_b32 v{V_O+r}, 0" for r in range(128)]
        init += [f"v_mov_b32 v{V_M}, 0xff800000", f"v_mov_b32 v{V_L}, 0"]
        nq = 4
        slots = {}
        ninit = D0 + 1
        per = -(-len(init)//ninit)
        for k in range(ninit):
            slots.setdefault(D0 + k, []).append(init[k*per:(k+1)*per])
        qs = max(qpos + D0, 2*D0 - 1) + 1
        qs = min(max(qs, 11), 13)
        assert qpos + D0 <= qs
        slots.setdefault(qs, []).append(["s_waitcnt lgkmcnt(0)", "s_barrier"] + self.kfrag_reads(0, 8, 14, A_Q))
        slots.setdefault(qs+1, []).append(["s_waitcnt lgkmcnt(0)"] + self.kfrag_reads(8, 16, 14, A_Q))
        slots.setdefault(qs+2, []).append(["s_waitcnt lgkmcnt(0)"])
        for i in range(D0, 16):
            if i == qpos and qpos > D0:
                q_loads()
            c_after = i - qpos
            if 0 <= c_after < D0:
                a(f"s_waitcnt vmcnt({D0 - 1 + nq})")
            else:
                self.pace()
            self.k_load(i)
            for blk in slots.get(i, []):
                self.emit(blk)

        self.stamp(1)
        c("---- main loop: phase B(t) = V loads + QK/softmax, phase A(t+1) = K loads + PV")
        step = 131072 if self.shared else 65536
        def loop(tag, pat, exit_cnt, exit_lab):
            B, A = self.schedule(tag)
            self.pace_pat = pat
            self.npace = 0
            self.L.append(".p2align 6")
            self.lab(f"L_{tag}")
            if self.early and not self.tka:
                self.ticket_issue(f"L_tk_{tag}")
            for b in range(16):
                if b in self.syncB:
                    a("s_barrier")
                self.pace()
                self.v_load(b)
                for blk in B[b]:
                    if not self.nocompute:
                        self.emit(blk)
            if self.early and not self.tka:
                self.ticket_publish(f"L_tp_{tag}")
            if not self.coop:
                a(f"s_cmp_eq_u32 s{S_CNT}, 15")
                a("s_cbranch_scc1 L_tail")
            a(f"s_add_u32 s{S_CNT}, s{S_CNT}, 1")
            if self.bits:
                self.tile_offsets()
            else:
                for k in range(4):
                    a(f"s_add_u32 s{S_T+k}, s{S_T+k}, {step}")
                    if self.trot or self.trotx:
                        a(f"s_and_b32 s{S_T+k}, s{S_T+k}, 0x1fffff")
            tree = self.tree_slices(tag)
            first_free = max(i for i in range(16) if A[i]) + 1
            while first_free + len(tree) > 16:
                tree = tree[:4] + [tree[4] + tree[5]] + tree[6:] if len(tree) == 8 else tree[:-2] + [tree[-2] + tree[-1]]
            assert first_free >= self.D + 1
            if self.sync == "all":
                a("s_barrier")
            elif self.sync:
                for t in self.sync.split(','):
                    a(f"s_cmp_lg_u32 s{S_CNT}, {t}")
                    a(f"s_cbranch_scc1 L_nosync_{tag}_{t}")
                    a("s_barrier")
                    self.lab(f"L_nosync_{tag}_{t}")
            if self.early and self.tka:
                self.ticket_issue(f"L_tk_{tag}")
            for i in range(16):
                if i in self.syncA:
                    a("s_barrier")
                self.pace()
                self.k_load(i)
                if i == 0:
                    self.tree_loads(tag)
                for blk in A[i]:
                    if not self.nocompute:
                        self.emit(blk)
                if first_free <= i < first_free + len(tree):
                    lab = f"L_tree_{tag}_{i}"
                    a(f"s_cmp_lg_u32 s{S_CNT}, s{S_TT}")
                    a(f"s_cbranch_scc1 {lab}")
                    self.emit(tree[i - first_free])
                    self.lab(lab)
            if self.early and self.tka:
                self.ticket_publish(f"L_tp_{tag}")
            if self.coop:
                a(f"s_cmp_eq_u32 s{S_CNT}, {14 if self.gseq else 15}")
                a("s_cbranch_scc1 L_final")
            if exit_cnt == "role":
                c("once the ticket is known, continue with the depth of that role")
                a(f"s_cmp_lt_u32 s{S_CNT}, {self.tsw}")
                a(f"s_cbranch_scc1 L_{tag}")
                a(f"v_mov_b32 v12, {TICK}")
                a("ds_read_b32 v11, v12")
                a("s_waitcnt lgkmcnt(0)")
                a(f"v_readfirstlane_b32 s{S_X+13}, v11")
                a("s_nop 0")
                a(f"s_cmp_eq_u32 s{S_X+13}, 1")
                a("s_cbranch_scc1 L_lateA")
                a(f"s_cmp_eq_u32 s{S_X+13}, 2")
                a("s_cbranch_scc1 L_lateB")
            elif exit_cnt is not None:
                a(f"s_cmp_eq_u32 s{S_CNT}, {exit_cnt}")
                a(f"s_cbranch_scc1 {exit_lab}")
            a(f"s_branch L_{tag}")
        base_pat = list(self.pace_pat)
        if self.dodd is not None:
            c("prefetch depth by compute-die parity (speed only)")
            a(f"s_getreg_b32 s{S_X+10}, hwreg(HW_REG_XCC_ID)")
            a(f"s_bitcmp1_b32 s{S_X+10}, 0")
            a("s_cbranch_scc1 L_odd")
            loop("loop", base_pat, None, None)
            loop("odd", [self.dodd], None, None)
        elif self.dA is not None:
            loop("loop", base_pat, "role", None)
            loop("lateA", [self.dA], None, None)
            loop("lateB", [self.dB], None, None)
        elif self.dlate is None:
            loop("loop", base_pat, None, None)
        else:
            loop("loop", base_pat, self.tlate, "L_late")
            loop("late", [self.dlate], None, None)

        if self.coop:
            self.final_coop()
        else:
            self.final_plain()
        self.finish()
        return HEADER + f"; @launch grid=(256,1,1) block=(256,1,1) lds={self.lds_bytes}\n" + DESIGN + "\n".join(self.L) + "\n"

    def final_plain(self):
        a, c, D = self.a, self.c, self.D
        c("---- tail: role, partner flag, last PV")
        S_PREF, S_ROLE0, S_ROLE = S_TMP, 67, S_X+14
        WS = f"s[{SRD_WS}:{SRD_WS+3}]"
        self.lab("L_tail")
        self.stamp(2)
        self.srd(SRD_WS, 20, 21, f"s{S_X+8}", 2*WS_SLOT)
        self.srd(SRD_O, 16, 17, f"s{S_X+5}", 16384)
        a(f"v_mov_b32 v12, {TICK}")
        a("ds_read_b32 v11, v12")
        a(f"v_lshlrev_b32 v14, 3, v{V_LANE}")
        a(f"v_add_u32 v21, 4096, v{V_LIN}")
        a(f"s_lshl_b32 s{S_X+10}, s{S_W}, 2")
        a(f"s_add_u32 s{S_X+10}, s{S_X+10}, {WS_FLAG}")
        a(f"v_mov_b32 v20, s{S_X+10}")
        a("s_waitcnt lgkmcnt(0)")
        a(f"v_readfirstlane_b32 s{S_ROLE0}, v11")
        a(f"buffer_load_dword v19, v20, {WS}, s{S_PART} offen sc1")
        B2, A2 = self.schedule("tail")
        flat = [blk for slot in A2 for blk in slot]
        npv = 8
        rest = flat[:len(flat)-npv]
        pvs = flat[len(flat)-npv:]
        for blk in rest:
            self.emit(blk)
        for k, blk in enumerate(pvs):
            if k == 0:
                a("s_waitcnt vmcnt(9)")
            if k == 4:
                a("s_waitcnt vmcnt(1)")
            self.emit(blk)
        self.stamp(3)
        def partner_loads():
            a(f"s_lshl_b32 s{S_X+12}, s{S_W}, 13")
            a(f"s_add_u32 s{S_X+12}, s{S_X+12}, s{S_PART}")
            a(f"s_lshl_b32 s{S_X+13}, s{S_W}, 9")
            a(f"s_add_u32 s{S_X+13}, s{S_X+13}, s{S_PART}")
            a(f"s_add_u32 s{S_X+13}, s{S_X+13}, {WS_ML}")
            a(f"buffer_load_dwordx2 v[16:17], v14, {WS}, s{S_X+13} offen sc1")
            for i in range(8):
                vo = V_LIN if i < 4 else 21
                a(f"buffer_load_dwordx4 {vr(V_VR+4*i,4)}, v{vo}, {WS}, s{S_X+12} offen offset:{(i&3)*1024} sc1")
        c("second arriver whose partner has already published: fetch its partial now")
        a("s_waitcnt vmcnt(0)")
        a(f"v_readfirstlane_b32 s{S_X+12}, v19")
        a(f"s_mov_b32 s{S_PREF}, 0")
        a(f"s_cmp_lg_u32 s{S_ROLE0}, 2")
        a("s_cbranch_scc1 L_nopref")
        a(f"s_cmp_lg_u32 s{S_X+12}, 1")
        a("s_cbranch_scc1 L_again")
        a(f"s_mov_b32 s{S_PREF}, 1")
        partner_loads()
        a("s_branch L_nopref")
        self.lab("L_again")
        c("not yet: look again after the barrier")
        a(f"s_mov_b32 s{S_PREF}, 2")
        a(f"buffer_load_dword v19, v20, {WS}, s{S_PART} offen sc1")
        self.lab("L_nopref")

        c("---- workgroup combine through LDS")
        t0, t1 = V_T0, V_T0+1
        a(f"v_mov_b32 v10, v{V_M}")
        a(f"v_mov_b32 v12, v{V_L}")
        a(f"v_mov_b32 v11, v{V_L}")
        a("s_nop 1")
        a("v_permlane32_swap_b32 v11, v12")
        a("s_nop 1")
        a("v_add_f32 v11, v11, v12")
        a(f"s_lshl_b32 s{S_X+10}, s{S_W}, 9")
        a(f"s_add_u32 s{S_X+10}, s{S_X+10}, {MLREG}")
        a(f"v_add_u32 v15, s{S_X+10}, v14")
        a("ds_write_b64 v15, v[10:11]")
        a("s_nop 7")
        for k in range(4):
            c(f"part {k}: registers 4k..4k+3 of every accumulator tile go to wave {k}")
            a(f"s_cmp_eq_u32 s{S_W}, {k}")
            a(f"s_cbranch_scc1 L_nopart{k}")
            a(f"s_sub_u32 s{S_X+10}, {k+3}, s{S_W}")
            a(f"s_and_b32 s{S_X+10}, s{S_X+10}, 3")
            a(f"s_lshl_b32 s{S_X+11}, s{S_X+10}, 13")
            a(f"s_add_u32 s{S_X+11}, s{S_X+11}, s{S_KBUF}")
            a(f"s_lshl_b32 s{S_X+12}, s{S_W}, 13")
            a(f"s_add_u32 s{S_X+12}, s{S_X+12}, {EREG}")
            a(f"s_cmp_eq_u32 s{S_X+10}, 2")
            a(f"s_cselect_b32 s{S_X+11}, s{S_X+12}, s{S_X+11}")
            a(f"v_add_u32 v15, s{S_X+11}, v{V_LIN}")
            for i in range(8):
                r = V_O + 16*i + 4*k
                a(f"ds_write_b128 v15, {vr(r,4)} offset:{i*1024}")
            self.lab(f"L_nopart{k}")
        a("s_waitcnt lgkmcnt(0)")
        a("s_barrier")
        self.stamp(4)
        a(f"s_cmp_lg_u32 s{S_PREF}, 2")
        a("s_cbranch_scc1 L_nosecond")
        a("s_waitcnt vmcnt(0)")
        a(f"v_readfirstlane_b32 s{S_X+12}, v19")
        a(f"s_mov_b32 s{S_PREF}, 0")
        a(f"s_cmp_lg_u32 s{S_X+12}, 1")
        a("s_cbranch_scc1 L_nosecond")
        a(f"s_mov_b32 s{S_PREF}, 1")
        partner_loads()
        self.lab("L_nosecond")
        c("(m, l) of the four waves in rotated order: k -> wave (w - k) & 3")
        for k in range(4):
            a(f"s_sub_u32 s{S_X+10}, s{S_W}, {k}")
            a(f"s_and_b32 s{S_X+10}, s{S_X+10}, 3")
            a(f"s_lshl_b32 s{S_X+10}, s{S_X+10}, 9")
            a(f"s_add_u32 s{S_X+10}, s{S_X+10}, {MLREG}")
            a(f"v_add_u32 v15, s{S_X+10}, v14")
            a(f"ds_read_b64 v[{24+2*k}:{25+2*k}], v15")
        a(f"v_mov_b32 v12, {TICK}")
        a("ds_read_b32 v13, v12")
        def part_addr(k):
            a(f"s_sub_u32 s{S_X+10}, s{S_W}, {k}")
            a(f"s_and_b32 s{S_X+10}, s{S_X+10}, 3")
            if k < 3:
                a(f"s_mul_i32 s{S_X+11}, s{S_X+10}, {KBUF}")
                a(f"s_add_u32 s{S_X+11}, s{S_X+11}, {(k-1)*8192}")
            else:
                a(f"s_lshl_b32 s{S_X+11}, s{S_X+10}, 13")
                a(f"s_add_u32 s{S_X+11}, s{S_X+11}, {EREG}")
            a(f"v_add_u32 v15, s{S_X+11}, v{V_LIN}")
        R1, R2, R3 = V_VR+32, V_O, V_O+32
        part_addr(1)
        for i in range(8):
            a(f"ds_read_b128 {vr(R1+4*i,4)}, v15 offset:{i*1024}")
        a("s_waitcnt lgkmcnt(8)")
        a("v_max3_f32 v10, v24, v26, v28")
        a("v_max_f32 v10, v10, v30")
        for k in range(4):
            a(f"v_sub_f32 v{24+2*k}, v{24+2*k}, v10")
        for k in range(4):
            a(f"v_exp_f32 v{24+2*k}, v{24+2*k}")
        a(f"v_readfirstlane_b32 s{S_ROLE}, v13")
        a("v_mul_f32 v11, v24, v25")
        for k in range(1, 4):
            a(f"v_fmac_f32 v11, v{24+2*k}, v{25+2*k}")
        ACC = V_S
        c("own part, selected by wave id")
        for k in range(4):
            if k < 3:
                a(f"s_cmp_lg_u32 s{S_W}, {k}")
                a(f"s_cbranch_scc1 L_own{k+1}")
            for i in range(8):
                for cc in (0, 2):
                    a(f"v_pk_mul_f32 {vr(ACC+4*i+cc,2)}, v[24:25], {vr(V_O+16*i+4*k+cc,2)} op_sel_hi:[0,1]")
            if k < 3:
                a("s_branch L_owndone")
                self.lab(f"L_own{k+1}")
        self.lab("L_owndone")
        part_addr(2)
        for i in range(8):
            a(f"ds_read_b128 {vr(R2+4*i,4)}, v15 offset:{i*1024}")
        a("s_waitcnt lgkmcnt(8)")
        for r in range(0, 32, 2):
            a(f"v_pk_fma_f32 {vr(ACC+r,2)}, v[26:27], {vr(R1+r,2)}, {vr(ACC+r,2)} op_sel_hi:[0,1,1]")
        part_addr(3)
        for i in range(8):
            a(f"ds_read_b128 {vr(R3+4*i,4)}, v15 offset:{i*1024}")
        a("s_waitcnt lgkmcnt(8)")
        for r in range(0, 32, 2):
            a(f"v_pk_fma_f32 {vr(ACC+r,2)}, v[28:29], {vr(R2+r,2)}, {vr(ACC+r,2)} op_sel_hi:[0,1,1]")
        a("s_waitcnt lgkmcnt(0)")
        for r in range(0, 32, 2):
            a(f"v_pk_fma_f32 {vr(ACC+r,2)}, v[30:31], {vr(R3+r,2)}, {vr(ACC+r,2)} op_sel_hi:[0,1,1]")
        self.stamp(5)
        c("v10 = M, v11 = L, acc = v32..v63")
        a(f"s_cmp_lg_u32 s{S_ROLE}, 1")
        a("s_cbranch_scc1 L_second")

        c("---- first arriver: publish the partial result")
        a(f"s_lshl_b32 s{S_X+10}, s{S_W}, 13")
        a(f"s_add_u32 s{S_X+10}, s{S_X+10}, s{S_OWN}")
        a(f"s_lshl_b32 s{S_X+11}, s{S_W}, 9")
        a(f"s_add_u32 s{S_X+11}, s{S_X+11}, s{S_OWN}")
        a(f"s_add_u32 s{S_X+11}, s{S_X+11}, {WS_ML}")
        for i in range(8):
            vo = V_LIN if i < 4 else 21
            a(f"buffer_store_dwordx4 {vr(ACC+4*i,4)}, v{vo}, {WS}, s{S_X+10} offen offset:{(i&3)*1024} sc1")
        a(f"buffer_store_dwordx2 v[10:11], v14, {WS}, s{S_X+11} offen sc1")
        a("v_mov_b32 v19, 1")
        a("s_waitcnt vmcnt(0)")
        a("s_mov_b64 exec, 1")
        a(f"buffer_store_dword v19, v20, {WS}, s{S_OWN} offen sc1")
        a("s_mov_b64 exec, -1")
        a("s_branch L_fin")

        c("---- second arriver: wait for the partner, merge, write the output")
        self.lab("L_second")
        a(f"s_cmp_eq_u32 s{S_PREF}, 1")
        a("s_cbranch_scc1 L_have")
        a(f"s_mov_b32 s{S_X+12}, {self.spin_limit}")
        self.lab("L_poll")
        a(f"buffer_load_dword v19, v20, {WS}, s{S_PART} offen sc1")
        a("s_waitcnt vmcnt(0)")
        a(f"v_readfirstlane_b32 s{S_X+13}, v19")
        a(f"s_sub_u32 s{S_X+12}, s{S_X+12}, 1")
        a(f"s_cmp_eq_u32 s{S_X+12}, 0")
        a("s_cbranch_scc1 L_got")
        a(f"s_cmp_eq_u32 s{S_X+13}, 1")
        a("s_cbranch_scc1 L_got")
        a("s_sleep 1")
        a("s_branch L_poll")
        self.lab("L_got")
        partner_loads()
        self.lab("L_have")
        a("s_waitcnt vmcnt(0)")
        a("v_max_f32 v12, v10, v16")
        a("v_sub_f32 v10, v10, v12")
        a("v_sub_f32 v16, v16, v12")
        a("v_exp_f32 v10, v10")
        a("v_exp_f32 v16, v16")
        a("s_nop 0")
        a("v_mul_f32 v11, v11, v10")
        a("v_fmac_f32 v11, v17, v16")
        a("v_rcp_f32 v11, v11")
        a("s_nop 0")
        a("v_mul_f32 v10, v10, v11")
        a("v_mul_f32 v16, v16, v11")
        a(f"s_lshl_b32 s{S_X+10}, s{S_W}, 7")
        if self.otr:
            c("output tile through LDS so that every store writes whole 128-byte lines")
            a(f"s_mul_i32 s{S_X+11}, s{S_W}, 4608")
            a(f"s_add_u32 s{S_X+11}, s{S_X+11}, {OTREG}")
            a("v_lshrrev_b32 v12, 9, v18")
            a("v_mul_u32_u24 v12, 144, v12")
            a("v_and_b32 v13, 64, v18")
            a(f"v_add3_u32 v12, v12, v13, s{S_X+11}")
            a(f"v_lshrrev_b32 v13, 3, v{V_LANE}")
            a("v_mul_u32_u24 v15, 144, v13")
            a(f"v_and_b32 v9, 7, v{V_LANE}")
            a("v_lshlrev_b32 v9, 4, v9")
            a(f"v_add3_u32 v15, v15, v9, s{S_X+11}")
            a("v_lshl_add_u32 v13, v13, 9, v9")
        for c2 in (0, 2):
            for i in range(8):
                r = 4*i + c2
                a(f"v_pk_mul_f32 {vr(ACC+r,2)}, v[10:11], {vr(ACC+r,2)} op_sel_hi:[0,1]")
            for i in range(8):
                r = 4*i + c2
                a(f"v_pk_fma_f32 {vr(ACC+r,2)}, v[16:17], {vr(V_VR+r,2)}, {vr(ACC+r,2)} op_sel_hi:[0,1,1]")
            for cc in (c2, c2+1):
                for t in range(4):
                    a(f"v_cvt_pk_bf16_f32 v{V_VR+32+4*cc+t}, v{ACC+4*(2*t)+cc}, v{ACC+4*(2*t+1)+cc}")
                if self.otr:
                    a(f"ds_write_b128 v12, {vr(V_VR+32+4*cc,4)} offset:{16*cc}")
                else:
                    a(f"buffer_store_dwordx4 {vr(V_VR+32+4*cc,4)}, v18, s[{SRD_O}:{SRD_O+3}], s{S_X+10} offen offset:{16*cc} {self.oflag}")
        if self.otr:
            a("s_waitcnt lgkmcnt(0)")
            for k in range(4):
                a(f"ds_read_b128 {vr(V_VR+48+4*k,4)}, v15 offset:{k*8*144}")
            for k in range(1, 4):
                a(f"s_add_u32 s{S_X+10+k}, s{S_X+10}, {4096*k}")
            for k in range(4):
                a(f"s_waitcnt lgkmcnt({3-k})")
                a(f"buffer_store_dwordx4 {vr(V_VR+48+4*k,4)}, v13, s[{SRD_O}:{SRD_O+3}], s{S_X+10+k} offen {self.oflag}")

    def final_coop(self):
        a, c, D = self.a, self.c, self.D
        assert D == 5
        S_PREF, S_ROLE = S_TMP, S_X+14
        WS = f"s[{SRD_WS}:{SRD_WS+3}]"
        S = V_S; t0, t1 = V_T0, V_T0+1
        ACC = V_VR + 32
        R1, R2, R3 = V_S, V_O, V_O + 32
        VD, PP, AB = V_O + 64, V_O + 96, V_O + 112
        def acc(i, cc):
            return ACC + 16*(i & 1) + 4*(i >> 1) + cc
        def partner_loads():
            out = [f"s_lshl_b32 s{S_X+12}, s{S_W}, 13",
                   f"s_add_u32 s{S_X+12}, s{S_X+12}, s{S_PART}",
                   f"s_lshl_b32 s{S_X+13}, s{S_W}, 9",
                   f"s_add_u32 s{S_X+13}, s{S_X+13}, s{S_PART}",
                   f"s_add_u32 s{S_X+13}, s{S_X+13}, {WS_ML}",
                   f"buffer_load_dwordx2 v[16:17], v14, {WS}, s{S_X+13} offen sc1"]
            for i in range(8):
                vo = V_LIN if i < 4 else 21
                out.append(f"buffer_load_dwordx4 {vr(V_VR+4*i,4)}, v{vo}, {WS}, s{S_X+12} offen offset:{(i&3)*1024} sc1")
            return out
        def v_dma(b):
            imm = (b & 3)*1024
            a(f"s_add_u32 m0, s{S_X+10}, {(b-8)*1024 - imm}")
            a("s_nop 0")
            a(f"buffer_load_dwordx4 v{V_LIN}, s[{SRD_V}:{SRD_V+3}], s{S_T + (b >> 2)} offen offset:{imm} {self.nt} lds")

        sl = {b: [] for b in range(16)}
        sl[0] += [f"s_add_u32 s{SRD_WS}, s20, s{S_X+8}", f"s_addc_u32 s{SRD_WS+1}, s21, 0", f"s_mov_b32 s{SRD_WS+2}, {2*WS_SLOT}", f"s_mov_b32 s{SRD_WS+3}, 0x20000",
                  f"s_add_u32 s{SRD_O}, s16, s{S_X+5}", f"s_addc_u32 s{SRD_O+1}, s17, 0", f"s_mov_b32 s{SRD_O+2}, 16384", f"s_mov_b32 s{SRD_O+3}, 0x20000",
                  f"v_lshlrev_b32 v14, 3, v{V_LANE}",
                  f"v_add_u32 v21, 4096, v{V_LIN}",
                  f"s_lshl_b32 s{S_X+11}, s{S_W}, 2",
                  f"s_add_u32 s{S_X+11}, s{S_X+11}, {WS_FLAG}",
                  f"v_mov_b32 v20, s{S_X+11}",
                  f"s_lshl_b32 s{S_X+10}, s{S_W}, 13",
                  f"s_add_u32 s{S_X+10}, s{S_X+10}, {VLREG}"]
        sl[1] += [f"s_lshl_b32 s{S_X+11}, s{S_W}, 9",
                  f"s_add_u32 s{S_X+11}, s{S_X+11}, {MLREG}",
                  f"v_add_u32 v15, s{S_X+11}, v14",
                  f"v_add_u32 v22, {MLREG}, v14",
                  f"v_and_b32 v9, 3, v{V_LANE}",
                  f"v_lshlrev_b32 v23, 4, v9",
                  f"v_bfe_u32 v9, v{V_LANE}, 3, 2",
                  f"v_lshl_add_u32 v23, v9, 2, v23",
                  f"v_bfe_u32 v9, v{V_LANE}, 2, 1",
                  f"v_lshl_add_u32 v23, v9, 6, v23",
                  f"v_lshrrev_b32 v9, 5, v{V_LANE}",
                  f"v_lshl_add_u32 v23, v9, 9, v23",
                  f"s_lshl_b32 s{S_X+11}, s{S_W}, 7",
                  f"s_add_u32 s{S_X+11}, s{S_X+11}, {VLREG}",
                  f"v_add_u32 v23, s{S_X+11}, v23"]
        sl[4] += self.kfrag_reads(0, 8)
        sl[5] += ["s_waitcnt lgkmcnt(0)"] + self.kfrag_reads(8, 16) + self.qk_mfma(0, 4)
        sl[6] += self.qk_mfma(4, 8)
        sl[7] += ["s_waitcnt lgkmcnt(0)"] + self.qk_mfma(8, 16)
        sl[8] += ["s_nop 11",
                  f"v_max3_f32 v{t0}, v{S}, v{S+1}, v{S+2}",
                  f"v_max3_f32 v{t1}, v{S+3}, v{S+4}, v{S+5}",
                  f"v_max3_f32 v{t0}, v{t0}, v{S+6}, v{S+7}",
                  f"v_max3_f32 v{t1}, v{t1}, v{S+8}, v{S+9}",
                  f"v_max3_f32 v{t0}, v{t0}, v{S+10}, v{S+11}",
                  f"v_max3_f32 v{t1}, v{t1}, v{S+12}, v{S+13}",
                  f"v_max3_f32 v{t0}, v{t0}, v{S+14}, v{S+15}",
                  f"v_max_f32 v{t0}, v{t0}, v{t1}",
                  f"v_mov_b32 v{t1}, v{t0}",
                  "s_nop 1",
                  f"v_permlane32_swap_b32 v{t0}, v{t1}",
                  "s_nop 1",
                  f"v_max_f32 v{t0}, v{t0}, v{t1}",
                  f"v_mul_f32 v{t0}, s{S_C}, v{t0}",
                  f"v_max_f32 v{t0}, v{V_M}, v{t0}",
                  f"ds_write_b32 v15, v{t0}",
                  "s_waitcnt lgkmcnt(0)",
                  "s_barrier"]
        sl[8] += [f"ds_read_b32 v{24+k}, v22 offset:{512*k}" for k in range(4)]
        sl[8] += [f"v_mov_b32 v12, {TICK}", "ds_read_b32 v13, v12"]
        sl[9] += ["s_waitcnt lgkmcnt(0)",
                  f"v_max3_f32 v{t0}, v24, v25, v26",
                  f"v_readfirstlane_b32 s{S_ROLE}, v13",
                  f"v_max_f32 v{V_MNEW}, v{t0}, v27",
                  f"v_sub_f32 v{t1}, v{V_M}, v{V_MNEW}",
                  f"v_exp_f32 v{V_ALPHA}, v{t1}",
                  f"v_cmp_gt_f32 vcc, v{V_MNEW}, v{V_M}",
                  f"v_mov_b32 v{V_M}, v{V_MNEW}",
                  f"v_mul_f32 v{V_L}, v{V_L}, v{V_ALPHA}",
                  f"buffer_load_dword v19, v20, {WS}, s{S_PART} offen sc1",
                  "s_nop 1"]
        for part in range(2):
            lab = f"L_skip_final_{part}"
            sl[10+part] += [f"s_cbranch_vccz {lab}"] + \
                [f"v_mul_f32 v{V_O+r}, v{V_ALPHA}, v{V_O+r}" for r in range(64*part, 64*part+64)] + [lab + ":"]
        for part in range(2):
            rs = range(8*part, 8*part+8)
            blk = [f"v_fma_f32 v{S+r}, v{S+r}, s{S_C}, -v{V_M}" for r in rs]
            blk += [f"v_exp_f32 v{S+r}, v{S+r}" for r in rs]
            blk += ["s_nop 0"]
            blk += [f"v_cvt_pk_bf16_f32 v{V_P+(r>>1)}, v{S+r}, v{S+r+1}" for r in rs if r % 2 == 0]
            b = 8*part
            blk += [f"v_add_f32 v{t0}, v{S+b}, v{S+b+1}",
                    f"v_add_f32 v{t1}, v{S+b+2}, v{S+b+3}",
                    f"v_add_f32 v{t0}, v{t0}, v{S+b+4}",
                    f"v_add_f32 v{t1}, v{t1}, v{S+b+5}",
                    f"v_add_f32 v{t0}, v{t0}, v{S+b+6}",
                    f"v_add_f32 v{t1}, v{t1}, v{S+b+7}",
                    f"v_add_f32 v{t0}, v{t0}, v{t1}",
                    f"v_add_f32 v{V_L}, v{V_L}, v{t0}"]
            sl[12+part] += blk
        sl[13] += [f"s_lshl_b32 s{S_X+11}, s{S_W}, 10",
                   f"s_add_u32 s{S_X+11}, s{S_X+11}, {PLREG}",
                   f"v_add_u32 v12, s{S_X+11}, v{V_LIN}",
                   f"ds_write_b128 v12, {vr(V_P+4,4)}",
                   f"v_mov_b32 v11, v{V_L}",
                   f"v_mov_b32 v{t0}, v{V_L}",
                   "s_nop 1",
                   f"v_permlane32_swap_b32 v11, v{t0}",
                   "s_nop 1",
                   f"v_add_f32 v11, v11, v{t0}",
                   "ds_write_b32 v15, v11 offset:4"]
        pv0 = [blk for s_, blk in self.pv_slices() if s_ == 0]
        sl[14] += pv0[0] + pv0[1]
        sl[15] += pv0[2] + pv0[3]

        c("---- final phase: V of the last tile, first half into registers, second half into LDS")
        self.pace_pat = [D]
        W = self.wfin
        if self.gseq:
            self.g_sequence(sl, pv0)
        elif self.burst:
            self.lab("L_final")
            self.emit(sl[0])
            for b in range(16):
                a(f"s_waitcnt vmcnt({min(W-1, 63)})")
                if b < 8:
                    self.v_load(b)
                else:
                    v_dma(b)
            self.stamp(2)
            self.emit(sl[1])
            a("s_waitcnt vmcnt(16)")
            for b in range(4, 14):
                self.emit(sl[b])
            a("s_waitcnt vmcnt(9)")
            self.emit(sl[14])
            self.emit(sl[15])
        else:
            self.lab("L_final")
            for b in range(8):
                self.pace()
                self.v_load(b)
                self.emit(sl[b])
            for b in range(8, 12):
                a(f"s_waitcnt vmcnt({W-1})")
                v_dma(b)
            self.emit(sl[8])
            c("role is known after the barrier: look at the partner's flag")
            self.emit(sl[9])
            for b in range(12, 16):
                a(f"s_waitcnt vmcnt({W-1})")
                v_dma(b)
            self.stamp(2)
            for b in range(10, 14):
                self.emit(sl[b])
            a("s_waitcnt vmcnt(9)")
            self.emit(sl[14])
            self.emit(sl[15])
            a("s_waitcnt vmcnt(4)")
        if self.burst:
            c("second arriver: the flag read is examined once the last loads have landed")
            a(f"s_cmp_eq_u32 s{S_ROLE}, 2")
            a(f"s_cselect_b32 s{S_PREF}, 2, 0")
        else:
            c("second arriver: fetch the partner's partial if it is already published, else look again later")
            a(f"v_readfirstlane_b32 s{S_X+12}, v19")
            a(f"s_mov_b32 s{S_PREF}, 0")
            a(f"s_cmp_lg_u32 s{S_ROLE}, 2")
            a("s_cbranch_scc1 L_nopref")
            a(f"s_cmp_lg_u32 s{S_X+12}, 1")
            a("s_cbranch_scc1 L_again")
            a(f"s_mov_b32 s{S_PREF}, 1")
            self.emit(partner_loads())
            a("s_branch L_nopref")
            self.lab("L_again")
            a(f"s_mov_b32 s{S_PREF}, 2")
            a(f"buffer_load_dword v19, v20, {WS}, s{S_PART} offen sc1")
            self.lab("L_nopref")
        if self.gseq and self.gearly:
            self.stamp(3)
        else:
            a("s_nop 7")
            self.stamp(3)
            for k in range(4):
                self.emit(self.part_write(k, S_X+10))
        a("s_waitcnt lgkmcnt(0)")
        a("s_barrier")
        self.stamp(4)
        def part_addr(k):
            a(f"s_sub_u32 s{S_X+10}, s{S_W}, {k}")
            a(f"s_and_b32 s{S_X+10}, s{S_X+10}, 3")
            if k < 3:
                a(f"s_mul_i32 s{S_X+11}, s{S_X+10}, {KBUF}")
                a(f"s_add_u32 s{S_X+11}, s{S_X+11}, {(k-1)*8192}")
            else:
                a(f"s_lshl_b32 s{S_X+11}, s{S_X+10}, 13")
                a(f"s_add_u32 s{S_X+11}, s{S_X+11}, {EREG}")
            a(f"v_add_u32 v15, s{S_X+11}, v{V_LIN}")
        part_addr(1)
        for i in range(8):
            a(f"ds_read_b128 {vr(R1+4*i,4)}, v15 offset:{i*1024}")
        for k in range(4):
            a(f"ds_read_b32 v{24+k}, v22 offset:{512*k+4}")
        a("s_waitcnt lgkmcnt(4)")
        c("own part + first received part, selected by wave id")
        for k in range(4):
            if k < 3:
                a(f"s_cmp_lg_u32 s{S_W}, {k}")
                a(f"s_cbranch_scc1 L_own{k+1}")
            for i in range(8):
                for cc in (0, 2):
                    a(f"v_pk_add_f32 {vr(acc(i,cc),2)}, {vr(V_O+16*i+4*k+cc,2)}, {vr(R1+4*i+cc,2)}")
            if k < 3:
                a("s_branch L_owndone")
                self.lab(f"L_own{k+1}")
        self.lab("L_owndone")
        part_addr(2)
        for i in range(8):
            a(f"ds_read_b128 {vr(R2+4*i,4)}, v15 offset:{i*1024}")
        a("s_waitcnt lgkmcnt(8)")
        a("v_add_f32 v11, v24, v25")
        a("v_add_f32 v12, v26, v27")
        a(f"v_mov_b32 v10, v{V_M}")
        a("v_add_f32 v11, v11, v12")
        part_addr(3)
        a("s_waitcnt lgkmcnt(7)")
        for i in range(8):
            a(f"ds_read_b128 {vr(R3+4*i,4)}, v15 offset:{i*1024}")
        a("s_waitcnt lgkmcnt(8)")
        for i in range(8):
            for cc in (0, 2):
                a(f"v_pk_add_f32 {vr(acc(i,cc),2)}, {vr(acc(i,cc),2)}, {vr(R2+4*i+cc,2)}")
        a(f"v_add_u32 v12, {PLREG}, v{V_LIN}")
        for src in range(4):
            a(f"ds_read_b128 {vr(PP+4*src,4)}, v12 offset:{1024*src}")
        a("s_waitcnt lgkmcnt(4)")
        for i in range(8):
            for cc in (0, 2):
                a(f"v_pk_add_f32 {vr(acc(i,cc),2)}, {vr(acc(i,cc),2)}, {vr(R3+4*i+cc,2)}")
        c("all second halves of V have landed")
        a("s_waitcnt vmcnt(0) lgkmcnt(0)")
        a("s_barrier")
        for j in range(8):
            a(f"ds_read_b32 v{VD+j}, v23 offset:{j*1024}")
        a(f"s_cmp_lg_u32 s{S_PREF}, 2")
        a("s_cbranch_scc1 L_nosecond")
        a(f"v_readfirstlane_b32 s{S_X+12}, v19")
        a(f"s_mov_b32 s{S_PREF}, 0")
        a(f"s_cmp_lg_u32 s{S_X+12}, 1")
        a("s_cbranch_scc1 L_nosecond")
        a(f"s_mov_b32 s{S_PREF}, 1")
        self.emit(partner_loads())
        self.lab("L_nosecond")
        for src in range(4):
            if src < 3:
                a("s_waitcnt lgkmcnt(7)")
                for j in range(8):
                    a(f"ds_read_b32 v{VD+8*(src+1)+j}, v23 offset:{(src+1)*8192 + j*1024}")
                a("s_waitcnt lgkmcnt(8)")
            else:
                a("s_waitcnt lgkmcnt(0)")
            for ip in range(2):
                buf = AB + 4*((2*src + ip) & 3)
                sel = S_PLO if ip == 0 else S_PHI
                for t in range(4):
                    a(f"v_perm_b32 v{buf+t}, v{VD+8*src+2*t+1}, v{VD+8*src+2*t}, s{sel}")
            a("s_nop 1")
            for ip in range(2):
                buf = AB + 4*((2*src + ip) & 3)
                a(f"v_mfma_f32_32x32x16_bf16 {vr(ACC+16*ip,16)}, {vr(buf,4)}, {vr(PP+4*src,4)}, {vr(ACC+16*ip,16)}")
        a("s_nop 15")
        self.stamp(5)
        c("v10 = M, v11 = L, accumulators in v96..v127")
        a(f"s_cmp_lg_u32 s{S_ROLE}, 1")
        a("s_cbranch_scc1 L_second")

        c("---- first arriver: publish the partial result")
        a(f"s_lshl_b32 s{S_X+10}, s{S_W}, 13")
        a(f"s_add_u32 s{S_X+10}, s{S_X+10}, s{S_OWN}")
        a(f"s_lshl_b32 s{S_X+11}, s{S_W}, 9")
        a(f"s_add_u32 s{S_X+11}, s{S_X+11}, s{S_OWN}")
        a(f"s_add_u32 s{S_X+11}, s{S_X+11}, {WS_ML}")
        for i in range(8):
            vo = V_LIN if i < 4 else 21
            a(f"buffer_store_dwordx4 {vr(ACC+4*i,4)}, v{vo}, {WS}, s{S_X+10} offen offset:{(i&3)*1024} sc1")
        a(f"buffer_store_dwordx2 v[10:11], v14, {WS}, s{S_X+11} offen sc1")
        a("v_mov_b32 v19, 1")
        a("s_waitcnt vmcnt(0)")
        a("s_mov_b64 exec, 1")
        a(f"buffer_store_dword v19, v20, {WS}, s{S_OWN} offen sc1")
        a("s_mov_b64 exec, -1")
        a("s_branch L_fin")

        c("---- second arriver: wait for the partner, merge, write the output")
        self.lab("L_second")
        a(f"s_cmp_eq_u32 s{S_PREF}, 1")
        a("s_cbranch_scc1 L_have")
        a(f"s_mov_b32 s{S_X+12}, {self.spin_limit}")
        self.lab("L_poll")
        a(f"buffer_load_dword v19, v20, {WS}, s{S_PART} offen sc1")
        a("s_waitcnt vmcnt(0)")
        a(f"v_readfirstlane_b32 s{S_X+13}, v19")
        a(f"s_sub_u32 s{S_X+12}, s{S_X+12}, 1")
        a(f"s_cmp_eq_u32 s{S_X+12}, 0")
        a("s_cbranch_scc1 L_got")
        a(f"s_cmp_eq_u32 s{S_X+13}, 1")
        a("s_cbranch_scc1 L_got")
        a("s_sleep 1")
        a("s_branch L_poll")
        self.lab("L_got")
        self.emit(partner_loads())
        self.lab("L_have")
        a("s_waitcnt vmcnt(0)")
        a("v_max_f32 v12, v10, v16")
        a("v_sub_f32 v10, v10, v12")
        a("v_sub_f32 v16, v16, v12")
        a("v_exp_f32 v10, v10")
        a("v_exp_f32 v16, v16")
        a("s_nop 0")
        a("v_mul_f32 v11, v11, v10")
        a("v_fmac_f32 v11, v17, v16")
        a("v_rcp_f32 v11, v11")
        a("s_nop 0")
        a("v_mul_f32 v10, v10, v11")
        a("v_mul_f32 v16, v16, v11")
        a(f"s_lshl_b32 s{S_X+10}, s{S_W}, 7")
        OUT = V_S
        if self.otr:
            c("output tile through LDS so that every store writes whole 128-byte lines")
            a(f"s_mul_i32 s{S_X+11}, s{S_W}, 4608")
            a(f"s_add_u32 s{S_X+11}, s{S_X+11}, {OTREG2}")
            a("v_lshrrev_b32 v12, 9, v18")
            a("v_mul_u32_u24 v12, 144, v12")
            a("v_and_b32 v13, 64, v18")
            a(f"v_add3_u32 v12, v12, v13, s{S_X+11}")
            a(f"v_lshrrev_b32 v13, 3, v{V_LANE}")
            a("v_mul_u32_u24 v15, 144, v13")
            a(f"v_and_b32 v9, 7, v{V_LANE}")
            a("v_lshlrev_b32 v9, 4, v9")
            a(f"v_add3_u32 v15, v15, v9, s{S_X+11}")
            a("v_lshl_add_u32 v13, v13, 9, v9")
        for c2 in (0, 2):
            for i in range(8):
                r = acc(i, c2)
                a(f"v_pk_mul_f32 {vr(r,2)}, v[10:11], {vr(r,2)} op_sel_hi:[0,1]")
            for i in range(8):
                r = acc(i, c2)
                a(f"v_pk_fma_f32 {vr(r,2)}, v[16:17], {vr(V_VR + r - ACC,2)}, {vr(r,2)} op_sel_hi:[0,1,1]")
            for cc in (c2, c2+1):
                for t in range(4):
                    a(f"v_cvt_pk_bf16_f32 v{OUT+4*cc+t}, v{acc(2*t,cc)}, v{acc(2*t+1,cc)}")
                if self.otr:
                    a(f"ds_write_b128 v12, {vr(OUT+4*cc,4)} offset:{16*cc}")
                else:
                    a(f"buffer_store_dwordx4 {vr(OUT+4*cc,4)}, v18, s[{SRD_O}:{SRD_O+3}], s{S_X+10} offen offset:{16*cc} {self.oflag}")
        if self.otr:
            a("s_waitcnt lgkmcnt(0)")
            for k in range(4):
                a(f"ds_read_b128 {vr(OUT+16+4*k,4)}, v15 offset:{k*8*144}")
            for k in range(1, 4):
                a(f"s_add_u32 s{S_X+10+k}, s{S_X+10}, {4096*k}")
            for k in range(4):
                a(f"s_waitcnt lgkmcnt({3-k})")
                a(f"buffer_store_dwordx4 {vr(OUT+16+4*k,4)}, v13, s[{SRD_O}:{SRD_O+3}], s{S_X+10+k} offen {self.oflag}")

    def part_write(self, k, tmp):
        out = [f"s_cmp_eq_u32 s{S_W}, {k}",
               f"s_cbranch_scc1 L_nopart{k}",
               f"s_sub_u32 s{tmp}, {k+3}, s{S_W}",
               f"s_and_b32 s{tmp}, s{tmp}, 3",
               f"s_lshl_b32 s{tmp+1}, s{tmp}, 13",
               f"s_add_u32 s{tmp+1}, s{tmp+1}, s{S_KBUF}",
               f"s_lshl_b32 s{tmp+2}, s{S_W}, 13",
               f"s_add_u32 s{tmp+2}, s{tmp+2}, {EREG}",
               f"s_cmp_eq_u32 s{tmp}, 2",
               f"s_cselect_b32 s{tmp+1}, s{tmp+2}, s{tmp+1}",
               f"v_add_u32 v15, s{tmp+1}, v{V_LIN}"]
        for i in range(8):
            out.append(f"ds_write_b128 v15, {vr(V_O + 16*i + 4*k, 4)} offset:{i*1024}")
        out.append(f"L_nopart{k}:")
        return out

    def g_sequence(self, sl, pv0):
        a, c, D = self.a, self.c, self.D
        T15 = 36
        S = V_S; t0, t1 = V_T0, V_T0+1
        def k15(i):
            imm = (i & 3)*1024
            a(f"s_add_u32 m0, s{S_KBUF}, {i*KBLK - imm}")
            a("s_nop 0")
            a(f"buffer_load_dwordx4 v{V_LIN}, s[{SRD_K}:{SRD_K+3}], s{T15 + (i >> 2)} offen offset:{imm} {self.nt} lds")
        def v15(b):
            imm = (b & 3)*1024
            a(f"buffer_load_dwordx4 {vr(V_VR+4*b,4)}, v{V_LIN}, s[{SRD_V}:{SRD_V+3}], s{T15 + (b >> 2)} offen offset:{imm} {self.nt}")
        def v15_dma(b):
            imm = (b & 3)*1024
            a(f"s_add_u32 m0, s{S_X+10}, {(b-8)*1024 - imm}")
            a("s_nop 0")
            a(f"buffer_load_dwordx4 v{V_LIN}, s[{SRD_V}:{SRD_V+3}], s{T15 + (b >> 2)} offen offset:{imm} {self.nt} lds")
        g = {k: [] for k in range(48)}
        sm = self.softmax_slices("g14")
        assert len(sm) == 10
        g[0] += [f"s_add_u32 s{T15+k}, s{S_T+k}, 131072" for k in range(4)]
        g[0] += [x for x in sl[0] if f"s{S_X+10}," not in x.split(None, 1)[1][:6]]
        g[1] += sl[1]
        for k in range(10):
            g[4+k] += sm[k]
        pv = self.pv_slices()
        for k in range(4):
            g[14+k] += pv[k][1]
        g[25] += [f"s_lshl_b32 s{S_X+10}, s{S_W}, 13", f"s_add_u32 s{S_X+10}, s{S_X+10}, {VLREG}"]
        g[28] += self.kfrag_reads(0, 8)
        g[29] += ["s_waitcnt lgkmcnt(0)"] + self.kfrag_reads(8, 16) + self.qk_mfma(0, 4)
        g[30] += self.qk_mfma(4, 8)
        g[31] += ["s_waitcnt lgkmcnt(0)"] + self.qk_mfma(8, 12)
        g[32] += self.qk_mfma(12, 16)
        g[33] += sl[8]
        g[34] += sl[9]
        g[35] += sl[12]
        c1 = [x.replace(f"v_cvt_pk_bf16_f32 v{V_P+4},", f"v_cvt_pk_bf16_f32 v{S},").replace(f"v_cvt_pk_bf16_f32 v{V_P+5},", f"v_cvt_pk_bf16_f32 v{S+1},")
               .replace(f"v_cvt_pk_bf16_f32 v{V_P+6},", f"v_cvt_pk_bf16_f32 v{S+2},").replace(f"v_cvt_pk_bf16_f32 v{V_P+7},", f"v_cvt_pk_bf16_f32 v{S+3},")
               .replace(f"ds_write_b128 v12, {vr(V_P+4,4)}", f"ds_write_b128 v12, {vr(S,4)}") for x in sl[13]]
        g[36] += c1
        for k in range(4):
            g[37+k] += pv[4+k][1]
        g[41] += ["s_nop 7"] + sl[10]
        g[42] += sl[11]
        g[44] += pv0[0] + pv0[1]
        g[45] += pv0[2] + pv0[3]
        if self.gearly:
            g[46] += ["s_nop 7"] + self.part_write(0, 40) + self.part_write(1, 40)
            g[47] += self.part_write(2, 40) + self.part_write(3, 40)
        self.lab("L_final")
        for k in range(48):
            if k == 8:
                a("s_barrier")
                cnt = self.tk
                self.ticket_issue("L_tk_g", always=True)
            self.pace()
            if k < 8:
                self.v_load(k)
            elif k < 24:
                k15(k-8)
            elif k < 32:
                self.v_load(k-16)
            elif k < 40:
                v15(k-32)
            else:
                v15_dma(k-32)
            if k == 47:
                self.stamp(2)
            self.emit(g[k])
            if k == 23:
                self.ticket_publish("L_tp_g", always=True)

    def finish(self):
        a, c = self.a, self.c
        K = NAME + "_kernel"
        self.lab("L_fin")
        if self.stamps:
            a("s_waitcnt vmcnt(0) lgkmcnt(0)")
            self.stamp(7)
            a("s_waitcnt lgkmcnt(0)")
            a(f"s_lshl_b32 s{S_X+10}, s2, 2")
            a(f"s_add_u32 s{S_X+10}, s{S_X+10}, s{S_W}")
            a(f"s_lshl_b32 s{S_X+10}, s{S_X+10}, 7")
            a(f"s_add_u32 s{SRD_WS}, s20, {STAMP_BASE}")
            a(f"s_addc_u32 s{SRD_WS+1}, s21, 0")
            a(f"s_mov_b32 s{SRD_WS+2}, 0x100000")
            a(f"s_mov_b32 s{SRD_WS+3}, 0x20000")
            for k in range(16):
                a(f"v_mov_b32 v{32+k}, s{84+k}")
            a(f"s_getreg_b32 s{S_X+11}, hwreg(HW_REG_XCC_ID)")
            a(f"v_mov_b32 v48, s{S_X+11}")
            a(f"s_sub_u32 s{S_X+14}, s{S_X+14}, 1")
            a(f"s_lshl_b32 s{S_X+12}, s{S_TMP}, 1")
            a(f"s_add_u32 s{S_X+14}, s{S_X+14}, s{S_X+12}")
            a(f"v_mov_b32 v49, s{S_X+14}")
            a(f"s_getreg_b32 s{S_X+11}, hwreg(HW_REG_HW_ID)")
            a(f"v_mov_b32 v50, s{S_X+11}")
            a(f"v_mov_b32 v51, 0")
            a("v_mov_b32 v20, 0")
            a("s_mov_b64 exec, 1")
            for k in range(4):
                a(f"buffer_store_dwordx4 {vr(32+4*k,4)}, v20, s[{SRD_WS}:{SRD_WS+3}], s{S_X+10} offen offset:{16*k}")
            a(f"buffer_store_dwordx4 v[48:51], v20, s[{SRD_WS}:{SRD_WS+3}], s{S_X+10} offen offset:64")
            a("s_mov_b64 exec, -1")
        self.lab("L_end")
        a("s_endpgm")
        self.L.append(f""".section .rodata,"a"
.p2align 6
.amdhsa_kernel {K}
  .amdhsa_next_free_vgpr 384
  .amdhsa_next_free_sgpr 102
  .amdhsa_accum_offset 256
  .amdhsa_group_segment_fixed_size 0
  .amdhsa_kernarg_size 72
  .amdhsa_user_sgpr_count 2
  .amdhsa_user_sgpr_kernarg_segment_ptr 1
  .amdhsa_system_sgpr_workgroup_id_x 1
  .amdhsa_float_denorm_mode_32 3
.end_amdhsa_kernel""")

if __name__ == "__main__":
    import argparse
    ap = argparse.ArgumentParser()
    ap.add_argument("-o", default="cdna_kernels/" + NAME + ".s")
    ap.add_argument("-D", type=int, default=5)
    ap.add_argument("--nt", default="nt")
    ap.add_argument("--stamps", action="store_true")
    ap.add_argument("--nocompute", action="store_true")
    ap.add_argument("--norescale", action="store_true")
    ap.add_argument("--pat", default=None)
    ap.add_argument("--pattern", default="H2")
    ap.add_argument("--dlate", type=int, default=None)
    ap.add_argument("--tlate", type=int, default=13)
    ap.add_argument("--warm", action="store_true")
    ap.add_argument("--diag", default=None)
    ap.add_argument("--xlate", action="store_true")
    ap.add_argument("--trot", type=int, default=0)
    ap.add_argument("--trotx", type=int, default=0)
    ap.add_argument("--xorp", type=int, default=0)
    ap.add_argument("--bits", default=None)
    ap.add_argument("--same", action="store_true")
    ap.add_argument("--xs", type=int, default=0)
    ap.add_argument("--dA", type=int, default=None)
    ap.add_argument("--dB", type=int, default=None)
    ap.add_argument("--tsw", type=int, default=9)
    ap.add_argument("--oflag", default="")
    ap.add_argument("--dodd", type=int, default=None)
    ap.add_argument("--skip", default="")
    ap.add_argument("--qflag", default="")
    ap.add_argument("--qpos", type=int, default=None)
    ap.add_argument("--tka", action="store_true")
    ap.add_argument("--sync", default=None)
    ap.add_argument("--coop", action="store_true")
    ap.add_argument("--wfin", type=int, default=8)
    ap.add_argument("--burst", action="store_true")
    ap.add_argument("--otr", action="store_true")
    ap.add_argument("--gseq", action="store_true")
    ap.add_argument("--gearly", action="store_true")
    ap.add_argument("--syncB", default=None)
    ap.add_argument("--syncA", default=None)
    ap.add_argument("--noearly", action="store_true")
    ap.add_argument("--tk", type=int, default=14)
    args = ap.parse_args()
    g = Gen(D=args.D, nt=args.nt, stamps=args.stamps, nocompute=args.nocompute, norescale=args.norescale,
            pace_pat=[int(x) for x in args.pat.split(',')] if args.pat else None, pattern=args.pattern, dlate=args.dlate, tlate=args.tlate,
            warm=args.warm, early=not args.noearly, tk=args.tk, diag=args.diag, xlate=args.xlate, trot=args.trot, trotx=args.trotx, xorp=args.xorp, bits=args.bits, same=args.same, xs=args.xs, dA=args.dA, dB=args.dB, tsw=args.tsw, oflag=args.oflag, dodd=args.dodd, skip=args.skip, qflag=args.qflag, qpos=args.qpos, tka=args.tka, sync=args.sync, syncB=args.syncB, syncA=args.syncA, coop=args.coop, wfin=args.wfin, burst=args.burst, otr=args.otr, gseq=args.gseq, gearly=args.gearly)
    open(args.o, "w").write(g.build())
```

```python
import sys, struct, math

NAME = "standalone__tree_speculative_verify_tree_attention_over_candidate_token_tree__sampling"

HEADER = """; Kernarg layout for this problem (72 bytes, ptrs only, base s[0:1]):
;   offset  24: d_in[3] k_tree  shape=(16, 8, 16, 256) dtype=bfloat16 strides=(65536, 8192, 512, 2) contiguous=True
;   offset  32: d_in[4] v_tree  shape=(16, 8, 16, 256) dtype=bfloat16 strides=(65536, 8192, 512, 2) contiguous=True
;   offset  40: d_in[5] tree_mask  shape=(16, 16, 16) dtype=bfloat16 strides=(512, 32, 2) contiguous=True
"""

DESIGN = '''; Design
;   The 32 query rows of a pair (2 heads x 16 tree tokens) form one 32-wide MFMA tile.
;   The 16 tree keys are split two per wave and folded in as one masked mini tile.
'''

def f32(x):
    return "0x%08x" % struct.unpack("<I", struct.pack("<f", x))[0]

KBLK = 1040
KBUF = 16*KBLK
EREG = 4*KBUF
TREEK = EREG + KBUF
MLREG = EREG + 32768
TICK = MLREG + 2048
LDS_BYTES = 102400
VLREG = 102400
OTREG = 102400
OTREG2 = 139264
PLREG = VLREG + 32768

V_LANE, V_LIN, V_VOFF, V_KRD, V_M, V_L, V_ALPHA, V_MNEW = 1, 2, 3, 4, 5, 6, 7, 8
V_T0 = 9
V_P, V_S, V_VP, V_VR, V_O = 24, 32, 48, 64, 128
A_Q, A_K = 0, 64
S_W, S_TMP = 22, 23
SRD_K, SRD_V, SRD_Q, SRD_KT, SRD_VT, SRD_M, SRD_O, SRD_WS = 24, 28, 32, 36, 40, 44, 48, 52
S_T = 56
S_KBUF, S_CNT, S_C, S_PLO, S_PHI, S_OWN, S_PART = 60, 61, 62, 63, 64, 65, 66
S_X = 68
S_HW = 83
S_TT = 67
V_ZERO = 10
S_XS = 3
WS_SLOT = 65536
WS_ML = 32768
WS_FLAG = 36864
STAMP_BASE = 0x2000000

def vr(b, n=1):
    return f"v{b}" if n == 1 else f"v[{b}:{b+n-1}]"
def ar(b, n=1):
    return f"a{b}" if n == 1 else f"a[{b}:{b+n-1}]"
def sr(b, n=1):
    return f"s{b}" if n == 1 else f"s[{b}:{b+n-1}]"

class Gen:
    def __init__(self, D=5, nt="nt", stamps=False, spin_limit=1 << 22, nocompute=False, norescale=False, pace_pat=None, pattern='H2', dlate=None, tlate=13, warm=False, early=True, tk=14, diag=None, xlate=False, trot=0, trotx=0, xorp=0, bits=None, same=False, xs=0, dA=None, dB=None, tsw=9, oflag='', dodd=None, skip='', qflag='', qpos=None, tka=False, sync=None, syncB=None, syncA=None, coop=False, wfin=8, burst=False, otr=False, gseq=False, gearly=False, swarm=False, owarm=False, gw=None, gw0=40, gtk=8):
        self.D, self.nt, self.stamps, self.spin_limit = D, nt, stamps, spin_limit
        self.nocompute, self.norescale = nocompute, norescale
        self.pace_pat = pace_pat or [D]
        self.D0 = D
        self.npace = 0
        self.dlate, self.tlate = dlate, tlate
        self.warm, self.early, self.tk = warm, early, tk
        self.diag, self.xlate = diag, xlate
        self.trot, self.trotx, self.xorp = trot, trotx, xorp
        self.bits = {o: 12 + i for i, o in enumerate(bits.split())} if bits else None
        self.same, self.xs = same, xs
        self.dA, self.dB, self.tsw = dA, dB, tsw
        self.oflag = oflag
        self.dodd = dodd
        self.skip = skip.split(',')
        self.qflag, self.qpos = qflag, qpos
        self.tka = tka
        self.sync = sync
        self.coop = coop
        self.wfin = wfin
        self.burst = burst
        self.otr = otr
        self.gseq = gseq
        self.gearly = gearly
        self.swarm, self.owarm = swarm, owarm
        self.gw, self.gw0 = gw, gw0
        self.gtk = gtk
        self.lds_bytes = (139264 + (4*4608 if otr else 0)) if coop else (OTREG + 4*4608 if otr else LDS_BYTES)
        self.syncB = [int(x) for x in syncB.split(',')] if syncB else []
        self.syncA = [int(x) for x in syncA.split(',')] if syncA else []
        if dodd is not None:
            self.D = max(self.D, dodd)
        if dA is not None:
            self.D = max(self.D, dA, dB)
        if bits:
            assert sorted(self.bits) == sorted('h w0 w1 j2 j3 t0 t1 t2 t3'.split())
        self.Dpace = D
        if dlate is not None:
            self.D = max(D, dlate)
        self.pattern = {'P0': (14, [0, 4096, 8192, 12288], None), 'P1': (13, [0, 4096, 32768, 36864], None), 'P2': (12, [0, 16384, 32768, 49152], None),
                        'H2': (13, [0, 32768, 65536, 98304], 12), 'H4': (12, [0, 32768, 65536, 98304], 14), 'H6': (13, [0, 4096, 32768, 36864], 16)}[pattern]
        self.shared = self.pattern[2] is not None or self.bits is not None
        self.L = []
        self.nstamp = 0

    def a(self, s):
        for line in s.split("\n"):
            self.L.append("    " + line.strip())
    def lab(self, n):
        self.L.append(n + ":")
    def c(self, s):
        self.L.append("    ; " + s)

    def stamp(self, idx):
        if self.stamps:
            r = 84 + 2*idx
            self.a(f"s_memrealtime s[{r}:{r+1}]")

    def srd(self, q, lo, hi, add, size):
        if add is None:
            self.a(f"s_mov_b32 s{q}, s{lo}\ns_mov_b32 s{q+1}, s{hi}")
        else:
            self.a(f"s_add_u32 s{q}, s{lo}, {add}\ns_addc_u32 s{q+1}, s{hi}, 0")
        self.a(f"s_mov_b32 s{q+2}, {size}\ns_mov_b32 s{q+3}, 0x20000")

    def k_load(self, i):
        imm = (i & 3)*1024
        self.a(f"s_add_u32 m0, s{S_KBUF}, {i*KBLK - imm}")
        self.a("s_nop 0")
        self.a(f"buffer_load_dwordx4 v{V_LIN}, s[{SRD_K}:{SRD_K+3}], s{S_T + (i >> 2)} offen offset:{imm} {self.nt} lds")
    def v_load(self, b):
        imm = (b & 3)*1024
        so = S_T + (b >> 2)
        d = V_VR + 4*b
        self.a(f"buffer_load_dwordx4 {vr(d,4)}, v{V_LIN}, s[{SRD_V}:{SRD_V+3}], s{so} offen offset:{imm} {self.nt}")
    def pace(self):
        d = self.pace_pat[self.npace % len(self.pace_pat)]
        assert d <= self.D
        self.npace += 1
        self.a(f"s_waitcnt vmcnt({d-1})")

    def kfrag_reads(self, lo, hi, vaddr=V_KRD, abase=A_K):
        return [f"ds_read_b128 {ar(abase+4*s,4)}, v{vaddr} offset:{32*s}" for s in range(lo, hi)]
    def qk_mfma(self, lo, hi):
        out = []
        for s in range(lo, hi):
            cin = "0" if s == 0 else vr(V_S, 16)
            out.append(f"v_mfma_f32_32x32x16_bf16 {vr(V_S,16)}, {ar(A_K+4*s,4)}, {ar(A_Q+4*s,4)}, {cin}")
        return out

    def softmax_slices(self, tag):
        S = V_S; t0, t1 = V_T0, V_T0+1
        sl = []
        sl.append(self.kfrag_reads(0, 8))
        sl.append(["s_waitcnt lgkmcnt(0)"] + self.kfrag_reads(8, 16) + self.qk_mfma(0, 4))
        sl.append(self.qk_mfma(4, 8))
        sl.append(["s_waitcnt lgkmcnt(0)"] + self.qk_mfma(8, 12))
        sl.append(self.qk_mfma(12, 16))
        mx = ["s_nop 11",
              f"v_max3_f32 v{t0}, v{S}, v{S+1}, v{S+2}",
              f"v_max3_f32 v{t1}, v{S+3}, v{S+4}, v{S+5}",
              f"v_max3_f32 v{t0}, v{t0}, v{S+6}, v{S+7}",
              f"v_max3_f32 v{t1}, v{t1}, v{S+8}, v{S+9}",
              f"v_max3_f32 v{t0}, v{t0}, v{S+10}, v{S+11}",
              f"v_max3_f32 v{t1}, v{t1}, v{S+12}, v{S+13}",
              f"v_max3_f32 v{t0}, v{t0}, v{S+14}, v{S+15}",
              f"v_max_f32 v{t0}, v{t0}, v{t1}",
              f"v_mov_b32 v{t1}, v{t0}",
              "s_nop 1",
              f"v_permlane32_swap_b32 v{t0}, v{t1}",
              "s_nop 1",
              f"v_max_f32 v{t0}, v{t0}, v{t1}",
              f"v_mul_f32 v{t0}, s{S_C}, v{t0}",
              f"v_max_f32 v{V_MNEW}, v{V_M}, v{t0}",
              f"v_sub_f32 v{t1}, v{V_M}, v{V_MNEW}",
              f"v_exp_f32 v{V_ALPHA}, v{t1}",
              f"v_cmp_gt_f32 vcc, v{V_MNEW}, v{V_M}",
              f"v_mov_b32 v{V_M}, v{V_MNEW}",
              f"v_mul_f32 v{V_L}, v{V_L}, v{V_ALPHA}",
              "s_nop 1"]
        sl.append(mx)
        for part in range(0 if self.norescale else 2):
            lab = f"L_skip_{tag}_{part}"
            blk = [f"s_cbranch_vccz {lab}"]
            blk += [f"v_mul_f32 v{V_O+r}, v{V_ALPHA}, v{V_O+r}" for r in range(64*part, 64*part+64)]
            blk += [lab + ":"]
            sl.append(blk)
        for part in range(2):
            rs = range(8*part, 8*part+8)
            blk = [f"v_fma_f32 v{S+r}, v{S+r}, s{S_C}, -v{V_M}" for r in rs]
            blk += [f"v_exp_f32 v{S+r}, v{S+r}" for r in rs]
            blk += ["s_nop 0"]
            blk += [f"v_cvt_pk_bf16_f32 v{V_P+(r>>1)}, v{S+r}, v{S+r+1}" for r in rs if r % 2 == 0]
            b = 8*part
            blk += [f"v_add_f32 v{t0}, v{S+b}, v{S+b+1}",
                    f"v_add_f32 v{t1}, v{S+b+2}, v{S+b+3}",
                    f"v_add_f32 v{t0}, v{t0}, v{S+b+4}",
                    f"v_add_f32 v{t1}, v{t1}, v{S+b+5}",
                    f"v_add_f32 v{t0}, v{t0}, v{S+b+6}",
                    f"v_add_f32 v{t1}, v{t1}, v{S+b+7}",
                    f"v_add_f32 v{t0}, v{t0}, v{t1}",
                    f"v_add_f32 v{V_L}, v{V_L}, v{t0}"]
            sl.append(blk)
        return sl

    def pv_slices(self):
        out = []
        for s in range(2):
            for c in range(4):
                blo = V_VP + 8*(c & 1)
                bhi = blo + 4
                blk = []
                for t in range(4):
                    r0 = V_VR + 4*(8*s + 2*t) + c
                    r1 = r0 + 4
                    blk.append(f"v_perm_b32 v{blo+t}, v{r1}, v{r0}, s{S_PLO}")
                for t in range(4):
                    r0 = V_VR + 4*(8*s + 2*t) + c
                    r1 = r0 + 4
                    blk.append(f"v_perm_b32 v{bhi+t}, v{r1}, v{r0}, s{S_PHI}")
                blk.append("s_nop 1")
                o0, o1 = V_O + 16*(2*c), V_O + 16*(2*c+1)
                blk.append(f"v_mfma_f32_32x32x16_bf16 {vr(o0,16)}, {vr(blo,4)}, {vr(V_P+4*s,4)}, {vr(o0,16)}")
                blk.append(f"v_mfma_f32_32x32x16_bf16 {vr(o1,16)}, {vr(bhi,4)}, {vr(V_P+4*s,4)}, {vr(o1,16)}")
                out.append((s, blk))
        return out

    def ticket_issue(self, lab, always=False):
        a = self.a
        if not always:
            a(f"s_cmp_lg_u32 s{S_CNT}, {self.tk}")
            a(f"s_cbranch_scc1 {lab}")
        a(f"s_cmp_lg_u32 s{S_W}, 0")
        a(f"s_cbranch_scc1 {lab}")
        a(f"s_lshr_b32 s{S_X+10}, s{S_X+2}, 1")
        a(f"s_lshl_b32 s{S_X+10}, s{S_X+10}, 2")
        a(f"s_and_b32 s{S_X+11}, s{S_X+2}, 1")
        a(f"s_lshl_b32 s{S_X+11}, s{S_X+11}, 4")
        a(f"s_lshl_b32 s{S_X+12}, 1, s{S_X+11}")
        a(f"v_mov_b32 v12, s{S_X+10}")
        a(f"v_mov_b32 v13, s{S_X+12}")
        a("s_mov_b64 exec, 1")
        a("global_atomic_add v13, v12, v13, s[18:19] sc0 sc1")
        a("s_mov_b64 exec, -1")
        self.lab(lab)

    def ticket_publish(self, lab, always=False):
        a = self.a
        if not always:
            a(f"s_cmp_lg_u32 s{S_CNT}, {self.tk}")
            a(f"s_cbranch_scc1 {lab}")
        a(f"s_cmp_lg_u32 s{S_W}, 0")
        a(f"s_cbranch_scc1 {lab}")
        a(f"s_waitcnt vmcnt({self.D-1})")
        a(f"v_lshrrev_b32 v13, s{S_X+11}, v13")
        a(f"v_and_b32 v13, 0xffff, v13")
        a(f"v_add_u32 v13, 1, v13")
        a(f"v_mov_b32 v12, {TICK}")
        a("s_mov_b64 exec, 1")
        a("ds_write_b32 v12, v13")
        a("s_mov_b64 exec, -1")
        self.lab(lab)

    def koff(self, k):
        return ((k & 1) << self.bits['j2']) + ((k >> 1) << self.bits['j3'])

    def tile_offsets(self):
        a, P = self.a, self.bits
        groups = []
        k = 0
        while k < 4:
            n = 1
            while k + n < 4 and P[f"t{k+n}"] == P[f"t{k}"] + n:
                n += 1
            groups.append((k, n, P[f"t{k}"]))
            k += n
        a(f"s_mov_b32 s{S_T}, s{S_HW}")
        for k, n, pos in groups:
            a(f"s_bfe_u32 s{S_X+10}, s{S_CNT}, {hex((n << 16) | k)}")
            a(f"s_lshl_b32 s{S_X+10}, s{S_X+10}, {pos}")
            a(f"s_add_u32 s{S_T}, s{S_T}, s{S_X+10}")
        for k in range(1, 4):
            a(f"s_add_u32 s{S_T+k}, s{S_T}, {self.koff(k)}")
        if self.xs:
            for k in range(4):
                a(f"s_xor_b32 s{S_T+k}, s{S_T+k}, s{S_XS}")

    def tree_loads(self, tag):
        a = self.a
        lab = f"L_treeld_{tag}"
        a(f"s_cmp_lg_u32 s{S_CNT}, s{S_TT}")
        a(f"s_cbranch_scc1 {lab}")
        self.srd(SRD_KT, 10, 11, f"s{S_X+6}", 8192)
        self.srd(SRD_VT, 12, 13, f"s{S_X+6}", 8192)
        self.srd(SRD_M, 14, 15, f"s{S_X+7}", 512)
        a(f"s_lshl_b32 s{S_X+12}, s{S_X+4}, 10")
        a(f"s_lshl_b32 s{S_X+13}, s{S_X+4}, 2")
        a(f"s_mov_b32 m0, s{S_X+1}")
        a("s_nop 0")
        if 'tree' not in self.skip:
            a(f"buffer_load_dwordx4 v{V_LIN}, s[{SRD_KT}:{SRD_KT+3}], s{S_X+12} offen lds")
            a(f"buffer_load_dwordx4 v[20:23], v{V_LIN}, s[{SRD_VT}:{SRD_VT+3}], s{S_X+12} offen")
            a(f"buffer_load_ushort v19, v17, s[{SRD_M}:{SRD_M+3}], s{S_X+13} offen")
        if self.owarm:
            self.c("first touch of the output page")
            self.srd(SRD_O, 16, 17, f"s{S_X+5}", 16384)
            a(f"buffer_load_dword v{V_MNEW}, v{V_LIN}, s[{SRD_O}:{SRD_O+3}], 0 offen")
        self.c("wave 0 clears the four hand-off flags of this workgroup")
        a(f"s_cmp_lg_u32 s{S_W}, 0")
        a(f"s_cbranch_scc1 {lab}")
        self.srd(SRD_WS, 20, 21, f"s{S_X+8}", 2*WS_SLOT)
        for k in range(4):
            a(f"v_mov_b32 v{V_ZERO+k}, 0")
        a(f"v_mov_b32 v9, {WS_FLAG}")
        a("s_mov_b64 exec, 1")
        a(f"buffer_store_dwordx4 v[{V_ZERO}:{V_ZERO+3}], v9, s[{SRD_WS}:{SRD_WS+3}], s{S_OWN} offen sc1")
        a("s_mov_b64 exec, -1")
        self.lab(lab)

    def tree_slices(self, tag):
        S = V_S; t0, t1 = V_T0, V_T0+1
        sl = []
        sl.append(self.kfrag_reads(0, 8, 15, A_K) +
                  ["v_lshlrev_b32 v19, 16, v19",
                   "v_sub_f32 v19, 1.0, v19",
                   f"v_mul_f32 v19, {f32(-1e9*math.log2(math.e))}, v19"])
        sl.append(["s_waitcnt lgkmcnt(0)"] + self.kfrag_reads(8, 16, 15, A_K) + self.qk_mfma(0, 8))
        sl.append(["s_waitcnt lgkmcnt(0)"] + self.qk_mfma(8, 16))
        sm = [f"v_mov_b32 v{V_VP+k}, 0" for k in range(16)]
        sm += [f"v_mov_b32 v{V_P+k}, 0" for k in range(1, 4)]
        sm += ["s_nop 4",
               f"v_fma_f32 v{t0}, v{S}, s{S_C}, v19",
               f"v_mov_b32 v{t1}, v{t0}",
               f"v_mov_b32 v12, v{t0}",
               "s_nop 1",
               f"v_permlane32_swap_b32 v{t0}, v{t1}",
               "s_nop 1",
               f"v_max3_f32 v{V_MNEW}, v{V_M}, v{t0}, v{t1}",
               f"v_sub_f32 v{t1}, v{V_M}, v{V_MNEW}",
               f"v_sub_f32 v12, v12, v{V_MNEW}",
               f"v_exp_f32 v{V_ALPHA}, v{t1}",
               f"v_exp_f32 v12, v12",
               f"v_cmp_gt_f32 vcc, v{V_MNEW}, v{V_M}",
               f"v_mov_b32 v{V_M}, v{V_MNEW}",
               f"v_fma_f32 v{V_L}, v{V_L}, v{V_ALPHA}, v12",
               f"v_cvt_pk_bf16_f32 v{V_P}, v12, 0",
               "s_nop 1"]
        sl.append(sm)
        for part in range(2):
            lab = f"L_tskip_{tag}_{part}"
            blk = [f"s_cbranch_vccz {lab}"]
            blk += [f"v_mul_f32 v{V_O+r}, v{V_ALPHA}, v{V_O+r}" for r in range(64*part, 64*part+64)]
            blk += [lab + ":"]
            sl.append(blk)
        for half in range(2):
            blk = []
            for ii in range(4):
                i = 4*half + ii
                buf = V_VP + 4*ii
                src = 20 + (i >> 1)
                if i & 1:
                    blk.append(f"v_lshrrev_b32 v{buf}, 16, v{src}")
                else:
                    blk.append(f"v_and_b32 v{buf}, 0xffff, v{src}")
            blk.append("s_nop 1")
            for ii in range(4):
                i = 4*half + ii
                buf = V_VP + 4*ii
                blk.append(f"v_mfma_f32_32x32x16_bf16 {vr(V_O+16*i,16)}, {vr(buf,4)}, {vr(V_P,4)}, {vr(V_O+16*i,16)}")
            sl.append(blk)
        return sl

    def emit(self, blk):
        for ln in blk:
            if ln.endswith(":"):
                self.lab(ln[:-1])
            else:
                self.a(ln)

    def schedule(self, tag):
        D = self.D
        B = [[] for _ in range(16)]
        A = [[] for _ in range(16)]
        pos = D - 1
        def put(p, blk):
            (B[p] if p < 16 else A[p-16]).append(blk)
        for blk in self.softmax_slices(tag):
            put(pos, blk); pos += 1
        pos = max(pos, 16)
        for s, blk in self.pv_slices():
            if s == 1:
                pos = max(pos, 16 + D - 1)
            assert pos < 32
            put(pos, blk); pos += 1
        return B, A

    def build(self):
        a, c, D = self.a, self.c, self.D
        K = NAME + "_kernel"
        self.L.append(f".amdgcn_target \"amdgcn-amd-amdhsa--gfx950\"\n.text\n.globl {K}\n.p2align 8\n.type {K},@function\n{K}:")
        a("s_cmp_ge_u32 s2, 256")
        a("s_cbranch_scc1 L_end")
        a("s_load_dwordx16 s[4:19], s[0:1], 0")
        a("s_load_dwordx2 s[20:21], s[0:1], 64")
        self.stamp(0)
        c("lane / wave decomposition")
        a(f"v_lshrrev_b32 v9, 6, v0")
        a(f"v_and_b32 v{V_LANE}, 63, v0")
        a(f"v_readfirstlane_b32 s{S_W}, v9")
        a(f"v_lshlrev_b32 v{V_LIN}, 4, v{V_LANE}")
        a(f"v_and_b32 v10, 31, v{V_LANE}")
        a(f"v_lshrrev_b32 v11, 5, v{V_LANE}")
        c("row rho of a tile is key 2*blk + e, blk = (rho&3) + 4*(rho>>3), e = (rho>>2)&1")
        a(f"v_and_b32 v12, 3, v10")
        a(f"v_lshrrev_b32 v13, 3, v10")
        a(f"v_lshl_add_u32 v12, v13, 2, v12")
        a(f"v_bfe_u32 v13, v10, 2, 1")
        c("q row held by this lane's column")
        a(f"v_lshl_add_u32 v16, v12, 1, v13")
        a(f"v_mul_u32_u24 v12, {KBLK}, v12")
        a(f"v_lshl_add_u32 v12, v13, 9, v12")
        a(f"v_lshl_add_u32 v12, v11, 4, v12")
        a(f"s_mul_i32 s{S_KBUF}, s{S_W}, {KBUF}")
        a(f"v_add_u32 v{V_KRD}, s{S_KBUF}, v12")
        a(f"v_add_u32 v14, {EREG}, v12")
        c("tree-K fragment address: rows with bit 2 set read the second key")
        a(f"v_bfe_u32 v15, v10, 2, 1")
        a(f"v_lshlrev_b32 v15, 9, v15")
        a(f"v_lshl_add_u32 v15, v11, 4, v15")
        a(f"s_lshl_b32 s{S_X}, s{S_W}, 10")
        a(f"s_add_u32 s{S_X+1}, s{S_X}, {TREEK}")
        a(f"v_add_u32 v15, s{S_X+1}, v15")
        c("mask offset: (q&15)*32 + h*2")
        a(f"v_and_b32 v17, 15, v16")
        a(f"v_lshlrev_b32 v17, 5, v17")
        a(f"v_lshl_add_u32 v17, v11, 1, v17")
        c("output offset: q*512 + h*64")
        a(f"v_lshlrev_b32 v18, 9, v16")
        a(f"v_lshl_add_u32 v18, v11, 6, v18")
        c("scalar ids: pair p = wg>>1, half = wg&1, w8 = half*4 + wave")
        if self.same:
            a(f"s_lshr_b32 s{S_X+2}, s2, 4")
            a(f"s_lshl_b32 s{S_X+2}, s{S_X+2}, 3")
            a(f"s_and_b32 s{S_X+3}, s2, 7")
            a(f"s_add_u32 s{S_X+2}, s{S_X+2}, s{S_X+3}")
            a(f"s_bfe_u32 s{S_X+3}, s2, 0x10003")
        else:
            a(f"s_lshr_b32 s{S_X+2}, s2, 1")
            a(f"s_and_b32 s{S_X+3}, s2, 1")
        a(f"s_lshl_b32 s{S_X+4}, s{S_X+3}, 2")
        a(f"s_add_u32 s{S_X+4}, s{S_X+4}, s{S_W}")
        a(f"s_lshl_b32 s{S_OWN}, s{S_X+3}, 16")
        a(f"s_xor_b32 s{S_PART}, s{S_OWN}, 0x10000")
        a(f"s_lshl_b32 s{S_X+5}, s{S_X+2}, 14")
        a(f"s_lshl_b32 s{S_X+6}, s{S_X+2}, 13")
        a(f"s_lshr_b32 s{S_X+7}, s{S_X+2}, 3")
        a(f"s_lshl_b32 s{S_X+7}, s{S_X+7}, 9")
        a(f"s_lshl_b32 s{S_X+8}, s{S_X+2}, 17")
        if self.shared:
            a(f"s_lshl_b32 s{S_X+9}, s{S_X+2}, 21")
        else:
            a(f"s_lshl_b32 s{S_X+9}, s2, 20")
        a(f"s_mov_b32 s{S_CNT}, 0")
        c("offsets of the four 4 KiB runs that make up this wave's tile")
        if self.bits:
            P = self.bits
            a(f"s_lshl_b32 s{S_HW}, s{S_X+3}, {P['h']}")
            a(f"s_and_b32 s{S_X+10}, s{S_W}, 1")
            a(f"s_lshl_b32 s{S_X+10}, s{S_X+10}, {P['w0']}")
            a(f"s_add_u32 s{S_HW}, s{S_HW}, s{S_X+10}")
            a(f"s_lshr_b32 s{S_X+10}, s{S_W}, 1")
            a(f"s_lshl_b32 s{S_X+10}, s{S_X+10}, {P['w1']}")
            a(f"s_add_u32 s{S_HW}, s{S_HW}, s{S_X+10}")
            if self.xs:
                c("pair-dependent permutation of address bits 12..14")
                a(f"s_lshr_b32 s{S_XS}, s{S_X+2}, 3")
                a(f"s_add_u32 s{S_XS}, s{S_XS}, s{S_X+2}")
                a(f"s_mul_i32 s{S_XS}, s{S_XS}, {self.xs}")
                a(f"s_and_b32 s{S_XS}, s{S_XS}, 7")
                a(f"s_lshl_b32 s{S_XS}, s{S_XS}, 12")
            self.tile_offsets()
        else:
            wsh, offs, hsh = self.pattern
            a(f"s_lshl_b32 s{S_T}, s{S_W}, {wsh}")
            if hsh is not None:
                a(f"s_lshl_b32 s{S_X+10}, s{S_X+3}, {hsh}")
                a(f"s_add_u32 s{S_T}, s{S_T}, s{S_X+10}")
            for k in range(3, 0, -1):
                a(f"s_add_u32 s{S_T+k}, s{S_T}, {offs[k]}")
        if self.xorp:
            c("pair-dependent permutation of the 4 KiB runs inside a block")
            a(f"s_mul_i32 s{S_X+10}, s{S_X+2}, {self.xorp}")
            a(f"s_and_b32 s{S_X+10}, s{S_X+10}, 31")
            a(f"s_lshl_b32 s{S_X+10}, s{S_X+10}, 12")
            for k in range(4):
                a(f"s_xor_b32 s{S_T+k}, s{S_T+k}, s{S_X+10}")
        if self.trot or self.trotx:
            c("pair-dependent starting block")
            a(f"s_mul_i32 s{S_X+10}, s{S_X+2}, {self.trot}")
            if self.trotx:
                a(f"s_lshr_b32 s{S_X+11}, s{S_X+2}, {self.trotx}")
                a(f"s_add_u32 s{S_X+10}, s{S_X+10}, s{S_X+11}")
            a(f"s_and_b32 s{S_X+10}, s{S_X+10}, 15")
            a(f"s_lshl_b32 s{S_X+10}, s{S_X+10}, 17")
            for k in range(4):
                a(f"s_add_u32 s{S_T+k}, s{S_T+k}, s{S_X+10}")
        a(f"s_mov_b32 s{S_C}, {f32(math.log2(math.e)/16.0)}")
        a(f"s_mov_b32 s{S_PLO}, 0x05040100")
        a(f"s_mov_b32 s{S_PHI}, 0x07060302")
        a("s_waitcnt lgkmcnt(0)")
        if self.diag is None:
            self.stamp(6)
        ksz = (2 if self.shared else 1) << 20
        if self.swarm:
            c("first touch of the Q and V pages through the scalar path")
            a(f"s_add_u32 s44, s4, s{S_X+5}")
            a(f"s_addc_u32 s45, s5, 0")
            a(f"s_load_dword s46, s[44:45], 0")
            a(f"s_add_u32 s40, s8, s{S_X+9}")
            a(f"s_addc_u32 s41, s9, 0")
            a(f"s_load_dword s47, s[40:41], 0")
        self.srd(SRD_K, 6, 7, f"s{S_X+9}", ksz)
        D0 = max(self.pace_pat)
        qpos = D0 if self.qpos is None else self.qpos
        def q_loads():
            self.srd(SRD_Q, 4, 5, f"s{S_X+5}", 16384)
            c("Q: four 1 KiB blocks per wave into the shared staging area")
            a(f"s_lshl_b32 s{S_X+10}, s{S_W}, 12")
            a(f"s_mul_i32 s{S_X+11}, s{S_W}, {4*KBLK}")
            a(f"s_add_u32 s{S_X+11}, s{S_X+11}, {EREG}")
            for jj in range(4):
                a(f"s_add_u32 m0, s{S_X+11}, {jj*KBLK - jj*1024}")
                a("s_nop 0")
                if 'q' not in self.skip:
                    a(f"buffer_load_dwordx4 v{V_LIN}, s[{SRD_Q}:{SRD_Q+3}], s{S_X+10} offen offset:{jj*1024} {self.qflag} lds")
        for i in range(D0):
            if i == qpos:
                q_loads()
            self.k_load(i)
        if qpos == D0:
            q_loads()
        if self.diag == 'q':
            a(f"s_waitcnt vmcnt({D0 - qpos})")
            self.stamp(6)
        if self.diag == 'k0':
            a(f"s_waitcnt vmcnt({D0 - 1 + 4})")
            self.stamp(6)
        self.srd(SRD_V, 8, 9, f"s{S_X+9}", ksz)
        c("role word starts as unknown; this wave's tree step is at iteration 1 + w8")
        a(f"s_add_u32 s{S_TT}, s{S_X+4}, 1")
        a(f"v_mov_b32 v12, 0")
        a(f"v_mov_b32 v9, {TICK}")
        a(f"s_cmp_lg_u32 s{S_W}, 0")
        a("s_cbranch_scc1 L_noclear")
        a("s_mov_b64 exec, 1")
        a("ds_write_b32 v9, v12")
        a("s_mov_b64 exec, -1")
        self.lab("L_noclear")

        c("---- phase A(0): K tile 0; accumulator setup and Q fragments between the loads")
        init = [f"v_mov_b32 v{V_O+r}, 0" for r in range(128)]
        init += [f"v_mov_b32 v{V_M}, 0xff800000", f"v_mov_b32 v{V_L}, 0"]
        nq = 4
        slots = {}
        ninit = D0 + 1
        per = -(-len(init)//ninit)
        for k in range(ninit):
            slots.setdefault(D0 + k, []).append(init[k*per:(k+1)*per])
        qs = max(qpos + D0, 2*D0 - 1) + 1
        qs = min(max(qs, 11), 13)
        assert qpos + D0 <= qs
        slots.setdefault(qs, []).append(["s_waitcnt lgkmcnt(0)", "s_barrier"] + self.kfrag_reads(0, 8, 14, A_Q))
        slots.setdefault(qs+1, []).append(["s_waitcnt lgkmcnt(0)"] + self.kfrag_reads(8, 16, 14, A_Q))
        slots.setdefault(qs+2, []).append(["s_waitcnt lgkmcnt(0)"])
        for i in range(D0, 16):
            if i == qpos and qpos > D0:
                q_loads()
            c_after = i - qpos
            if 0 <= c_after < D0:
                a(f"s_waitcnt vmcnt({D0 - 1 + nq})")
            else:
                self.pace()
            self.k_load(i)
            for blk in slots.get(i, []):
                self.emit(blk)

        self.stamp(1)
        c("---- main loop: phase B(t) = V loads + QK/softmax, phase A(t+1) = K loads + PV")
        step = 131072 if self.shared else 65536
        def loop(tag, pat, exit_cnt, exit_lab):
            B, A = self.schedule(tag)
            self.pace_pat = pat
            self.npace = 0
            self.L.append(".p2align 6")
            self.lab(f"L_{tag}")
            if self.early and not self.tka:
                self.ticket_issue(f"L_tk_{tag}")
            for b in range(16):
                if b in self.syncB:
                    a("s_barrier")
                self.pace()
                self.v_load(b)
                for blk in B[b]:
                    if not self.nocompute:
                        self.emit(blk)
            if self.early and not self.tka:
                self.ticket_publish(f"L_tp_{tag}")
            if not self.coop:
                a(f"s_cmp_eq_u32 s{S_CNT}, 15")
                a("s_cbranch_scc1 L_tail")
            a(f"s_add_u32 s{S_CNT}, s{S_CNT}, 1")
            if self.bits:
                self.tile_offsets()
            else:
                for k in range(4):
                    a(f"s_add_u32 s{S_T+k}, s{S_T+k}, {step}")
                    if self.trot or self.trotx:
                        a(f"s_and_b32 s{S_T+k}, s{S_T+k}, 0x1fffff")
            tree = self.tree_slices(tag)
            first_free = max(i for i in range(16) if A[i]) + 1
            while first_free + len(tree) > 16:
                tree = tree[:4] + [tree[4] + tree[5]] + tree[6:] if len(tree) == 8 else tree[:-2] + [tree[-2] + tree[-1]]
            assert first_free >= self.D + 1
            if self.sync == "all":
                a("s_barrier")
            elif self.sync:
                for t in self.sync.split(','):
                    a(f"s_cmp_lg_u32 s{S_CNT}, {t}")
                    a(f"s_cbranch_scc1 L_nosync_{tag}_{t}")
                    a("s_barrier")
                    self.lab(f"L_nosync_{tag}_{t}")
            if self.early and self.tka:
                self.ticket_issue(f"L_tk_{tag}")
            for i in range(16):
                if i in self.syncA:
                    a("s_barrier")
                self.pace()
                self.k_load(i)
                if i == 0:
                    self.tree_loads(tag)
                for blk in A[i]:
                    if not self.nocompute:
                        self.emit(blk)
                if first_free <= i < first_free + len(tree):
                    lab = f"L_tree_{tag}_{i}"
                    a(f"s_cmp_lg_u32 s{S_CNT}, s{S_TT}")
                    a(f"s_cbranch_scc1 {lab}")
                    self.emit(tree[i - first_free])
                    self.lab(lab)
            if self.early and self.tka:
                self.ticket_publish(f"L_tp_{tag}")
            if self.coop:
                a(f"s_cmp_eq_u32 s{S_CNT}, {14 if self.gseq else 15}")
                a("s_cbranch_scc1 L_final")
            if exit_cnt == "role":
                c("once the ticket is known, continue with the depth of that role")
                a(f"s_cmp_lt_u32 s{S_CNT}, {self.tsw}")
                a(f"s_cbranch_scc1 L_{tag}")
                a(f"v_mov_b32 v12, {TICK}")
                a("ds_read_b32 v11, v12")
                a("s_waitcnt lgkmcnt(0)")
                a(f"v_readfirstlane_b32 s{S_X+13}, v11")
                a("s_nop 0")
                a(f"s_cmp_eq_u32 s{S_X+13}, 1")
                a("s_cbranch_scc1 L_lateA")
                a(f"s_cmp_eq_u32 s{S_X+13}, 2")
                a("s_cbranch_scc1 L_lateB")
            elif exit_cnt is not None:
                a(f"s_cmp_eq_u32 s{S_CNT}, {exit_cnt}")
                a(f"s_cbranch_scc1 {exit_lab}")
            a(f"s_branch L_{tag}")
        base_pat = list(self.pace_pat)
        if self.dodd is not None:
            c("prefetch depth by compute-die parity (speed only)")
            a(f"s_getreg_b32 s{S_X+10}, hwreg(HW_REG_XCC_ID)")
            a(f"s_bitcmp1_b32 s{S_X+10}, 0")
            a("s_cbranch_scc1 L_odd")
            loop("loop", base_pat, None, None)
            loop("odd", [self.dodd], None, None)
        elif self.dA is not None:
            loop("loop", base_pat, "role", None)
            loop("lateA", [self.dA], None, None)
            loop("lateB", [self.dB], None, None)
        elif self.dlate is None:
            loop("loop", base_pat, None, None)
        else:
            loop("loop", base_pat, self.tlate, "L_late")
            loop("late", [self.dlate], None, None)

        if self.coop:
            self.final_coop()
        else:
            self.final_plain()
        self.finish()
        return HEADER + f"; @launch grid=(256,1,1) block=(256,1,1) lds={self.lds_bytes}\n" + DESIGN + "\n".join(self.L) + "\n"

    def final_plain(self):
        a, c, D = self.a, self.c, self.D
        c("---- tail: role, partner flag, last PV")
        S_PREF, S_ROLE0, S_ROLE = S_TMP, 67, S_X+14
        WS = f"s[{SRD_WS}:{SRD_WS+3}]"
        self.lab("L_tail")
        self.stamp(2)
        self.srd(SRD_WS, 20, 21, f"s{S_X+8}", 2*WS_SLOT)
        self.srd(SRD_O, 16, 17, f"s{S_X+5}", 16384)
        a(f"v_mov_b32 v12, {TICK}")
        a("ds_read_b32 v11, v12")
        a(f"v_lshlrev_b32 v14, 3, v{V_LANE}")
        a(f"v_add_u32 v21, 4096, v{V_LIN}")
        a(f"s_lshl_b32 s{S_X+10}, s{S_W}, 2")
        a(f"s_add_u32 s{S_X+10}, s{S_X+10}, {WS_FLAG}")
        a(f"v_mov_b32 v20, s{S_X+10}")
        a("s_waitcnt lgkmcnt(0)")
        a(f"v_readfirstlane_b32 s{S_ROLE0}, v11")
        a(f"buffer_load_dword v19, v20, {WS}, s{S_PART} offen sc1")
        B2, A2 = self.schedule("tail")
        flat = [blk for slot in A2 for blk in slot]
        npv = 8
        rest = flat[:len(flat)-npv]
        pvs = flat[len(flat)-npv:]
        for blk in rest:
            self.emit(blk)
        for k, blk in enumerate(pvs):
            if k == 0:
                a("s_waitcnt vmcnt(9)")
            if k == 4:
                a("s_waitcnt vmcnt(1)")
            self.emit(blk)
        self.stamp(3)
        def partner_loads():
            a(f"s_lshl_b32 s{S_X+12}, s{S_W}, 13")
            a(f"s_add_u32 s{S_X+12}, s{S_X+12}, s{S_PART}")
            a(f"s_lshl_b32 s{S_X+13}, s{S_W}, 9")
            a(f"s_add_u32 s{S_X+13}, s{S_X+13}, s{S_PART}")
            a(f"s_add_u32 s{S_X+13}, s{S_X+13}, {WS_ML}")
            a(f"buffer_load_dwordx2 v[16:17], v14, {WS}, s{S_X+13} offen sc1")
            for i in range(8):
                vo = V_LIN if i < 4 else 21
                a(f"buffer_load_dwordx4 {vr(V_VR+4*i,4)}, v{vo}, {WS}, s{S_X+12} offen offset:{(i&3)*1024} sc1")
        c("second arriver whose partner has already published: fetch its partial now")
        a("s_waitcnt vmcnt(0)")
        a(f"v_readfirstlane_b32 s{S_X+12}, v19")
        a(f"s_mov_b32 s{S_PREF}, 0")
        a(f"s_cmp_lg_u32 s{S_ROLE0}, 2")
        a("s_cbranch_scc1 L_nopref")
        a(f"s_cmp_lg_u32 s{S_X+12}, 1")
        a("s_cbranch_scc1 L_again")
        a(f"s_mov_b32 s{S_PREF}, 1")
        partner_loads()
        a("s_branch L_nopref")
        self.lab("L_again")
        c("not yet: look again after the barrier")
        a(f"s_mov_b32 s{S_PREF}, 2")
        a(f"buffer_load_dword v19, v20, {WS}, s{S_PART} offen sc1")
        self.lab("L_nopref")

        c("---- workgroup combine through LDS")
        t0, t1 = V_T0, V_T0+1
        a(f"v_mov_b32 v10, v{V_M}")
        a(f"v_mov_b32 v12, v{V_L}")
        a(f"v_mov_b32 v11, v{V_L}")
        a("s_nop 1")
        a("v_permlane32_swap_b32 v11, v12")
        a("s_nop 1")
        a("v_add_f32 v11, v11, v12")
        a(f"s_lshl_b32 s{S_X+10}, s{S_W}, 9")
        a(f"s_add_u32 s{S_X+10}, s{S_X+10}, {MLREG}")
        a(f"v_add_u32 v15, s{S_X+10}, v14")
        a("ds_write_b64 v15, v[10:11]")
        a("s_nop 7")
        for k in range(4):
            c(f"part {k}: registers 4k..4k+3 of every accumulator tile go to wave {k}")
            a(f"s_cmp_eq_u32 s{S_W}, {k}")
            a(f"s_cbranch_scc1 L_nopart{k}")
            a(f"s_sub_u32 s{S_X+10}, {k+3}, s{S_W}")
            a(f"s_and_b32 s{S_X+10}, s{S_X+10}, 3")
            a(f"s_lshl_b32 s{S_X+11}, s{S_X+10}, 13")
            a(f"s_add_u32 s{S_X+11}, s{S_X+11}, s{S_KBUF}")
            a(f"s_lshl_b32 s{S_X+12}, s{S_W}, 13")
            a(f"s_add_u32 s{S_X+12}, s{S_X+12}, {EREG}")
            a(f"s_cmp_eq_u32 s{S_X+10}, 2")
            a(f"s_cselect_b32 s{S_X+11}, s{S_X+12}, s{S_X+11}")
            a(f"v_add_u32 v15, s{S_X+11}, v{V_LIN}")
            for i in range(8):
                r = V_O + 16*i + 4*k
                a(f"ds_write_b128 v15, {vr(r,4)} offset:{i*1024}")
            self.lab(f"L_nopart{k}")
        a("s_waitcnt lgkmcnt(0)")
        a("s_barrier")
        self.stamp(4)
        a(f"s_cmp_lg_u32 s{S_PREF}, 2")
        a("s_cbranch_scc1 L_nosecond")
        a("s_waitcnt vmcnt(0)")
        a(f"v_readfirstlane_b32 s{S_X+12}, v19")
        a(f"s_mov_b32 s{S_PREF}, 0")
        a(f"s_cmp_lg_u32 s{S_X+12}, 1")
        a("s_cbranch_scc1 L_nosecond")
        a(f"s_mov_b32 s{S_PREF}, 1")
        partner_loads()
        self.lab("L_nosecond")
        c("(m, l) of the four waves in rotated order: k -> wave (w - k) & 3")
        for k in range(4):
            a(f"s_sub_u32 s{S_X+10}, s{S_W}, {k}")
            a(f"s_and_b32 s{S_X+10}, s{S_X+10}, 3")
            a(f"s_lshl_b32 s{S_X+10}, s{S_X+10}, 9")
            a(f"s_add_u32 s{S_X+10}, s{S_X+10}, {MLREG}")
            a(f"v_add_u32 v15, s{S_X+10}, v14")
            a(f"ds_read_b64 v[{24+2*k}:{25+2*k}], v15")
        a(f"v_mov_b32 v12, {TICK}")
        a("ds_read_b32 v13, v12")
        def part_addr(k):
            a(f"s_sub_u32 s{S_X+10}, s{S_W}, {k}")
            a(f"s_and_b32 s{S_X+10}, s{S_X+10}, 3")
            if k < 3:
                a(f"s_mul_i32 s{S_X+11}, s{S_X+10}, {KBUF}")
                a(f"s_add_u32 s{S_X+11}, s{S_X+11}, {(k-1)*8192}")
            else:
                a(f"s_lshl_b32 s{S_X+11}, s{S_X+10}, 13")
                a(f"s_add_u32 s{S_X+11}, s{S_X+11}, {EREG}")
            a(f"v_add_u32 v15, s{S_X+11}, v{V_LIN}")
        R1, R2, R3 = V_VR+32, V_O, V_O+32
        part_addr(1)
        for i in range(8):
            a(f"ds_read_b128 {vr(R1+4*i,4)}, v15 offset:{i*1024}")
        a("s_waitcnt lgkmcnt(8)")
        a("v_max3_f32 v10, v24, v26, v28")
        a("v_max_f32 v10, v10, v30")
        for k in range(4):
            a(f"v_sub_f32 v{24+2*k}, v{24+2*k}, v10")
        for k in range(4):
            a(f"v_exp_f32 v{24+2*k}, v{24+2*k}")
        a(f"v_readfirstlane_b32 s{S_ROLE}, v13")
        a("v_mul_f32 v11, v24, v25")
        for k in range(1, 4):
            a(f"v_fmac_f32 v11, v{24+2*k}, v{25+2*k}")
        ACC = V_S
        c("own part, selected by wave id")
        for k in range(4):
            if k < 3:
                a(f"s_cmp_lg_u32 s{S_W}, {k}")
                a(f"s_cbranch_scc1 L_own{k+1}")
            for i in range(8):
                for cc in (0, 2):
                    a(f"v_pk_mul_f32 {vr(ACC+4*i+cc,2)}, v[24:25], {vr(V_O+16*i+4*k+cc,2)} op_sel_hi:[0,1]")
            if k < 3:
                a("s_branch L_owndone")
                self.lab(f"L_own{k+1}")
        self.lab("L_owndone")
        part_addr(2)
        for i in range(8):
            a(f"ds_read_b128 {vr(R2+4*i,4)}, v15 offset:{i*1024}")
        a("s_waitcnt lgkmcnt(8)")
        for r in range(0, 32, 2):
            a(f"v_pk_fma_f32 {vr(ACC+r,2)}, v[26:27], {vr(R1+r,2)}, {vr(ACC+r,2)} op_sel_hi:[0,1,1]")
        part_addr(3)
        for i in range(8):
            a(f"ds_read_b128 {vr(R3+4*i,4)}, v15 offset:{i*1024}")
        a("s_waitcnt lgkmcnt(8)")
        for r in range(0, 32, 2):
            a(f"v_pk_fma_f32 {vr(ACC+r,2)}, v[28:29], {vr(R2+r,2)}, {vr(ACC+r,2)} op_sel_hi:[0,1,1]")
        a("s_waitcnt lgkmcnt(0)")
        for r in range(0, 32, 2):
            a(f"v_pk_fma_f32 {vr(ACC+r,2)}, v[30:31], {vr(R3+r,2)}, {vr(ACC+r,2)} op_sel_hi:[0,1,1]")
        self.stamp(5)
        c("v10 = M, v11 = L, acc = v32..v63")
        a(f"s_cmp_lg_u32 s{S_ROLE}, 1")
        a("s_cbranch_scc1 L_second")

        c("---- first arriver: publish the partial result")
        a(f"s_lshl_b32 s{S_X+10}, s{S_W}, 13")
        a(f"s_add_u32 s{S_X+10}, s{S_X+10}, s{S_OWN}")
        a(f"s_lshl_b32 s{S_X+11}, s{S_W}, 9")
        a(f"s_add_u32 s{S_X+11}, s{S_X+11}, s{S_OWN}")
        a(f"s_add_u32 s{S_X+11}, s{S_X+11}, {WS_ML}")
        for i in range(8):
            vo = V_LIN if i < 4 else 21
            a(f"buffer_store_dwordx4 {vr(ACC+4*i,4)}, v{vo}, {WS}, s{S_X+10} offen offset:{(i&3)*1024} sc1")
        a(f"buffer_store_dwordx2 v[10:11], v14, {WS}, s{S_X+11} offen sc1")
        a("v_mov_b32 v19, 1")
        a("s_waitcnt vmcnt(0)")
        a("s_mov_b64 exec, 1")
        a(f"buffer_store_dword v19, v20, {WS}, s{S_OWN} offen sc1")
        a("s_mov_b64 exec, -1")
        a("s_branch L_fin")

        c("---- second arriver: wait for the partner, merge, write the output")
        self.lab("L_second")
        a(f"s_cmp_eq_u32 s{S_PREF}, 1")
        a("s_cbranch_scc1 L_have")
        a(f"s_mov_b32 s{S_X+12}, {self.spin_limit}")
        self.lab("L_poll")
        a(f"buffer_load_dword v19, v20, {WS}, s{S_PART} offen sc1")
        a("s_waitcnt vmcnt(0)")
        a(f"v_readfirstlane_b32 s{S_X+13}, v19")
        a(f"s_sub_u32 s{S_X+12}, s{S_X+12}, 1")
        a(f"s_cmp_eq_u32 s{S_X+12}, 0")
        a("s_cbranch_scc1 L_got")
        a(f"s_cmp_eq_u32 s{S_X+13}, 1")
        a("s_cbranch_scc1 L_got")
        a("s_sleep 1")
        a("s_branch L_poll")
        self.lab("L_got")
        partner_loads()
        self.lab("L_have")
        a("s_waitcnt vmcnt(0)")
        a("v_max_f32 v12, v10, v16")
        a("v_sub_f32 v10, v10, v12")
        a("v_sub_f32 v16, v16, v12")
        a("v_exp_f32 v10, v10")
        a("v_exp_f32 v16, v16")
        a("s_nop 0")
        a("v_mul_f32 v11, v11, v10")
        a("v_fmac_f32 v11, v17, v16")
        a("v_rcp_f32 v11, v11")
        a("s_nop 0")
        a("v_mul_f32 v10, v10, v11")
        a("v_mul_f32 v16, v16, v11")
        a(f"s_lshl_b32 s{S_X+10}, s{S_W}, 7")
        if self.otr:
            c("output tile through LDS so that every store writes whole 128-byte lines")
            a(f"s_mul_i32 s{S_X+11}, s{S_W}, 4608")
            a(f"s_add_u32 s{S_X+11}, s{S_X+11}, {OTREG}")
            a("v_lshrrev_b32 v12, 9, v18")
            a("v_mul_u32_u24 v12, 144, v12")
            a("v_and_b32 v13, 64, v18")
            a(f"v_add3_u32 v12, v12, v13, s{S_X+11}")
            a(f"v_lshrrev_b32 v13, 3, v{V_LANE}")
            a("v_mul_u32_u24 v15, 144, v13")
            a(f"v_and_b32 v9, 7, v{V_LANE}")
            a("v_lshlrev_b32 v9, 4, v9")
            a(f"v_add3_u32 v15, v15, v9, s{S_X+11}")
            a("v_lshl_add_u32 v13, v13, 9, v9")
        for c2 in (0, 2):
            for i in range(8):
                r = 4*i + c2
                a(f"v_pk_mul_f32 {vr(ACC+r,2)}, v[10:11], {vr(ACC+r,2)} op_sel_hi:[0,1]")
            for i in range(8):
                r = 4*i + c2
                a(f"v_pk_fma_f32 {vr(ACC+r,2)}, v[16:17], {vr(V_VR+r,2)}, {vr(ACC+r,2)} op_sel_hi:[0,1,1]")
            for cc in (c2, c2+1):
                for t in range(4):
                    a(f"v_cvt_pk_bf16_f32 v{V_VR+32+4*cc+t}, v{ACC+4*(2*t)+cc}, v{ACC+4*(2*t+1)+cc}")
                if self.otr:
                    a(f"ds_write_b128 v12, {vr(V_VR+32+4*cc,4)} offset:{16*cc}")
                else:
                    a(f"buffer_store_dwordx4 {vr(V_VR+32+4*cc,4)}, v18, s[{SRD_O}:{SRD_O+3}], s{S_X+10} offen offset:{16*cc} {self.oflag}")
        if self.otr:
            a("s_waitcnt lgkmcnt(0)")
            for k in range(4):
                a(f"ds_read_b128 {vr(V_VR+48+4*k,4)}, v15 offset:{k*8*144}")
            for k in range(1, 4):
                a(f"s_add_u32 s{S_X+10+k}, s{S_X+10}, {4096*k}")
            for k in range(4):
                a(f"s_waitcnt lgkmcnt({3-k})")
                a(f"buffer_store_dwordx4 {vr(V_VR+48+4*k,4)}, v13, s[{SRD_O}:{SRD_O+3}], s{S_X+10+k} offen {self.oflag}")

    def final_coop(self):
        a, c, D = self.a, self.c, self.D
        assert D == 5
        S_PREF, S_ROLE = S_TMP, S_X+14
        WS = f"s[{SRD_WS}:{SRD_WS+3}]"
        S = V_S; t0, t1 = V_T0, V_T0+1
        ACC = V_VR + 32
        R1, R2, R3 = V_S, V_O, V_O + 32
        VD, PP, AB = V_O + 64, V_O + 96, V_O + 112
        def acc(i, cc):
            return ACC + 16*(i & 1) + 4*(i >> 1) + cc
        def partner_loads():
            out = [f"s_lshl_b32 s{S_X+12}, s{S_W}, 13",
                   f"s_add_u32 s{S_X+12}, s{S_X+12}, s{S_PART}",
                   f"s_lshl_b32 s{S_X+13}, s{S_W}, 9",
                   f"s_add_u32 s{S_X+13}, s{S_X+13}, s{S_PART}",
                   f"s_add_u32 s{S_X+13}, s{S_X+13}, {WS_ML}",
                   f"buffer_load_dwordx2 v[16:17], v14, {WS}, s{S_X+13} offen sc1"]
            for i in range(8):
                vo = V_LIN if i < 4 else 21
                out.append(f"buffer_load_dwordx4 {vr(V_VR+4*i,4)}, v{vo}, {WS}, s{S_X+12} offen offset:{(i&3)*1024} sc1")
            return out
        def v_dma(b):
            imm = (b & 3)*1024
            a(f"s_add_u32 m0, s{S_X+10}, {(b-8)*1024 - imm}")
            a("s_nop 0")
            a(f"buffer_load_dwordx4 v{V_LIN}, s[{SRD_V}:{SRD_V+3}], s{S_T + (b >> 2)} offen offset:{imm} {self.nt} lds")

        sl = {b: [] for b in range(16)}
        sl[0] += [f"s_add_u32 s{SRD_WS}, s20, s{S_X+8}", f"s_addc_u32 s{SRD_WS+1}, s21, 0", f"s_mov_b32 s{SRD_WS+2}, {2*WS_SLOT}", f"s_mov_b32 s{SRD_WS+3}, 0x20000",
                  f"s_add_u32 s{SRD_O}, s16, s{S_X+5}", f"s_addc_u32 s{SRD_O+1}, s17, 0", f"s_mov_b32 s{SRD_O+2}, 16384", f"s_mov_b32 s{SRD_O+3}, 0x20000",
                  f"v_lshlrev_b32 v14, 3, v{V_LANE}",
                  f"v_add_u32 v21, 4096, v{V_LIN}",
                  f"s_lshl_b32 s{S_X+11}, s{S_W}, 2",
                  f"s_add_u32 s{S_X+11}, s{S_X+11}, {WS_FLAG}",
                  f"v_mov_b32 v20, s{S_X+11}",
                  f"s_lshl_b32 s{S_X+10}, s{S_W}, 13",
                  f"s_add_u32 s{S_X+10}, s{S_X+10}, {VLREG}"]
        sl[1] += [f"s_lshl_b32 s{S_X+11}, s{S_W}, 9",
                  f"s_add_u32 s{S_X+11}, s{S_X+11}, {MLREG}",
                  f"v_add_u32 v15, s{S_X+11}, v14",
                  f"v_add_u32 v22, {MLREG}, v14",
                  f"v_and_b32 v9, 3, v{V_LANE}",
                  f"v_lshlrev_b32 v23, 4, v9",
                  f"v_bfe_u32 v9, v{V_LANE}, 3, 2",
                  f"v_lshl_add_u32 v23, v9, 2, v23",
                  f"v_bfe_u32 v9, v{V_LANE}, 2, 1",
                  f"v_lshl_add_u32 v23, v9, 6, v23",
                  f"v_lshrrev_b32 v9, 5, v{V_LANE}",
                  f"v_lshl_add_u32 v23, v9, 9, v23",
                  f"s_lshl_b32 s{S_X+11}, s{S_W}, 7",
                  f"s_add_u32 s{S_X+11}, s{S_X+11}, {VLREG}",
                  f"v_add_u32 v23, s{S_X+11}, v23"]
        sl[4] += self.kfrag_reads(0, 8)
        sl[5] += ["s_waitcnt lgkmcnt(0)"] + self.kfrag_reads(8, 16) + self.qk_mfma(0, 4)
        sl[6] += self.qk_mfma(4, 8)
        sl[7] += ["s_waitcnt lgkmcnt(0)"] + self.qk_mfma(8, 16)
        sl[8] += ["s_nop 11",
                  f"v_max3_f32 v{t0}, v{S}, v{S+1}, v{S+2}",
                  f"v_max3_f32 v{t1}, v{S+3}, v{S+4}, v{S+5}",
                  f"v_max3_f32 v{t0}, v{t0}, v{S+6}, v{S+7}",
                  f"v_max3_f32 v{t1}, v{t1}, v{S+8}, v{S+9}",
                  f"v_max3_f32 v{t0}, v{t0}, v{S+10}, v{S+11}",
                  f"v_max3_f32 v{t1}, v{t1}, v{S+12}, v{S+13}",
                  f"v_max3_f32 v{t0}, v{t0}, v{S+14}, v{S+15}",
                  f"v_max_f32 v{t0}, v{t0}, v{t1}",
                  f"v_mov_b32 v{t1}, v{t0}",
                  "s_nop 1",
                  f"v_permlane32_swap_b32 v{t0}, v{t1}",
                  "s_nop 1",
                  f"v_max_f32 v{t0}, v{t0}, v{t1}",
                  f"v_mul_f32 v{t0}, s{S_C}, v{t0}",
                  f"v_max_f32 v{t0}, v{V_M}, v{t0}",
                  f"ds_write_b32 v15, v{t0}",
                  "s_waitcnt lgkmcnt(0)",
                  "s_barrier"]
        sl[8] += [f"ds_read_b32 v{24+k}, v22 offset:{512*k}" for k in range(4)]
        sl[8] += [f"v_mov_b32 v12, {TICK}", "ds_read_b32 v13, v12"]
        sl[9] += ["s_waitcnt lgkmcnt(0)",
                  f"v_max3_f32 v{t0}, v24, v25, v26",
                  f"v_readfirstlane_b32 s{S_ROLE}, v13",
                  f"v_max_f32 v{V_MNEW}, v{t0}, v27",
                  f"v_sub_f32 v{t1}, v{V_M}, v{V_MNEW}",
                  f"v_exp_f32 v{V_ALPHA}, v{t1}",
                  f"v_cmp_gt_f32 vcc, v{V_MNEW}, v{V_M}",
                  f"v_mov_b32 v{V_M}, v{V_MNEW}",
                  f"v_mul_f32 v{V_L}, v{V_L}, v{V_ALPHA}",
                  f"buffer_load_dword v19, v20, {WS}, s{S_PART} offen sc1",
                  "s_nop 1"]
        for part in range(2):
            lab = f"L_skip_final_{part}"
            sl[10+part] += [f"s_cbranch_vccz {lab}"] + \
                [f"v_mul_f32 v{V_O+r}, v{V_ALPHA}, v{V_O+r}" for r in range(64*part, 64*part+64)] + [lab + ":"]
        for part in range(2):
            rs = range(8*part, 8*part+8)
            blk = [f"v_fma_f32 v{S+r}, v{S+r}, s{S_C}, -v{V_M}" for r in rs]
            blk += [f"v_exp_f32 v{S+r}, v{S+r}" for r in rs]
            blk += ["s_nop 0"]
            blk += [f"v_cvt_pk_bf16_f32 v{V_P+(r>>1)}, v{S+r}, v{S+r+1}" for r in rs if r % 2 == 0]
            b = 8*part
            blk += [f"v_add_f32 v{t0}, v{S+b}, v{S+b+1}",
                    f"v_add_f32 v{t1}, v{S+b+2}, v{S+b+3}",
                    f"v_add_f32 v{t0}, v{t0}, v{S+b+4}",
                    f"v_add_f32 v{t1}, v{t1}, v{S+b+5}",
                    f"v_add_f32 v{t0}, v{t0}, v{S+b+6}",
                    f"v_add_f32 v{t1}, v{t1}, v{S+b+7}",
                    f"v_add_f32 v{t0}, v{t0}, v{t1}",
                    f"v_add_f32 v{V_L}, v{V_L}, v{t0}"]
            sl[12+part] += blk
        sl[13] += [f"s_lshl_b32 s{S_X+11}, s{S_W}, 10",
                   f"s_add_u32 s{S_X+11}, s{S_X+11}, {PLREG}",
                   f"v_add_u32 v12, s{S_X+11}, v{V_LIN}",
                   f"ds_write_b128 v12, {vr(V_P+4,4)}",
                   f"v_mov_b32 v11, v{V_L}",
                   f"v_mov_b32 v{t0}, v{V_L}",
                   "s_nop 1",
                   f"v_permlane32_swap_b32 v11, v{t0}",
                   "s_nop 1",
                   f"v_add_f32 v11, v11, v{t0}",
                   "ds_write_b32 v15, v11 offset:4"]
        pv0 = [blk for s_, blk in self.pv_slices() if s_ == 0]
        sl[14] += pv0[0] + pv0[1]
        sl[15] += pv0[2] + pv0[3]

        c("---- final phase: V of the last tile, first half into registers, second half into LDS")
        self.pace_pat = [D]
        W = self.wfin
        if self.gseq:
            self.g_sequence(sl, pv0)
        elif self.burst:
            self.lab("L_final")
            self.emit(sl[0])
            for b in range(16):
                a(f"s_waitcnt vmcnt({min(W-1, 63)})")
                if b < 8:
                    self.v_load(b)
                else:
                    v_dma(b)
            self.stamp(2)
            self.emit(sl[1])
            a("s_waitcnt vmcnt(16)")
            for b in range(4, 14):
                self.emit(sl[b])
            a("s_waitcnt vmcnt(9)")
            self.emit(sl[14])
            self.emit(sl[15])
        else:
            self.lab("L_final")
            for b in range(8):
                self.pace()
                self.v_load(b)
                self.emit(sl[b])
            for b in range(8, 12):
                a(f"s_waitcnt vmcnt({W-1})")
                v_dma(b)
            self.emit(sl[8])
            c("role is known after the barrier: look at the partner's flag")
            self.emit(sl[9])
            for b in range(12, 16):
                a(f"s_waitcnt vmcnt({W-1})")
                v_dma(b)
            self.stamp(2)
            for b in range(10, 14):
                self.emit(sl[b])
            a("s_waitcnt vmcnt(9)")
            self.emit(sl[14])
            self.emit(sl[15])
            a("s_waitcnt vmcnt(4)")
        if self.burst:
            c("second arriver: the flag read is examined once the last loads have landed")
            a(f"s_cmp_eq_u32 s{S_ROLE}, 2")
            a(f"s_cselect_b32 s{S_PREF}, 2, 0")
        else:
            c("second arriver: fetch the partner's partial if it is already published, else look again later")
            a(f"v_readfirstlane_b32 s{S_X+12}, v19")
            a(f"s_mov_b32 s{S_PREF}, 0")
            a(f"s_cmp_lg_u32 s{S_ROLE}, 2")
            a("s_cbranch_scc1 L_nopref")
            a(f"s_cmp_lg_u32 s{S_X+12}, 1")
            a("s_cbranch_scc1 L_again")
            a(f"s_mov_b32 s{S_PREF}, 1")
            self.emit(partner_loads())
            a("s_branch L_nopref")
            self.lab("L_again")
            a(f"s_mov_b32 s{S_PREF}, 2")
            a(f"buffer_load_dword v19, v20, {WS}, s{S_PART} offen sc1")
            self.lab("L_nopref")
        if self.gseq and self.gearly:
            self.stamp(3)
        else:
            a("s_nop 7")
            self.stamp(3)
            for k in range(4):
                self.emit(self.part_write(k, S_X+10))
        a("s_waitcnt lgkmcnt(0)")
        a("s_barrier")
        self.stamp(4)
        def part_addr(k):
            a(f"s_sub_u32 s{S_X+10}, s{S_W}, {k}")
            a(f"s_and_b32 s{S_X+10}, s{S_X+10}, 3")
            if k < 3:
                a(f"s_mul_i32 s{S_X+11}, s{S_X+10}, {KBUF}")
                a(f"s_add_u32 s{S_X+11}, s{S_X+11}, {(k-1)*8192}")
            else:
                a(f"s_lshl_b32 s{S_X+11}, s{S_X+10}, 13")
                a(f"s_add_u32 s{S_X+11}, s{S_X+11}, {EREG}")
            a(f"v_add_u32 v15, s{S_X+11}, v{V_LIN}")
        part_addr(1)
        for i in range(8):
            a(f"ds_read_b128 {vr(R1+4*i,4)}, v15 offset:{i*1024}")
        for k in range(4):
            a(f"ds_read_b32 v{24+k}, v22 offset:{512*k+4}")
        a("s_waitcnt lgkmcnt(4)")
        c("own part + first received part, selected by wave id")
        for k in range(4):
            if k < 3:
                a(f"s_cmp_lg_u32 s{S_W}, {k}")
                a(f"s_cbranch_scc1 L_own{k+1}")
            for i in range(8):
                for cc in (0, 2):
                    a(f"v_pk_add_f32 {vr(acc(i,cc),2)}, {vr(V_O+16*i+4*k+cc,2)}, {vr(R1+4*i+cc,2)}")
            if k < 3:
                a("s_branch L_owndone")
                self.lab(f"L_own{k+1}")
        self.lab("L_owndone")
        part_addr(2)
        for i in range(8):
            a(f"ds_read_b128 {vr(R2+4*i,4)}, v15 offset:{i*1024}")
        a("s_waitcnt lgkmcnt(8)")
        a("v_add_f32 v11, v24, v25")
        a("v_add_f32 v12, v26, v27")
        a(f"v_mov_b32 v10, v{V_M}")
        a("v_add_f32 v11, v11, v12")
        part_addr(3)
        a("s_waitcnt lgkmcnt(7)")
        for i in range(8):
            a(f"ds_read_b128 {vr(R3+4*i,4)}, v15 offset:{i*1024}")
        a("s_waitcnt lgkmcnt(8)")
        for i in range(8):
            for cc in (0, 2):
                a(f"v_pk_add_f32 {vr(acc(i,cc),2)}, {vr(acc(i,cc),2)}, {vr(R2+4*i+cc,2)}")
        a(f"v_add_u32 v12, {PLREG}, v{V_LIN}")
        for src in range(4):
            a(f"ds_read_b128 {vr(PP+4*src,4)}, v12 offset:{1024*src}")
        a("s_waitcnt lgkmcnt(4)")
        for i in range(8):
            for cc in (0, 2):
                a(f"v_pk_add_f32 {vr(acc(i,cc),2)}, {vr(acc(i,cc),2)}, {vr(R3+4*i+cc,2)}")
        c("all second halves of V have landed")
        a("s_waitcnt vmcnt(0) lgkmcnt(0)")
        a("s_barrier")
        for j in range(8):
            a(f"ds_read_b32 v{VD+j}, v23 offset:{j*1024}")
        a(f"s_cmp_lg_u32 s{S_PREF}, 2")
        a("s_cbranch_scc1 L_nosecond")
        a(f"v_readfirstlane_b32 s{S_X+12}, v19")
        a(f"s_mov_b32 s{S_PREF}, 0")
        a(f"s_cmp_lg_u32 s{S_X+12}, 1")
        a("s_cbranch_scc1 L_nosecond")
        a(f"s_mov_b32 s{S_PREF}, 1")
        self.emit(partner_loads())
        self.lab("L_nosecond")
        for src in range(4):
            if src < 3:
                a("s_waitcnt lgkmcnt(7)")
                for j in range(8):
                    a(f"ds_read_b32 v{VD+8*(src+1)+j}, v23 offset:{(src+1)*8192 + j*1024}")
                a("s_waitcnt lgkmcnt(8)")
            else:
                a("s_waitcnt lgkmcnt(0)")
            for ip in range(2):
                buf = AB + 4*((2*src + ip) & 3)
                sel = S_PLO if ip == 0 else S_PHI
                for t in range(4):
                    a(f"v_perm_b32 v{buf+t}, v{VD+8*src+2*t+1}, v{VD+8*src+2*t}, s{sel}")
            a("s_nop 1")
            for ip in range(2):
                buf = AB + 4*((2*src + ip) & 3)
                a(f"v_mfma_f32_32x32x16_bf16 {vr(ACC+16*ip,16)}, {vr(buf,4)}, {vr(PP+4*src,4)}, {vr(ACC+16*ip,16)}")
        a("s_nop 15")
        self.stamp(5)
        c("v10 = M, v11 = L, accumulators in v96..v127")
        a(f"s_cmp_lg_u32 s{S_ROLE}, 1")
        a("s_cbranch_scc1 L_second")

        c("---- first arriver: publish the partial result")
        a(f"s_lshl_b32 s{S_X+10}, s{S_W}, 13")
        a(f"s_add_u32 s{S_X+10}, s{S_X+10}, s{S_OWN}")
        a(f"s_lshl_b32 s{S_X+11}, s{S_W}, 9")
        a(f"s_add_u32 s{S_X+11}, s{S_X+11}, s{S_OWN}")
        a(f"s_add_u32 s{S_X+11}, s{S_X+11}, {WS_ML}")
        for i in range(8):
            vo = V_LIN if i < 4 else 21
            a(f"buffer_store_dwordx4 {vr(ACC+4*i,4)}, v{vo}, {WS}, s{S_X+10} offen offset:{(i&3)*1024} sc1")
        a(f"buffer_store_dwordx2 v[10:11], v14, {WS}, s{S_X+11} offen sc1")
        a("v_mov_b32 v19, 1")
        a("s_waitcnt vmcnt(0)")
        a("s_mov_b64 exec, 1")
        a(f"buffer_store_dword v19, v20, {WS}, s{S_OWN} offen sc1")
        a("s_mov_b64 exec, -1")
        a("s_branch L_fin")

        c("---- second arriver: wait for the partner, merge, write the output")
        self.lab("L_second")
        a(f"s_cmp_eq_u32 s{S_PREF}, 1")
        a("s_cbranch_scc1 L_have")
        a(f"s_mov_b32 s{S_X+12}, {self.spin_limit}")
        self.lab("L_poll")
        a(f"buffer_load_dword v19, v20, {WS}, s{S_PART} offen sc1")
        a("s_waitcnt vmcnt(0)")
        a(f"v_readfirstlane_b32 s{S_X+13}, v19")
        a(f"s_sub_u32 s{S_X+12}, s{S_X+12}, 1")
        a(f"s_cmp_eq_u32 s{S_X+12}, 0")
        a("s_cbranch_scc1 L_got")
        a(f"s_cmp_eq_u32 s{S_X+13}, 1")
        a("s_cbranch_scc1 L_got")
        a("s_sleep 1")
        a("s_branch L_poll")
        self.lab("L_got")
        self.emit(partner_loads())
        self.lab("L_have")
        a("s_waitcnt vmcnt(0)")
        a("v_max_f32 v12, v10, v16")
        a("v_sub_f32 v10, v10, v12")
        a("v_sub_f32 v16, v16, v12")
        a("v_exp_f32 v10, v10")
        a("v_exp_f32 v16, v16")
        a("s_nop 0")
        a("v_mul_f32 v11, v11, v10")
        a("v_fmac_f32 v11, v17, v16")
        a("v_rcp_f32 v11, v11")
        a("s_nop 0")
        a("v_mul_f32 v10, v10, v11")
        a("v_mul_f32 v16, v16, v11")
        a(f"s_lshl_b32 s{S_X+10}, s{S_W}, 7")
        OUT = V_S
        if self.otr:
            c("output tile through LDS so that every store writes whole 128-byte lines")
            a(f"s_mul_i32 s{S_X+11}, s{S_W}, 4608")
            a(f"s_add_u32 s{S_X+11}, s{S_X+11}, {OTREG2}")
            a("v_lshrrev_b32 v12, 9, v18")
            a("v_mul_u32_u24 v12, 144, v12")
            a("v_and_b32 v13, 64, v18")
            a(f"v_add3_u32 v12, v12, v13, s{S_X+11}")
            a(f"v_lshrrev_b32 v13, 3, v{V_LANE}")
            a("v_mul_u32_u24 v15, 144, v13")
            a(f"v_and_b32 v9, 7, v{V_LANE}")
            a("v_lshlrev_b32 v9, 4, v9")
            a(f"v_add3_u32 v15, v15, v9, s{S_X+11}")
            a("v_lshl_add_u32 v13, v13, 9, v9")
        for c2 in (0, 2):
            for i in range(8):
                r = acc(i, c2)
                a(f"v_pk_mul_f32 {vr(r,2)}, v[10:11], {vr(r,2)} op_sel_hi:[0,1]")
            for i in range(8):
                r = acc(i, c2)
                a(f"v_pk_fma_f32 {vr(r,2)}, v[16:17], {vr(V_VR + r - ACC,2)}, {vr(r,2)} op_sel_hi:[0,1,1]")
            for cc in (c2, c2+1):
                for t in range(4):
                    a(f"v_cvt_pk_bf16_f32 v{OUT+4*cc+t}, v{acc(2*t,cc)}, v{acc(2*t+1,cc)}")
                if self.otr:
                    a(f"ds_write_b128 v12, {vr(OUT+4*cc,4)} offset:{16*cc}")
                else:
                    a(f"buffer_store_dwordx4 {vr(OUT+4*cc,4)}, v18, s[{SRD_O}:{SRD_O+3}], s{S_X+10} offen offset:{16*cc} {self.oflag}")
        if self.otr:
            a("s_waitcnt lgkmcnt(0)")
            for k in range(4):
                a(f"ds_read_b128 {vr(OUT+16+4*k,4)}, v15 offset:{k*8*144}")
            for k in range(1, 4):
                a(f"s_add_u32 s{S_X+10+k}, s{S_X+10}, {4096*k}")
            for k in range(4):
                a(f"s_waitcnt lgkmcnt({3-k})")
                a(f"buffer_store_dwordx4 {vr(OUT+16+4*k,4)}, v13, s[{SRD_O}:{SRD_O+3}], s{S_X+10+k} offen {self.oflag}")

    def part_write(self, k, tmp):
        out = [f"s_cmp_eq_u32 s{S_W}, {k}",
               f"s_cbranch_scc1 L_nopart{k}",
               f"s_sub_u32 s{tmp}, {k+3}, s{S_W}",
               f"s_and_b32 s{tmp}, s{tmp}, 3",
               f"s_lshl_b32 s{tmp+1}, s{tmp}, 13",
               f"s_add_u32 s{tmp+1}, s{tmp+1}, s{S_KBUF}",
               f"s_lshl_b32 s{tmp+2}, s{S_W}, 13",
               f"s_add_u32 s{tmp+2}, s{tmp+2}, {EREG}",
               f"s_cmp_eq_u32 s{tmp}, 2",
               f"s_cselect_b32 s{tmp+1}, s{tmp+2}, s{tmp+1}",
               f"v_add_u32 v15, s{tmp+1}, v{V_LIN}"]
        for i in range(8):
            out.append(f"ds_write_b128 v15, {vr(V_O + 16*i + 4*k, 4)} offset:{i*1024}")
        out.append(f"L_nopart{k}:")
        return out

    def g_sequence(self, sl, pv0):
        a, c, D = self.a, self.c, self.D
        T15 = 36
        S = V_S; t0, t1 = V_T0, V_T0+1
        def k15(i):
            imm = (i & 3)*1024
            a(f"s_add_u32 m0, s{S_KBUF}, {i*KBLK - imm}")
            a("s_nop 0")
            a(f"buffer_load_dwordx4 v{V_LIN}, s[{SRD_K}:{SRD_K+3}], s{T15 + (i >> 2)} offen offset:{imm} {self.nt} lds")
        def v15(b):
            imm = (b & 3)*1024
            a(f"buffer_load_dwordx4 {vr(V_VR+4*b,4)}, v{V_LIN}, s[{SRD_V}:{SRD_V+3}], s{T15 + (b >> 2)} offen offset:{imm} {self.nt}")
        def v15_dma(b):
            imm = (b & 3)*1024
            a(f"s_add_u32 m0, s{S_X+10}, {(b-8)*1024 - imm}")
            a("s_nop 0")
            a(f"buffer_load_dwordx4 v{V_LIN}, s[{SRD_V}:{SRD_V+3}], s{T15 + (b >> 2)} offen offset:{imm} {self.nt} lds")
        g = {k: [] for k in range(48)}
        sm = self.softmax_slices("g14")
        assert len(sm) == 10
        g[0] += [f"s_add_u32 s{T15+k}, s{S_T+k}, 131072" for k in range(4)]
        g[0] += [x for x in sl[0] if f"s{S_X+10}," not in x.split(None, 1)[1][:6]]
        g[1] += sl[1]
        for k in range(10):
            g[4+k] += sm[k]
        pv = self.pv_slices()
        for k in range(4):
            g[14+k] += pv[k][1]
        g[31] += [f"s_lshl_b32 s{S_X+10}, s{S_W}, 13", f"s_add_u32 s{S_X+10}, s{S_X+10}, {VLREG}"] if self.gtk > 8 else []
        if self.gtk <= 8:
            g[25] += [f"s_lshl_b32 s{S_X+10}, s{S_W}, 13", f"s_add_u32 s{S_X+10}, s{S_X+10}, {VLREG}"]
        g[28] += self.kfrag_reads(0, 8)
        g[29] += ["s_waitcnt lgkmcnt(0)"] + self.kfrag_reads(8, 16) + self.qk_mfma(0, 4)
        g[30] += self.qk_mfma(4, 8)
        g[31] += ["s_waitcnt lgkmcnt(0)"] + self.qk_mfma(8, 12)
        g[32] += self.qk_mfma(12, 16)
        g[33] += sl[8]
        g[34] += sl[9]
        g[35] += sl[12]
        c1 = [x.replace(f"v_cvt_pk_bf16_f32 v{V_P+4},", f"v_cvt_pk_bf16_f32 v{S},").replace(f"v_cvt_pk_bf16_f32 v{V_P+5},", f"v_cvt_pk_bf16_f32 v{S+1},")
               .replace(f"v_cvt_pk_bf16_f32 v{V_P+6},", f"v_cvt_pk_bf16_f32 v{S+2},").replace(f"v_cvt_pk_bf16_f32 v{V_P+7},", f"v_cvt_pk_bf16_f32 v{S+3},")
               .replace(f"ds_write_b128 v12, {vr(V_P+4,4)}", f"ds_write_b128 v12, {vr(S,4)}") for x in sl[13]]
        g[36] += c1
        for k in range(4):
            g[37+k] += pv[4+k][1]
        g[41] += ["s_nop 7"] + sl[10]
        g[42] += sl[11]
        g[44] += pv0[0] + pv0[1]
        g[45] += pv0[2] + pv0[3]
        if self.gearly:
            g[46] += ["s_nop 7"] + self.part_write(0, 40) + self.part_write(1, 40)
            g[47] += self.part_write(2, 40) + self.part_write(3, 40)
        self.lab("L_final")
        for k in range(48):
            if k == 8:
                a("s_barrier")
            if k == self.gtk:
                self.ticket_issue("L_tk_g", always=True)
            need = {44: 4}
            if self.gw and k >= self.gw0 and k not in need:
                a(f"s_waitcnt vmcnt({self.gw-1})")
            else:
                self.pace()
            if k < 8:
                self.v_load(k)
            elif k < 24:
                k15(k-8)
            elif k < 32:
                self.v_load(k-16)
            elif k < 40:
                v15(k-32)
            else:
                v15_dma(k-32)
            if k == 47:
                self.stamp(2)
            self.emit(g[k])
            if k == max(23, self.gtk + 5) or False:
                self.ticket_publish("L_tp_g", always=True)

    def finish(self):
        a, c = self.a, self.c
        K = NAME + "_kernel"
        self.lab("L_fin")
        if self.stamps:
            a("s_waitcnt vmcnt(0) lgkmcnt(0)")
            self.stamp(7)
            a("s_waitcnt lgkmcnt(0)")
            a(f"s_lshl_b32 s{S_X+10}, s2, 2")
            a(f"s_add_u32 s{S_X+10}, s{S_X+10}, s{S_W}")
            a(f"s_lshl_b32 s{S_X+10}, s{S_X+10}, 7")
            a(f"s_add_u32 s{SRD_WS}, s20, {STAMP_BASE}")
            a(f"s_addc_u32 s{SRD_WS+1}, s21, 0")
            a(f"s_mov_b32 s{SRD_WS+2}, 0x100000")
            a(f"s_mov_b32 s{SRD_WS+3}, 0x20000")
            for k in range(16):
                a(f"v_mov_b32 v{32+k}, s{84+k}")
            a(f"s_getreg_b32 s{S_X+11}, hwreg(HW_REG_XCC_ID)")
            a(f"v_mov_b32 v48, s{S_X+11}")
            a(f"s_sub_u32 s{S_X+14}, s{S_X+14}, 1")
            a(f"s_lshl_b32 s{S_X+12}, s{S_TMP}, 1")
            a(f"s_add_u32 s{S_X+14}, s{S_X+14}, s{S_X+12}")
            a(f"v_mov_b32 v49, s{S_X+14}")
            a(f"s_getreg_b32 s{S_X+11}, hwreg(HW_REG_HW_ID)")
            a(f"v_mov_b32 v50, s{S_X+11}")
            a(f"v_mov_b32 v51, 0")
            a("v_mov_b32 v20, 0")
            a("s_mov_b64 exec, 1")
            for k in range(4):
                a(f"buffer_store_dwordx4 {vr(32+4*k,4)}, v20, s[{SRD_WS}:{SRD_WS+3}], s{S_X+10} offen offset:{16*k}")
            a(f"buffer_store_dwordx4 v[48:51], v20, s[{SRD_WS}:{SRD_WS+3}], s{S_X+10} offen offset:64")
            a("s_mov_b64 exec, -1")
        self.lab("L_end")
        a("s_endpgm")
        self.L.append(f""".section .rodata,"a"
.p2align 6
.amdhsa_kernel {K}
  .amdhsa_next_free_vgpr 384
  .amdhsa_next_free_sgpr 102
  .amdhsa_accum_offset 256
  .amdhsa_group_segment_fixed_size 0
  .amdhsa_kernarg_size 72
  .amdhsa_user_sgpr_count 2
  .amdhsa_user_sgpr_kernarg_segment_ptr 1
  .amdhsa_system_sgpr_workgroup_id_x 1
  .amdhsa_float_denorm_mode_32 3
.end_amdhsa_kernel""")

if __name__ == "__main__":
    import argparse
    ap = argparse.ArgumentParser()
    ap.add_argument("-o", default="cdna_kernels/" + NAME + ".s")
    ap.add_argument("-D", type=int, default=5)
    ap.add_argument("--nt", default="nt")
    ap.add_argument("--stamps", action="store_true")
    ap.add_argument("--nocompute", action="store_true")
    ap.add_argument("--norescale", action="store_true")
    ap.add_argument("--pat", default=None)
    ap.add_argument("--pattern", default="H2")
    ap.add_argument("--dlate", type=int, default=None)
    ap.add_argument("--tlate", type=int, default=13)
    ap.add_argument("--warm", action="store_true")
    ap.add_argument("--diag", default=None)
    ap.add_argument("--xlate", action="store_true")
    ap.add_argument("--trot", type=int, default=0)
    ap.add_argument("--trotx", type=int, default=0)
    ap.add_argument("--xorp", type=int, default=0)
    ap.add_argument("--bits", default=None)
    ap.add_argument("--same", action="store_true")
    ap.add_argument("--xs", type=int, default=0)
    ap.add_argument("--dA", type=int, default=None)
    ap.add_argument("--dB", type=int, default=None)
    ap.add_argument("--tsw", type=int, default=9)
    ap.add_argument("--oflag", default="")
    ap.add_argument("--dodd", type=int, default=None)
    ap.add_argument("--skip", default="")
    ap.add_argument("--qflag", default="")
    ap.add_argument("--qpos", type=int, default=None)
    ap.add_argument("--tka", action="store_true")
    ap.add_argument("--sync", default=None)
    ap.add_argument("--coop", action="store_true")
    ap.add_argument("--wfin", type=int, default=8)
    ap.add_argument("--burst", action="store_true")
    ap.add_argument("--otr", action="store_true")
    ap.add_argument("--gseq", action="store_true")
    ap.add_argument("--gearly", action="store_true")
    ap.add_argument("--swarm", action="store_true")
    ap.add_argument("--gw", type=int, default=None)
    ap.add_argument("--gw0", type=int, default=40)
    ap.add_argument("--gtk", type=int, default=8)
    ap.add_argument("--owarm", action="store_true")
    ap.add_argument("--syncB", default=None)
    ap.add_argument("--syncA", default=None)
    ap.add_argument("--noearly", action="store_true")
    ap.add_argument("--tk", type=int, default=14)
    args = ap.parse_args()
    g = Gen(D=args.D, nt=args.nt, stamps=args.stamps, nocompute=args.nocompute, norescale=args.norescale,
            pace_pat=[int(x) for x in args.pat.split(',')] if args.pat else None, pattern=args.pattern, dlate=args.dlate, tlate=args.tlate,
            warm=args.warm, early=not args.noearly, tk=args.tk, diag=args.diag, xlate=args.xlate, trot=args.trot, trotx=args.trotx, xorp=args.xorp, bits=args.bits, same=args.same, xs=args.xs, dA=args.dA, dB=args.dB, tsw=args.tsw, oflag=args.oflag, dodd=args.dodd, skip=args.skip, qflag=args.qflag, qpos=args.qpos, tka=args.tka, sync=args.sync, syncB=args.syncB, syncA=args.syncA, coop=args.coop, wfin=args.wfin, burst=args.burst, otr=args.otr, gseq=args.gseq, gearly=args.gearly, swarm=args.swarm, owarm=args.owarm, gw=args.gw, gw0=args.gw0, gtk=args.gtk)
    open(args.o, "w").write(g.build())
```
